```python
import torch

def _softmax(x, axis=-1):
    return torch.softmax(x, dim=axis)
def _gelu(x):
    return torch.nn.functional.gelu(x, approximate="tanh")
def _silu(x):
    return torch.nn.functional.silu(x)
def _sigmoid(x):
    return torch.sigmoid(x)
def _layernorm(x, axis=-1, eps=1e-5):
    m = x.mean(dim=axis, keepdim=True)
    v = x.var(dim=axis, keepdim=True, unbiased=False)
    return (x - m) / torch.sqrt(v + eps)
def _scatter_add(tgt, idx, src, axis=0):
    return tgt.clone().index_add_(axis, idx, src)
def _segment_sum(src, seg, n):
    out = torch.zeros((n,) + src.shape[1:], dtype=src.dtype)
    return out.index_add_(0, seg, src)
def _pad(x, pw):
    flat = tuple(v for pair in reversed(pw) for v in pair)
    return torch.nn.functional.pad(x, flat)

kernel_name = 'recurrent_scan__spectral_gfnet__dense_activation_squared_relu__prompt'

def setup_inputs():

    _w = (lambda a: (lambda t: t.to(torch.bfloat16) if t.is_floating_point() else t)(torch.as_tensor(a)))
    def _A_setup():
        B, S, D = 1, 2048, 576
        Df = D // 2 + 1
        return {
            "x": _w((lambda *s: torch.randn(*s, dtype=torch.bfloat16) * 0.05)(B, S, D)),
            "w_r": _w((lambda *s: torch.randn(*s, dtype=torch.bfloat16) * 0.05)(S, Df) * 0.02),
            "w_i": _w((lambda *s: torch.randn(*s, dtype=torch.bfloat16) * 0.05)(S, Df) * 0.02),
        }
    _A_in = _A_setup()

    def _B_setup():
        B, S, D, F = 1, 2048, 576, 4608
        return {
            "x": _w((lambda *s: torch.randn(*s, dtype=torch.bfloat16) * 0.05)(B, S, D)),
            "w1": _w((lambda *s: torch.randn(*s, dtype=torch.bfloat16) * 0.05)(D, F)),
            "b1": _w((lambda *s: torch.randn(*s, dtype=torch.bfloat16) * 0.4)(F)),
            "w2": _w((lambda *s: torch.randn(*s, dtype=torch.bfloat16) * 0.05)(F, D)),
            "b2": _w((lambda *s: torch.randn(*s, dtype=torch.bfloat16) * 3.2)(D)),
        }
    _B_in = _B_setup()

    return {
        "A_x": _A_in["x"],
        "A_w_r": _A_in["w_r"],
        "A_w_i": _A_in["w_i"],
        "B_x": _B_in["x"],
        "B_w1": _B_in["w1"],
        "B_b1": _B_in["b1"],
        "B_w2": _B_in["w2"],
        "B_b2": _B_in["b2"],
    }

def reference(A_x, A_w_r, A_w_i, B_x, B_w1, B_b1, B_w2, B_b2):
    def _A_ref(x, w_r, w_i):
        B, S, D = x.shape
        X = (lambda x, axes=(-2,-1): torch.fft.rfft2(x.float(), dim=axes))(x, axes=(-2, -1))
        W = w_r + 1j * w_i
        X = X * W
        y = (lambda x, s, axes=(-2,-1): torch.fft.irfft2(x, s=s, dim=axes).to(torch.bfloat16))(X, (S, D), axes=(-2, -1))
        return y

    def _B_ref(x, w1, b1, w2, b2):
        h = torch.einsum("bsd,df->bsf", x, w1) + b1
        zero = torch.zeros_like(h)
        r = torch.where(h > zero, h, zero)
        h = r * r
        out = torch.einsum("bsf,fd->bsd", h, w2) + b2
        return out

    x = A_x
    xn = _layernorm(x, axis=-1)
    s = _A_ref(xn, A_w_r, A_w_i)
    g = _silu(_B_ref(xn, B_w1, B_b1, B_w2, B_b2))
    return x + s * g
```

```python
import re

_REG = re.compile(r'^(-|\|)?(abs\()?([vas])(\d+|\[(\d+):(\d+)\])\)?\|?$')


def regs_of(op):
    op = op.strip()
    if op in ('vcc', 'vcc_lo', 'vcc_hi'):
        return {('x', 'vcc')}
    if op in ('exec', 'exec_lo', 'exec_hi'):
        return {('x', 'exec')}
    if op == 'm0':
        return {('x', 'm0')}
    m = _REG.match(op)
    if not m:
        return set()
    k = m.group(3)
    if m.group(5) is not None:
        return {(k, i) for i in range(int(m.group(5)), int(m.group(6)) + 1)}
    return {(k, int(m.group(4)))}


def split_ops(s):
    out, depth, cur = [], 0, ''
    for ch in s:
        if ch in '[(':
            depth += 1
        if ch in '])':
            depth -= 1
        if ch == ',' and depth == 0:
            out.append(cur.strip())
            cur = ''
        else:
            cur += ch
    if cur.strip():
        out.append(cur.strip())
    return out


TRANS = ('v_exp_f32', 'v_log_f32', 'v_rcp_f32', 'v_rsq_f32', 'v_sqrt_f32', 'v_sin_f32', 'v_cos_f32',
         'v_rcp_iflag_f32')


class Ins:
    __slots__ = ('text', 'mn', 'kind', 'rd', 'wr', 'a', 'b', 'c', 'passes', 'label', 'target', 'states',
                 'sdata', 'dpp', 'lds', 'sgpr_rd', 'ab')

    def __init__(self, text):
        self.text = text
        self.label = None
        self.target = None
        self.rd = set()
        self.wr = set()
        self.a = self.b = self.c = set()
        self.passes = 0
        self.states = 1
        self.sdata = set()
        self.dpp = False
        self.lds = False
        self.ab = set()
        t = text.split(';')[0].strip()
        if t.endswith(':'):
            self.label = t[:-1]
            self.kind = 'label'
            self.mn = ''
            self.states = 0
            return
        if t == '' or t.startswith('.'):
            self.kind = 'dir'
            self.mn = ''
            self.states = 0
            return
        parts = t.split(None, 1)
        mn = parts[0]
        self.mn = mn
        rest = parts[1] if len(parts) > 1 else ''
        ops = split_ops(rest)
        mods = []
        if ops:
            last = ops[-1].split()
            ops[-1] = last[0]
            mods = last[1:]
        R = [regs_of(o) for o in ops]
        if mn.startswith('v_mfma'):
            self.kind = 'mfma'
            self.wr = R[0]
            self.a, self.b, self.c = R[1], R[2], R[3]
            self.rd = R[1] | R[2] | R[3]
            self.passes = 8 if '32x32x16' in mn else 4 if '16x16x32' in mn else 16
        elif mn.startswith('v_'):
            self.kind = 'valu'
            self.dpp = ('_dpp' in mn) or any(m.startswith(('row_', 'quad_perm', 'wave_')) for m in mods)
            if mn.startswith('v_cmp'):
                self.wr = R[0]
                self.rd = set().union(*R[1:])
                if mn.startswith('v_cmpx'):
                    self.wr = self.wr | {('x', 'exec')}
            elif mn.startswith('v_permlane') and 'swap' in mn:
                self.wr = R[0] | R[1]
                self.rd = R[0] | R[1]
            elif '_co_' in mn or mn.startswith('v_div_scale') or mn.startswith('v_mad_u64'):
                self.wr = R[0] | R[1]
                self.rd = set().union(*R[2:])
            else:
                self.wr = R[0]
                self.rd = set().union(*R[1:]) if len(R) > 1 else set()
                if mn.startswith('v_dot'):
                    self.ab = R[1] | R[2]
                if mn.startswith(('v_fmac', 'v_dot2c', 'v_pk_fmac', 'v_writelane')) or self.dpp or 'sdwa' in mn:
                    self.rd = self.rd | R[0]
        elif mn.startswith(('buffer_', 'global_', 'flat_')):
            self.kind = 'vmem'
            self.lds = ('lds' in mods) or ('_lds_' in mn)
            if mn in ('buffer_inv', 'buffer_wbl2'):
                pass
            elif 'load' in mn:
                if self.lds:
                    self.rd = set().union(*R) | {('x', 'm0')}
                else:
                    self.wr = R[0]
                    self.rd = set().union(*R[1:])
                    if 'd16' in mn:
                        self.rd |= R[0]
            elif 'store' in mn:
                self.rd = set().union(*R)
                d = R[0] if mn.startswith('buffer_') else R[1]
                if 'x4' in mn or 'x3' in mn:
                    self.sdata = d
            else:
                self.rd = set().union(*R)
                if 'sc0' in mods:
                    self.wr = R[0]
        elif mn.startswith('ds_'):
            self.kind = 'ds'
            if mn.startswith(('ds_read', 'ds_bpermute', 'ds_permute', 'ds_swizzle')) or '_rtn' in mn:
                self.wr = R[0]
                self.rd = set().union(*R[1:])
                if 'd16' in mn:
                    self.rd |= R[0]
            else:
                self.rd = set().union(*R)
        elif mn.startswith('s_'):
            self.kind = 'salu'
            if mn == 's_nop':
                self.states = int(ops[0], 0) + 1
            elif mn.startswith(('s_branch', 's_cbranch')):
                self.target = ops[0]
            elif mn.startswith(('s_cmp', 's_waitcnt', 's_barrier', 's_endpgm', 's_setprio', 's_sleep', 's_bitcmp')):
                self.rd = set().union(*R) if R else set()
            else:
                self.wr = R[0] if R else set()
                self.rd = set().union(*R[1:]) if len(R) > 1 else set()
                if 'saveexec' in mn:
                    self.wr = self.wr | {('x', 'exec')}
        else:
            raise ValueError('unknown instruction: ' + text)


def _isv(rs):
    return {r for r in rs if r[0] in 'va'}


def _iss(rs):
    return {r for r in rs if r[0] == 's' or r == ('x', 'vcc')}


def need(p, c):
    n = 0
    if p.kind == 'valu':
        pv = _isv(p.wr)
        ps = _iss(p.wr)
        if c.kind == 'mfma' and pv & c.rd:
            n = max(n, 2)
        if c.kind == 'mfma' and ('x', 'exec') in p.wr:
            n = max(n, 4)
        if p.mn.split('_e')[0] in TRANS or p.mn in TRANS:
            if c.kind in ('valu', 'mfma', 'vmem', 'ds') and pv & c.rd:
                n = max(n, 1)
        if c.kind == 'valu':
            if c.mn.startswith(('v_readfirstlane', 'v_readlane')) and pv & c.rd:
                n = max(n, 1)
            if c.mn.startswith('v_permlane') and pv & c.rd:
                n = max(n, 2)
            if c.dpp and pv & c.rd:
                n = max(n, 2)
            if c.dpp and ('x', 'exec') in p.wr:
                n = max(n, 5)
            if ps & c.rd:
                n = max(n, 4 if c.mn.startswith(('v_readlane', 'v_writelane')) else 2)
            if ('sdwa' in p.mn or 'op_sel' in p.text) and pv & (c.rd | c.wr):
                n = max(n, 1)
            if p.mn.startswith('v_div_scale') and c.mn.startswith('v_div_fmas'):
                n = max(n, 4)
        if p.mn.startswith('v_dot') and c.kind in ('valu', 'mfma', 'vmem', 'ds') and pv & (c.rd | c.wr):
            same_acc = (c.mn == p.mn and c.wr == p.wr and not (pv & c.ab))
            if not same_acc:
                n = max(n, 3)
        if c.kind == 'vmem' and ps & c.rd:
            n = max(n, 5)
        if c.kind == 'salu' and ps & c.rd:
            n = max(n, 1)
    elif p.kind == 'mfma':
        big = {4: 8, 8: 12, 16: 20}[p.passes]
        ovl = {4: 6, 8: 10, 16: 18}[p.passes]
        war = {4: 3, 8: 7, 16: 15}[p.passes]
        if c.kind == 'mfma':
            if p.wr & (c.a | c.b):
                n = max(n, big)
            if p.wr & c.c:
                if not (p.wr == c.c and p.passes == c.passes):
                    n = max(n, ovl)
            elif p.wr & c.wr:
                n = max(n, ovl)
        elif c.kind in ('valu', 'vmem', 'ds'):
            if p.wr & (c.rd | c.wr):
                n = max(n, big)
            if c.kind == 'valu' and p.c & c.wr:
                n = max(n, war)
            if c.kind in ('vmem', 'ds') and p.c & c.wr:
                n = max(n, war)
    elif p.kind == 'salu':
        if ('x', 'm0') in p.wr and c.kind == 'vmem' and c.lds:
            n = max(n, 1)
    elif p.kind == 'vmem':
        if p.sdata and (p.sdata & c.wr):
            n = max(n, 2)
    return n


class Asm:
    def __init__(self):
        self.ins = []
        self.uid = 0

    def __call__(self, text):
        for line in text.strip('\n').split('\n'):
            line = line.strip()
            if line == '':
                continue
            self.ins.append(Ins(line))

    def label(self, name):
        self.ins.append(Ins(name + ':'))

    def newlabel(self, base='L'):
        self.uid += 1
        return '%s_%d' % (base, self.uid)

    def comment(self, s):
        self.ins.append(Ins('; ' + s))

    def fix_hazards(self, verbose=False):
        MAXD = 20
        inserted = 0
        while True:
            ins = self.ins
            n = len(ins)
            lab = {x.label: i for i, x in enumerate(ins) if x.label}
            preds = [[] for _ in range(n)]
            for i, x in enumerate(ins):
                fall = not (x.mn in ('s_branch', 's_endpgm', 's_setpc_b64'))
                if fall and i + 1 < n:
                    preds[i + 1].append(i)
                if x.target is not None and x.target in lab:
                    preds[lab[x.target]].append(i)
            fixes = []
            for i, c in enumerate(ins):
                if c.kind in ('label', 'dir'):
                    continue
                if c.kind == 'salu' and not c.rd:
                    continue
                worst = 0
                stack = [(j, 0) for j in preds[i]]
                seen = {}
                while stack:
                    j, d = stack.pop()
                    if d >= MAXD:
                        continue
                    if seen.get(j, 99) <= d:
                        continue
                    seen[j] = d
                    p = ins[j]
                    if p.kind not in ('label', 'dir'):
                        nd = need(p, c)
                        if nd > d:
                            worst = max(worst, nd - d)
                    for k in preds[j]:
                        stack.append((k, d + p.states))
                if worst:
                    fixes.append((i, worst))
            if not fixes:
                break
            last = -10 ** 9
            applied = []
            for i, w in fixes:
                if i - last > 2 * MAXD + 8:
                    applied.append((i, w))
                    last = i
            for i, w in reversed(applied):
                if verbose:
                    print('hazard: nop %d before: %s' % (w, ins[i].text))
                k = w
                new = []
                while k > 0:
                    t = min(k, 16)
                    new.append(Ins('s_nop %d' % (t - 1)))
                    k -= t
                self.ins[i:i] = new
                inserted += 1
        return inserted

    def text(self):
        out = []
        for x in self.ins:
            if x.kind == 'label':
                out.append(x.text)
            else:
                out.append('    ' + x.text)
        return '\n'.join(out) + '\n'

    def max_regs(self):
        mv = ma = ms = -1
        for x in self.ins:
            for k, r in (x.rd | x.wr):
                if k == 'v':
                    mv = max(mv, r)
                elif k == 'a':
                    ma = max(ma, r)
                elif k == 's':
                    ms = max(ms, r)
        return mv + 1, ma + 1, ms + 1


def vr(base, n=1):
    return 'v%d' % base if n == 1 else 'v[%d:%d]' % (base, base + n - 1)


def ar(base, n=1):
    return 'a%d' % base if n == 1 else 'a[%d:%d]' % (base, base + n - 1)


def sr(base, n=1):
    return 's%d' % base if n == 1 else 's[%d:%d]' % (base, base + n - 1)


def kernel_text(name, asm, wg_y=False):
    asm.fix_hazards()
    nv, na, ns = asm.max_regs()
    nv = max(nv, 1)
    acc = (nv + 3) // 4 * 4
    nfv = acc + na if na else nv
    t = '.text\n.globl %s\n.p2align 8\n.type %s,@function\n%s:\n' % (name, name, name)
    t += asm.text()
    t += '.section .rodata,"a"\n.p2align 6\n.amdhsa_kernel %s\n' % name
    t += '  .amdhsa_next_free_vgpr %d\n' % nfv
    t += '  .amdhsa_next_free_sgpr %d\n' % max(ns, 16)
    t += '  .amdhsa_accum_offset %d\n' % acc
    t += '  .amdhsa_group_segment_fixed_size 0\n'
    t += '  .amdhsa_kernarg_size 88\n'
    t += '  .amdhsa_user_sgpr_count 2\n'
    t += '  .amdhsa_user_sgpr_kernarg_segment_ptr 1\n'
    t += '  .amdhsa_system_sgpr_workgroup_id_x 1\n'
    if wg_y:
        t += '  .amdhsa_system_sgpr_workgroup_id_y 1\n'
    t += '  .amdhsa_float_denorm_mode_32 3\n'
    t += '.end_amdhsa_kernel\n'
    return t


class Cnt:
    def __init__(self, a, name, maxn):
        self.a = a
        self.name = name
        self.maxn = maxn
        self.q = []

    def add(self, tag, n=1):
        self.q += [tag] * n

    def wait(self, *tags):
        last = -1
        for i, t in enumerate(self.q):
            if t in tags:
                last = i
        if last < 0:
            return
        n = len(self.q) - 1 - last
        n = min(n, self.maxn)
        self.a('s_waitcnt %s(%d)' % (self.name, n))
        self.q = self.q[len(self.q) - n:] if n else []

    def wait_all(self):
        self.a('s_waitcnt %s(0)' % self.name)
        self.q = []


def srd(a, d, lo, hi, nbytes, add=0):
    if add:
        a('s_add_u32 s%d, s%d, 0x%x' % (d, lo, add))
        a('s_addc_u32 s%d, s%d, 0' % (d + 1, hi))
    else:
        a('s_mov_b32 s%d, s%d' % (d, lo))
        a('s_mov_b32 s%d, s%d' % (d + 1, hi))
    a('s_and_b32 s%d, s%d, 0xffff' % (d + 1, d + 1))
    a('s_mov_b32 s%d, 0x%x' % (d + 2, nbytes))
    a('s_mov_b32 s%d, 0x20000' % (d + 3))


def interleave(main, fill, per=1, start=0):
    out = []
    fill = list(fill)
    for i, m in enumerate(main):
        out.append(m)
        if i >= start:
            for _ in range(per):
                if fill:
                    out.append(fill.pop(0))
    out += fill
    return out


class Stamps:
    def __init__(self, a, v, s_idx, st, on=True):
        self.a, self.v, self.si, self.st, self.on = a, v, s_idx, st, on

    def init(self):
        if not self.on:
            return
        self.a('s_mov_b32 s%d, 0' % self.si)
        self.a('v_mov_b32 v%d, 0' % self.v)

    def stamp(self, real=False):
        if not self.on:
            return
        a = self.a
        a('%s s[%d:%d]' % ('s_memrealtime' if real else 's_memtime', self.st, self.st + 1))
        a('s_waitcnt lgkmcnt(0)')
        a('s_mov_b32 m0, s%d' % self.si)
        a('s_nop 0')
        a('v_writelane_b32 v%d, s%d, m0' % (self.v, self.st))
        a('s_add_u32 s%d, s%d, 1' % (self.si, self.si))

    DBG = None

    def dump(self, ws_lo, ws_hi, srd_base, s_slot, vtmp):
        if not self.on:
            return
        a = self.a
        if Stamps.DBG:
            for slot, lanes, pos in Stamps.DBG:
                L = a.newlabel('dbg')
                a('s_cmp_lg_u32 s%d, %d' % (s_slot, slot))
                a('s_cbranch_scc1 %s' % L)
                srd(a, srd_base, 64, 65, 256)
                a('v_readlane_b32 s%d, v%d, 0' % (self.st + 1, self.v))
                for k, ln in enumerate(lanes):
                    a('v_readlane_b32 s%d, v%d, %d' % (self.st, self.v, ln))
                    a('s_sub_u32 s%d, s%d, s%d' % (self.st, self.st, self.st + 1))
                    a('v_mov_b32 v%d, s%d' % (vtmp, self.st))
                    a('v_mov_b32 v%d, %d' % (vtmp + 1, 4 * (pos + k)))
                    a('buffer_store_dword v%d, v%d, s[%d:%d], 0 offen' % (vtmp, vtmp + 1, srd_base, srd_base + 3))
                a.label(L)
        srd(a, srd_base, ws_lo, ws_hi, 1 << 24, 0x8000000)
        a('s_lshl_b32 s%d, s%d, 8' % (self.st, s_slot))
        a('v_lshlrev_b32 v%d, 2, v0' % vtmp)
        a('buffer_store_dword v%d, v%d, s[%d:%d], s%d offen' % (self.v, vtmp, srd_base, srd_base + 3, self.st))
```

```python
from asmlib import *
from layout import *
from tables import *

R0 = 6
R1 = 38
R2 = 102
R3 = 150
R4 = 214
R5 = 247
MF = 'v_mfma_f32_32x32x16_bf16'


def fft_body(a, s_q, S_TAB, S_RT, S_WT, S_ZT, st, ld_flags='', st_flags='', lds=False, mid=None, sp=None):
    vm = Cnt(a, 'vmcnt', 63)
    lg = Cnt(a, 'lgkmcnt', 15) if lds else vm
    T1, T2, T3 = st, st + 1, st + 2
    a('v_lshlrev_b32 v1, 4, v0')
    a('v_and_b32 v2, 31, v0')
    a('v_lshrrev_b32 v3, 5, v0')
    a('v_lshlrev_b32 v4, 7, v2')
    a('v_lshl_add_u32 v4, v3, 4, v4')
    a('v_lshrrev_b32 v5, 1, v2')
    a('v_mul_u32_u24 v5, %d, v5' % ZT_BLK)
    a('v_and_b32 v2, 1, v2')
    a('v_lshl_add_u32 v2, v2, 2, v3')
    a('s_and_b32 s%d, s%d, 1' % (T1, s_q))
    a('s_lshl_b32 s%d, s%d, 1' % (T1, T1))
    a('s_and_b32 s%d, s%d, 4' % (T2, s_q))
    a('s_or_b32 s%d, s%d, s%d' % (T1, T1, T2))
    a('v_xor_b32 v2, s%d, v2' % T1)
    a('v_xor_b32 v3, 2, v2')
    a('v_lshl_add_u32 v2, v2, 4, v5')
    a('v_lshl_add_u32 v3, v3, 4, v5')
    a('s_cmp_eq_u32 s%d, 288' % s_q)
    a('s_cselect_b32 s%d, 0, s%d' % (T1, s_q))
    a('s_lshl_b32 s%d, s%d, 13' % (T1, T1))

    def ldtab(dst, off, tag):
        if lds:
            a('ds_read_b128 %s, v1 offset:%d' % (vr(dst, 4), off))
            lg.add(tag)
            return
        a('s_mov_b32 s%d, %d' % (T3, off & ~0xfff))
        a('buffer_load_dwordx4 %s, v1, s[%d:%d], s%d offen offset:%d' % (vr(dst, 4), S_TAB, S_TAB + 3, T3, off & 0xfff))
        vm.add(tag)

    for t in range(2):
        a('s_add_u32 s%d, s%d, %d' % (T2, T1, 4096 * t))
        for j in range(4):
            a('buffer_load_dwordx4 %s, v4, s[%d:%d], s%d offen offset:%d %s' % (
                vr(R0 + 16 * t + 4 * j, 4), S_RT, S_RT + 3, T2, 32 * j, ld_flags))
            vm.add('in')
    if mid:
        mid(vm)
    for k in range(8):
        ldtab(R2 + 4 * k, FT_F1 + 1024 * k, 'f1')

    def ldtw(base, c):
        for k in range(4):
            ldtab(R4 + 16 * (c & 1) + 4 * k, base + 4096 * c + 1024 * k, 'tw%d' % c)

    ldtw(FT_TW1, 0)
    ldtw(FT_TW1, 1)
    if not lds:
        for k in range(16):
            ldtab(R3 + 4 * k, FT_C64 + 1024 * k, 'c64')
    vm.wait('in')
    Ln = a.newlabel('fft_n')
    Ld = a.newlabel('fft_d')
    a('s_cmp_eq_u32 s%d, 288' % s_q)
    a('s_cbranch_scc1 %s' % Ld)
    a('s_cmp_lg_u32 s%d, 0' % s_q)
    a('s_cbranch_scc1 %s' % Ln)
    for i in range(32):
        a('v_and_b32 v%d, 0xffff, v%d' % (R0 + i, R0 + i))
    a('s_branch %s' % Ln)
    a.label(Ld)
    for i in range(32):
        a('v_lshrrev_b32 v%d, 16, v%d' % (R0 + i, R0 + i))
    a.label(Ln)
    lg.wait('f1')
    Dre = lambda t: R1 + 16 * t
    Dim = lambda t: R1 + 32 + 16 * t
    if sp:
        sp.stamp()
    for t in range(2):
        for j in range(4):
            for part in range(2):
                acc = vr((Dre, Dim)[part](t), 16)
                a('%s %s, %s, %s, %s' % (MF, acc, vr(R0 + 16 * t + 4 * j, 4), vr(R2 + 16 * part + 4 * j, 4),
                                         '0' if j == 0 else acc))
    if lds:
        for k in range(16):
            ldtab(R3 + 4 * k, FT_C64 + 1024 * k, 'c64')
            if k == 7:
                lg.wait('tw1')
    a('s_lshl_b32 s%d, s%d, 13' % (T1, s_q))
    for u in range(2):
        a('s_add_u32 s%d, s%d, %d' % (T2, T1, 4096 * u))
        for g in range(4):
            a('buffer_load_dwordx4 %s, v1, s[%d:%d], s%d offen offset:%d %s' % (
                vr(R0 + 16 * u + 4 * g, 4), S_WT, S_WT + 3, T2, 1024 * g, ld_flags))
            vm.add('w')

    def cmul_pack(t, r2, cr, ci, negwhich):
        jf = 2 * t + (r2 >> 2)
        o = 4 * jf + (r2 & 3)
        for e in range(2):
            r = 2 * r2 + e
            x, y = Dre(t) + r, Dim(t) + r
            a('v_mul_f32 v%d, v%d, v%d' % (R5 + e, x, cr(r)))
            a('v_mul_f32 v%d, v%d, v%d' % (R5 + 2 + e, x, ci(r)))
            a('v_fma_f32 v%d, -v%d, v%d, v%d' % (R5 + e, y, ci(r), R5 + e))
            a('v_fma_f32 v%d, v%d, v%d, v%d' % (R5 + 2 + e, y, cr(r), R5 + 2 + e))
        a('v_cvt_pk_bf16_f32 v%d, v%d, v%d' % (R2 + o, R5, R5 + 1))
        a('v_cvt_pk_bf16_f32 v%d, v%d, v%d' % (R2 + 16 + o, R5 + 2, R5 + 3))
        a('v_xor_b32 v%d, 0x80008000, v%d' % (R2 + 32 + o, R2 + 16 * negwhich + o))

    def twiddle(base, nxt, negwhich):
        for c in range(4):
            t = c >> 1
            lg.wait('tw%d' % c)
            b = R4 + 16 * (c & 1)
            for r2 in range(4 * (c & 1), 4 * (c & 1) + 4):
                cr = lambda r, b=b: b + 8 * ((r >> 2) & 1) + (r & 3)
                ci = lambda r, b=b: b + 8 * ((r >> 2) & 1) + 4 + (r & 3)
                cmul_pack(t, r2, cr, ci, negwhich)
            if c + 2 < 4:
                ldtw(base, c + 2)
            elif nxt is not None:
                ldtw(nxt, c - 2)

    twiddle(FT_TW1, FT_TW2, 0)
    Ore = lambda j: vr(R2 + 4 * j, 4)
    Oim = lambda j: vr(R2 + 16 + 4 * j, 4)
    One = lambda j: vr(R2 + 32 + 4 * j, 4)
    C64 = lambda u, j: vr(R3 + 16 * u + 4 * j, 4)
    S64 = lambda u, j: vr(R3 + 32 + 16 * u + 4 * j, 4)
    lg.wait('c64')
    if sp:
        sp.stamp()
    for u in range(2):
        for j in range(4):
            ar, ai = vr(Dre(u), 16), vr(Dim(u), 16)
            a('%s %s, %s, %s, %s' % (MF, ar, C64(u, j), Ore(j), '0' if j == 0 else ar))
            a('%s %s, %s, %s, %s' % (MF, ai, C64(u, j), Oim(j), '0' if j == 0 else ai))
            a('%s %s, %s, %s, %s' % (MF, ar, S64(u, j), Oim(j), ar))
            a('%s %s, %s, %s, %s' % (MF, ai, S64(u, j), One(j), ai))
    vm.wait('w')
    for u in range(2):
        for r2 in range(8):
            for e in range(2):
                w = R0 + 16 * u + 2 * r2 + e
                a('v_lshlrev_b32 v%d, 16, v%d' % (R5 + 4 + e, w))
                a('v_and_b32 v%d, 0xffff0000, v%d' % (R5 + 6 + e, w))
            cmul_pack(u, r2, lambda r: R5 + 4 + (r & 1), lambda r: R5 + 6 + (r & 1), 1)
    for k in range(4):
        ldtab(R0 + 4 * k, FT_C32 + 1024 * k, 'c32')
    if sp:
        sp.stamp()
    for v in range(2):
        for j in range(4):
            ar, ai = vr(Dre(v), 16), vr(Dim(v), 16)
            a('%s %s, %s, %s, %s' % (MF, ar, Ore(j), C64(v, j), '0' if j == 0 else ar))
            a('%s %s, %s, %s, %s' % (MF, ai, Oim(j), C64(v, j), '0' if j == 0 else ai))
            a('%s %s, %s, %s, %s' % (MF, ar, One(j), S64(v, j), ar))
            a('%s %s, %s, %s, %s' % (MF, ai, Ore(j), S64(v, j), ai))
    twiddle(FT_TW2, None, 1)
    lg.wait('c32')
    C32 = lambda j: vr(R0 + 4 * j, 4)
    S32 = lambda j: vr(R0 + 8 + 4 * j, 4)
    if sp:
        sp.stamp()
    for v in range(2):
        for j in range(2):
            ar, ai = vr(Dre(v), 16), vr(Dim(v), 16)
            a('%s %s, %s, %s, %s' % (MF, ar, C32(j), Ore(2 * v + j), '0' if j == 0 else ar))
            a('%s %s, %s, %s, %s' % (MF, ai, C32(j), Oim(2 * v + j), '0' if j == 0 else ai))
            a('%s %s, %s, %s, %s' % (MF, ar, S32(j), One(2 * v + j), ar))
            a('%s %s, %s, %s, %s' % (MF, ai, S32(j), Ore(2 * v + j), ai))
    if sp:
        sp.stamp()
    a('s_lshl_b32 s%d, s%d, 8' % (T1, s_q))
    n = 0
    for v in range(2):
        for c in range(2):
            src = (Dre, Dim)[c](v)
            for gp in range(2):
                o = R3 + 4 * n
                n += 1
                for d in range(4):
                    a('v_cvt_pk_bf16_f32 v%d, v%d, v%d' % (o + d, src + 8 * gp + 2 * d, src + 8 * gp + 2 * d + 1))
                a('v_permlane32_swap_b32 v%d, v%d' % (o, o + 2))
                a('v_permlane32_swap_b32 v%d, v%d' % (o + 1, o + 3))
                a('s_add_u32 s%d, s%d, %d' % (T2, T1, 16 * ZT_BLK * v))
                a('buffer_store_dwordx4 %s, v%d, s[%d:%d], s%d offen offset:%d %s' % (
                    vr(o, 4), 2 + gp, S_ZT, S_ZT + 3, T2, 128 * c, st_flags))
```

```python
import struct
from asmlib import *
from layout import *
MODE = ''

NH = 18
NC = 9
NST = NH + NC
SLOT = 40960
NSLOT = 4
G2_LDS = 163840
SPIN_MAX = 20000
MF = 'v_mfma_f32_16x16x32_bf16'

S_H, S_W2, S_ZT, S_TI, S_PT, S_XI, S_OUT, S_B2, S_FX = 8, 12, 16, 20, 24, 28, 32, 80, 88
S_WAVE, S_MT, S_NT, S_KS, S_WM, S_WN = 36, 39, 40, 41, 37, 38
S_T1, S_T2, S_T3, S_T4, S_I, S_SLOT, S_OA, S_OB = 52, 53, 54, 56, 43, 44, 45, 46
S_LA, S_LB, S_NONCE, S_SPIN, S_GRP, S_LC = 47, 48, 57, 59, 49, 50
S_DBG = 84


def f32h(x):
    return '0x%08x' % struct.unpack('<I', struct.pack('<f', x))[0]


def decode_ids(a, s_mt, s_ks, s_u, t1, t2):
    a('s_and_b32 s%d, s2, 7' % t1)
    a('s_lshr_b32 s%d, s2, 3' % t2)
    a('s_lshr_b32 s%d, s%d, 1' % (s_ks, t1))
    a('s_and_b32 s%d, s%d, 1' % (t1, t1))
    a('s_lshl_b32 s%d, s%d, 3' % (t1, t1))
    a('s_lshr_b32 s%d, s%d, 2' % (s_mt, t2))
    a('s_add_u32 s%d, s%d, s%d' % (s_mt, s_mt, t1))
    a('s_and_b32 s%d, s%d, 3' % (s_u, t2))


def g2_setup(a):
    a('s_memrealtime s[76:77]')
    a('s_load_dwordx2 s[4:5], s[0:1], %d' % KA_X)
    a('s_load_dwordx4 s[60:63], s[0:1], %d' % KA_W2)
    a('s_load_dwordx4 s[64:67], s[0:1], %d' % KA_DBG)
    a('s_load_dwordx2 s[6:7], s[0:1], %d' % KA_OUT)
    a('v_lshrrev_b32 v1, 6, v0')
    a('v_and_b32 v0, 63, v0')
    decode_ids(a, S_MT, S_KS, S_NT, S_T1, S_T2)
    a('v_readfirstlane_b32 s%d, v1' % S_WAVE)
    a('s_waitcnt lgkmcnt(0)')
    srd(a, S_DBG, 64, 65, 256)
    Ln = a.newlabel('g2_nn')
    a('s_or_b32 s%d, s2, s%d' % (S_T1, S_WAVE))
    a('s_cmp_lg_u32 s%d, 0' % S_T1)
    a('s_cbranch_scc1 %s' % Ln)
    a('s_or_b32 s%d, s76, 1' % S_T1)
    a('v_mov_b32 v2, s%d' % S_T1)
    a('v_mov_b32 v3, 0')
    a('buffer_store_dword v2, v3, s[%d:%d], 0 offen sc1' % (S_DBG, S_DBG + 3))
    a.label(Ln)
    a('s_cmp_lt_u32 s%d, 1' % S_NT)
    a('s_cbranch_scc1 g2_exit')
    a('s_sub_u32 s%d, s%d, 1' % (S_NT, S_NT))
    a('s_mov_b32 s%d, 0' % S_NONCE)


def get_nonce(a):
    Lw = a.newlabel('g2_nw')
    Lg = a.newlabel('g2_ng')
    a('s_cmp_lg_u32 s%d, 0' % S_NONCE)
    a('s_cbranch_scc1 %s' % Lg)
    a('s_mov_b32 s%d, 0' % S_SPIN)
    a('v_mov_b32 v17, 0')
    a.label(Lw)
    a('buffer_load_dword v16, v17, s[%d:%d], 0 offen sc1' % (S_DBG, S_DBG + 3))
    a('s_waitcnt vmcnt(0)')
    a('v_readfirstlane_b32 s%d, v16' % S_NONCE)
    a('s_add_u32 s%d, s%d, 1' % (S_SPIN, S_SPIN))
    a('s_cmp_lg_u32 s%d, 0' % S_NONCE)
    a('s_cbranch_scc1 %s' % Lg)
    a('s_sleep 4')
    a('s_cmp_lt_u32 s%d, %d' % (S_SPIN, SPIN_MAX))
    a('s_cbranch_scc1 %s' % Lw)
    a.label(Lg)


def g2_body(a, instr=False, hooks=None):
    hooks = hooks or {}
    sp = Stamps(a, 255, 70, 72, instr)
    a('s_getpc_b64 s[68:69]')
    a('s_add_u32 s68, s68, tab_Tinv@rel32@lo+4')
    a('s_addc_u32 s69, s69, tab_Tinv@rel32@hi+12')
    srd(a, S_H, 66, 67, S * F * 2, WS_H)
    srd(a, S_W2, 60, 61, F * D * 2)
    srd(a, S_ZT, 66, 67, 32 * ZT_BLK, WS_ZT)
    srd(a, S_TI, 68, 69, D * D * 2)
    srd(a, S_PT, 66, 67, 48 * 16 * 24576, WS_PART)
    srd(a, S_XI, 4, 5, S * D * 2)
    srd(a, S_OUT, 6, 7, S * D * 2)
    srd(a, S_B2, 62, 63, D * 2)
    srd(a, S_FX, 66, 67, 256 * 64, WS_FLAGX)
    a('s_mul_i32 s%d, s%d, 3' % (S_GRP, S_MT))
    a('s_add_u32 s%d, s%d, s%d' % (S_GRP, S_GRP, S_NT))
    Lcomp = a.newlabel('g2_comp')
    a('s_cmp_lt_u32 s%d, 4' % S_WAVE)
    a('s_cbranch_scc1 %s' % Lcomp)

    a('s_sub_u32 s%d, s%d, 4' % (S_T4, S_WAVE))
    a('s_mul_i32 s%d, s%d, 72' % (S_T2, S_MT))
    a('s_mul_i32 s%d, s%d, %d' % (S_T3, S_KS, NH))
    a('s_add_u32 s%d, s%d, s%d' % (S_T2, S_T2, S_T3))
    a('s_lshl_b32 s%d, s%d, 14' % (S_T2, S_T2))
    a('s_lshl_b32 s%d, s%d, 12' % (S_T1, S_T4))
    a('s_add_u32 s%d, s%d, s%d' % (S_T2, S_T2, S_T1))
    a('v_lshl_add_u32 v2, v0, 4, s%d' % S_T2)
    for s_ in range(1536):
        assert (s_ * 2731) >> 16 == s_ // 24
    a('s_mul_i32 s%d, s%d, 384' % (S_T1, S_T4))
    a('s_mul_i32 s%d, s%d, 384' % (S_T2, S_NT))
    for i in range(6):
        a('v_add_u32 v12, s%d, v0' % S_T1)
        a('v_add_u32 v12, %d, v12' % (64 * i))
        a('v_mul_u32_u24 v13, 2731, v12')
        a('v_lshrrev_b32 v13, 16, v13')
        a('v_mul_u32_u24 v14, 24, v13')
        a('v_sub_u32 v14, v12, v14')
        a('v_and_b32 v15, 2, v13')
        a('v_xor_b32 v14, v14, v15')
        a('v_lshrrev_b32 v15, 1, v13')
        a('v_and_b32 v15, 4, v15')
        a('v_xor_b32 v14, v14, v15')
        a('v_mul_u32_u24 v13, %d, v13' % (D * 2))
        a('v_lshl_add_u32 v13, v14, 4, v13')
        a('v_add_u32 v%d, s%d, v13' % (20 + i, S_T2))
    a('s_lshl_b32 s%d, s%d, 1' % (S_T2, S_MT))
    a('s_and_b32 s%d, s%d, 1' % (S_T3, S_KS))
    a('s_add_u32 s%d, s%d, s%d' % (S_T2, S_T2, S_T3))
    a('s_mul_i32 s%d, s%d, %d' % (S_T2, S_T2, ZT_BLK))
    a('s_lshl_b32 s%d, s%d, 11' % (S_I, S_T4))
    a('s_add_u32 s%d, s%d, s%d' % (S_T2, S_T2, S_I))
    a('v_lshl_add_u32 v26, v0, 4, s%d' % S_T2)
    a('s_lshl_b32 s%d, s%d, 1' % (S_T2, S_NT))
    a('s_lshr_b32 s%d, s%d, 1' % (S_T3, S_KS))
    a('s_add_u32 s%d, s%d, s%d' % (S_T2, S_T2, S_T3))
    a('s_mul_i32 s%d, s%d, %d' % (S_T2, S_T2, 576 * 192))
    a('s_mul_i32 s%d, s%d, 3072' % (S_LC, S_T4))
    a('s_add_u32 s%d, s%d, s%d' % (S_T2, S_T2, S_LC))
    a('v_lshl_add_u32 v27, v0, 4, s%d' % S_T2)
    a('s_add_u32 s%d, s%d, 16384' % (S_LC, S_LC))
    a('s_lshl_b32 s%d, s%d, 12' % (S_LA, S_T4))
    a('s_mul_i32 s%d, s%d, 6144' % (S_LB, S_T4))
    a('s_add_u32 s%d, s%d, 16384' % (S_LB, S_LB))
    a('s_mul_i32 s%d, s%d, %d' % (S_OB, S_KS, NH * 64 * D * 2))
    vm = Cnt(a, 'vmcnt', 63)

    def issue(st):
        base = (st % NSLOT) * SLOT
        if st < NH:
            a('s_mov_b32 s%d, %d' % (S_T1, 16384 * st))
            a('s_add_u32 s%d, s%d, %d' % (S_T2, S_OB, 64 * D * 2 * st))
            for i in range(6):
                a('s_add_u32 m0, s%d, %d' % (S_LB, base + 1024 * i))
                a('buffer_load_dwordx4 v%d, s[%d:%d], s%d offen lds' % (20 + i, S_W2, S_W2 + 3, S_T2))
                vm.add(st)
            a('s_add_u32 m0, s%d, %d' % (S_LA, base))
            for i in range(4):
                a('buffer_load_dwordx4 v2, s[%d:%d], s%d offen offset:%d lds' % (S_H, S_H + 3, S_T1, 1024 * i))
                vm.add(st)
        else:
            c = st - NH
            a('s_mov_b32 s%d, %d' % (S_T1, 8192 * c))
            a('s_mov_b32 s%d, %d' % (S_T2, 12288 * c))
            a('s_add_u32 m0, s%d, %d' % (S_LC, base))
            for i in range(3):
                a('buffer_load_dwordx4 v27, s[%d:%d], s%d offen offset:%d lds' % (S_TI, S_TI + 3, S_T2, 1024 * i))
                vm.add(st)
            a('s_add_u32 m0, s%d, %d' % (S_I, base))
            for i in range(2):
                a('buffer_load_dwordx4 v26, s[%d:%d], s%d offen offset:%d lds' % (S_ZT, S_ZT + 3, S_T1, 1024 * i))
                vm.add(st)

    mega = 'mega' in hooks
    S_RDY = S_SLOT
    S_PG, S_FZ = 96, 92

    def poll_issue(v, z, fl='sc1'):
        if z:
            a('buffer_load_dword v%d, v31, s[%d:%d], 0 offen %s' % (v, S_FZ, S_FZ + 3, fl))
        else:
            a('buffer_load_dword v%d, v30, s[%d:%d], s%d offen %s' % (v, S_PG, S_PG + 3, S_OA, fl))

    def poll_eval(v):
        a('v_subrev_u32 v%d, s%d, v%d' % (v, S_NONCE, v))
        a('v_cmp_gt_u32 vcc, 16, v%d' % v)
        a('v_cndmask_b32 v%d, 0, v%d, vcc' % (v, v))
        a('v_lshl_add_u32 v%d, v%d, 2, v29' % (v, v))
        a('v_min_u32_dpp v%d, v%d, v%d quad_perm:[1,0,3,2] row_mask:0xf bank_mask:0xf' % (v, v, v))
        a('v_min_u32_dpp v%d, v%d, v%d quad_perm:[2,3,0,1] row_mask:0xf bank_mask:0xf' % (v, v, v))
        a('v_readfirstlane_b32 s%d, v%d' % (S_T1, v))
        a('s_max_u32 s%d, s%d, s%d' % (S_RDY, S_RDY, S_T1))

    def need_h(st):
        Lok = a.newlabel('g2_hok')
        Lre = a.newlabel('g2_hre')
        a('s_add_u32 s%d, s%d, %d' % (S_T3, S_T4, st))
        a('s_cmp_lt_u32 s%d, s%d' % (S_T3, S_RDY))
        a('s_cbranch_scc1 %s' % Lok)
        a('s_mov_b32 s%d, 0' % S_SPIN)
        a.label(Lre)
        poll_issue(36, False)
        a('s_waitcnt vmcnt(0)')
        poll_eval(36)
        a('s_add_u32 s%d, s%d, 1' % (S_SPIN, S_SPIN))
        a('s_cmp_lt_u32 s%d, s%d' % (S_T3, S_RDY))
        a('s_cbranch_scc1 %s' % Lok)
        a('s_sleep 2')
        a('s_cmp_lt_u32 s%d, %d' % (S_SPIN, SPIN_MAX))
        a('s_cbranch_scc1 %s' % Lre)
        a.label(Lok)

    def need_z(v):
        Lok = a.newlabel('g2_zok')
        Lre = a.newlabel('g2_zre')
        a('s_mov_b32 s%d, 0' % S_SPIN)
        a.label(Lre)
        a('v_cmp_ne_u32 vcc, s%d, v%d' % (S_NONCE, v))
        a('s_add_u32 s%d, s%d, 1' % (S_SPIN, S_SPIN))
        a('s_nop 3')
        a('s_cbranch_vccz %s' % Lok)
        a('s_sleep 8')
        poll_issue(v, True)
        a('s_waitcnt vmcnt(0)')
        a('s_cmp_lt_u32 s%d, %d' % (S_SPIN, SPIN_MAX))
        a('s_cbranch_scc1 %s' % Lre)
        a.label(Lok)

    if mega:
        srd(a, S_FZ, 66, 67, 256, WS_FLAGZ)
        a('v_and_b32 v29, 3, v0')
        a('v_lshlrev_b32 v30, 2, v29')
        a('v_lshlrev_b32 v31, 2, v0')
        a('s_lshl_b32 s%d, s%d, 2' % (S_OA, S_MT))
        a('s_add_u32 s%d, s%d, s%d' % (S_OA, S_OA, S_KS))
        a('s_lshl_b32 s%d, s%d, 6' % (S_OA, S_OA))
        a('s_cmp_eq_u32 s%d, 0' % S_KS)
        a('s_cselect_b32 s%d, 3, 2' % S_T4)
        a('s_mov_b32 s%d, 0' % S_RDY)
        poll_issue(32, False, '')
        a('s_barrier')
        a('s_waitcnt vmcnt(0)')
        poll_eval(32)

    POLLS = (5, 12)

    def issue2(st):
        if mega:
            if st < NH:
                need_h(st)
            elif st == NH:
                need_z(37)
        issue(st)
        if mega and st in POLLS:
            poll_issue(32, False)
            vm.add(st)
        if mega and st == NH - 3:
            poll_issue(37, True, '')
            vm.add(st)

    for st in range(NSLOT - 1):
        issue2(st)
    for i in range(NST):
        vm.wait(i)
        a('s_barrier')
        sp.stamp()
        if mega and i in POLLS:
            poll_eval(32)
        if i - 1 + NSLOT < NST:
            issue2(i - 1 + NSLOT)
    a('s_barrier')
    if instr:
        a('s_lshl_b32 s71, s2, 3')
        a('s_add_u32 s71, s71, s%d' % S_WAVE)
        sp.dump(66, 67, S_H, 71, 1)
    a('s_endpgm')

    a.label(Lcomp)
    if instr and 'nostampinit' not in hooks:
        sp.init()
        a('v_writelane_b32 v255, s76, 62')
    sp.stamp()
    a('s_and_b32 s%d, s%d, 1' % (S_WM, S_WAVE))
    a('s_lshr_b32 s%d, s%d, 1' % (S_WN, S_WAVE))
    VI, VQ = 30, 31
    a('v_and_b32 v%d, 15, v0' % VI)
    a('v_lshrrev_b32 v%d, 4, v0' % VQ)
    a('v_lshrrev_b32 v12, 1, v%d' % VI)
    a('v_xor_b32 v12, v12, v%d' % VQ)
    a('s_lshl_b32 s%d, s%d, 13' % (S_T1, S_WM))
    a('v_lshlrev_b32 v13, 7, v%d' % VI)
    a('v_add_u32 v13, s%d, v13' % S_T1)
    a('v_lshl_add_u32 v2, v12, 4, v13')
    a('v_xor_b32 v12, 4, v12')
    a('v_lshl_add_u32 v3, v12, 4, v13')
    a('v_bfe_u32 v12, v0, 2, 2')
    a('v_and_b32 v13, 3, v0')
    a('v_lshl_add_u32 v14, v%d, 3, v12' % VQ)
    a('v_lshrrev_b32 v16, 1, v13')
    a('v_and_b32 v29, 1, v13')
    a('v_and_b32 v17, 1, v%d' % VQ)
    a('v_lshlrev_b32 v17, 1, v17')
    a('v_mul_u32_u24 v15, 192, v14')
    a('v_lshl_add_u32 v15, v29, 3, v15')
    a('v_add_u32 v15, 16384, v15')
    a('s_mul_i32 s%d, s%d, 6' % (S_T1, S_WN))
    for n3 in range(3):
        a('v_add3_u32 v1, v16, s%d, %d' % (S_T1, 2 * n3))
        a('v_xor_b32 v1, v1, v17')
        a('v_lshl_add_u32 v%d, v1, 4, v15' % (18 + n3))
    a('v_lshrrev_b32 v1, 1, v12')
    a('v_add_u32 v17, v17, v1')
    a('v_lshlrev_b32 v17, 1, v17')
    a('v_mul_u32_u24 v15, 384, v14')
    a('v_lshl_add_u32 v15, v29, 3, v15')
    a('v_add_u32 v15, 16384, v15')
    a('s_mul_i32 s%d, s%d, 12' % (S_T1, S_WN))
    for n6 in range(6):
        a('v_add3_u32 v1, v16, s%d, %d' % (S_T1, 2 * n6))
        a('v_xor_b32 v1, v1, v17')
        a('v_lshl_add_u32 v%d, v1, 4, v15' % (4 + n6))
    a('v_lshlrev_b32 v15, 7, v14')
    a('v_lshl_add_u32 v15, v29, 3, v15')
    a('s_lshl_b32 s%d, s%d, 2' % (S_T1, S_WM))
    for rt2 in range(2):
        a('v_add3_u32 v1, v16, s%d, %d' % (S_T1, 2 * rt2))
        a('v_xor_b32 v1, v1, v17')
        a('v_lshl_add_u32 v%d, v1, 4, v15' % (10 + rt2))
    XA, WA = 21, 23
    FB = [32, 72]
    ACC = 112
    SAC = 208

    def set_addr(cstage):
        o = []
        for j in range(2):
            o.append('v_add_u32 v%d, s%d, v%d' % (XA + j, S_SLOT, (10 if cstage else 2) + j))
        for n in range(3 if cstage else 6):
            o.append('v_add_u32 v%d, s%d, v%d' % (WA + n, S_SLOT, (18 if cstage else 4) + n))
        o.append('s_add_u32 s%d, s%d, %d\ns_cmp_ge_u32 s%d, %d\ns_cselect_b32 s%d, 0, s%d' % (
            S_SLOT, S_SLOT, SLOT, S_SLOT, NSLOT * SLOT, S_SLOT, S_SLOT))
        return o

    def reads(j, cstage):
        fb = FB[j]
        out = []
        for n in range(3 if cstage else 6):
            for e2 in range(2):
                out.append('ds_read_b64_tr_b16 %s, v%d offset:%d' % (
                    vr(fb + 16 + 4 * n + 2 * e2, 2), WA + n, (32 * j + 4 * e2) * (192 if cstage else 384)))
        xs = []
        if cstage:
            for rt2 in range(2):
                for e2 in range(2):
                    xs.append('ds_read_b64_tr_b16 %s, v%d offset:%d' % (
                        vr(fb + 4 * rt2 + 2 * e2, 2), XA + rt2, (32 * j + 4 * e2) * 128))
            return xs + out
        for rt4 in range(4):
            xs.append('ds_read_b128 %s, v%d offset:%d' % (vr(fb + 4 * rt4, 4), XA + j, 2048 * rt4))
        return [xs[0]] + out + xs[1:]

    def mfmas(j, cstage, zero):
        fb = FB[j]
        out = []
        for rt in range(2 if cstage else 4):
            for n in range(3 if cstage else 6):
                acc = vr(SAC + 12 * rt + 4 * n if cstage else ACC + 24 * rt + 4 * n, 4)
                out.append('%s %s, %s, %s, %s' % (MF, acc, vr(fb + 16 + 4 * n, 4), vr(fb + 4 * rt, 4),
                                                   '0' if zero else acc))
        return out

    def stage(cstage, zero, next_c, last=False, pre=None):
        a('s_waitcnt lgkmcnt(0)')
        for t in interleave(mfmas(0, cstage, zero), reads(1, cstage), 2 if cstage else 1):
            a(t)
        a('s_waitcnt lgkmcnt(0)')
        mf = mfmas(1, cstage, False)
        if last:
            for t in mf:
                a(t)
            return
        sa = set_addr(next_c)
        a(mf[0])
        for t in sa[:4]:
            a(t)
        a(mf[1])
        for t in sa[4:]:
            a(t)
        if pre:
            pre()
        a('s_barrier')
        for t in interleave(mf[2:], reads(0, next_c), 3 if cstage else 1):
            a(t)

    a('s_mov_b32 s%d, 0' % S_SLOT)
    for t in set_addr(False):
        a(t)
    if 'c_start' in hooks:
        hooks['c_start'](a)
    a('s_barrier')
    if 'c_start2' in hooks:
        hooks['c_start2'](a)
    sp.stamp()
    for t in reads(0, False):
        a(t)
    pre_h = hooks.get('pre_h')
    a('s_mov_b32 s%d, 0' % S_I)
    stage(False, True, False, pre=(lambda: pre_h(a)) if pre_h else None)
    a('s_mov_b32 s%d, 1' % S_I)
    Lh = a.newlabel('g2_hl')
    a.label(Lh)
    stage(False, False, False, pre=(lambda: pre_h(a)) if pre_h else None)
    a('s_add_u32 s%d, s%d, 1' % (S_I, S_I))
    a('s_cmp_lt_u32 s%d, %d' % (S_I, NH - 1))
    a('s_cbranch_scc1 %s' % Lh)
    stage(False, False, True)
    sp.stamp()
    XCH = lambda w: (2 + (w >> 1)) * SLOT + 28672 + 6144 * (w & 1)
    Lown = a.newlabel('g2_own')
    Lj = a.newlabel('g2_j')
    a('v_lshlrev_b32 v29, 4, v0')
    a('s_cmp_eq_u32 s%d, s%d' % (S_WAVE, S_KS))
    a('s_cbranch_scc1 %s' % Lown)
    a('s_lshl_b32 s%d, s%d, 2' % (S_T1, S_GRP))
    a('s_add_u32 s%d, s%d, s%d' % (S_T1, S_T1, S_WAVE))
    a('s_lshl_b32 s%d, s%d, 2' % (S_T1, S_T1))
    a('s_add_u32 s%d, s%d, s%d' % (S_T1, S_T1, S_KS))
    a('s_mul_i32 s%d, s%d, 24576' % (S_T1, S_T1))
    for k4 in range(6):
        a('s_add_u32 s%d, s%d, %d' % (S_T2, S_T1, 4096 * k4))
        for k in range(4):
            a('buffer_store_dwordx4 %s, v29, s[%d:%d], s%d offen offset:%d sc1' % (
                vr(ACC + 16 * k4 + 4 * k, 4), S_PT, S_PT + 3, S_T2, 1024 * k))
    a('s_branch %s' % Lj)
    a.label(Lown)
    a('v_add_u32 v1, %d, v29' % XCH(0))
    for w in range(4):
        for rt2 in range(2):
            for n3 in range(3):
                a('ds_write_b128 v1, %s offset:%d' % (
                    vr(ACC + 24 * (2 * (w & 1) + rt2) + 4 * (3 * (w >> 1) + n3), 4),
                    XCH(w) - XCH(0) + 1024 * (3 * rt2 + n3)))
    a.label(Lj)
    stage(True, True, True)
    stage(True, False, True)
    stage(True, False, True)
    a('s_waitcnt vmcnt(0)')
    get_nonce(a)
    stage(True, False, True)
    Lnf = a.newlabel('g2_nf')
    a('s_cmp_lg_u32 s%d, 0' % S_WAVE)
    a('s_cbranch_scc1 %s' % Lnf)
    a('s_lshl_b32 s%d, s%d, 6' % (S_T1, S_GRP))
    a('s_lshl_b32 s%d, s%d, 2' % (S_T2, S_KS))
    a('s_add_u32 s%d, s%d, s%d' % (S_T1, S_T1, S_T2))
    a('v_mov_b32 v16, s%d' % S_NONCE)
    a('v_mov_b32 v17, 0')
    a('buffer_store_dword v16, v17, s[%d:%d], s%d offen sc1' % (S_FX, S_FX + 3, S_T1))
    a.label(Lnf)
    a('s_lshr_b32 s%d, s%d, 1' % (S_T1, S_WAVE))
    a('s_mul_i32 s%d, s%d, %d' % (S_T1, S_T1, SLOT))
    a('s_mul_i32 s%d, s%d, 6144' % (S_T2, S_WM))
    a('s_add_u32 s%d, s%d, s%d' % (S_T1, S_T1, S_T2))
    a('s_add_u32 s%d, s%d, %d' % (S_T1, S_T1, 2 * SLOT + 28672))
    a('v_add_u32 v1, s%d, v29' % S_T1)
    a('s_waitcnt lgkmcnt(0)')
    for k in range(6):
        a('ds_read_b128 %s, v1 offset:%d' % (vr(ACC + 4 * k, 4), 1024 * k))
    XV, BV, Z0 = 232, 244, 250
    PV = ACC + 24
    a('s_lshl_b32 s%d, s%d, 2' % (S_T1, S_MT))
    a('s_and_b32 s%d, s%d, 1' % (S_T2, S_KS))
    a('s_lshl_b32 s%d, s%d, 1' % (S_T2, S_T2))
    a('s_add_u32 s%d, s%d, s%d' % (S_T1, S_T1, S_T2))
    a('s_add_u32 s%d, s%d, s%d' % (S_T1, S_T1, S_WM))
    a('s_lshl_b32 s%d, s%d, 1' % (S_T2, S_NT))
    a('s_lshr_b32 s%d, s%d, 1' % (S_T3, S_KS))
    a('s_add_u32 s%d, s%d, s%d' % (S_T2, S_T2, S_T3))
    a('s_mul_i32 s%d, s%d, 192' % (S_T2, S_T2))
    a('s_mul_i32 s%d, s%d, 96' % (S_T3, S_WN))
    a('s_add_u32 s%d, s%d, s%d' % (S_T2, S_T2, S_T3))
    a('v_lshlrev_b32 v16, 7, v%d' % VI)
    a('v_add_u32 v16, s%d, v16' % S_T1)
    a('v_mul_u32_u24 v16, %d, v16' % (D * 2))
    a('v_lshl_add_u32 v17, v%d, 3, s%d' % (VQ, S_T2))
    a('v_add_u32 v16, v16, v17')
    a('s_mov_b32 s%d, %d' % (S_OA, 64 * D * 2))
    for rt2 in range(2):
        for n3 in range(3):
            a('buffer_load_dwordx2 %s, v16, s[%d:%d], %s offen offset:%d' % (
                vr(XV + 6 * rt2 + 2 * n3, 2), S_XI, S_XI + 3, 's%d' % S_OA if rt2 else '0', 32 * n3))
    for n3 in range(3):
        a('buffer_load_dwordx2 %s, v17, s[%d:%d], 0 offen offset:%d' % (vr(BV + 2 * n3, 2), S_B2, S_B2 + 3, 32 * n3))
    a('s_lshr_b32 s%d, s%d, 1' % (S_T1, S_T1))
    a('s_mul_i32 s%d, s%d, %d' % (S_T1, S_T1, ZT_BLK))
    a('s_lshl_b32 s%d, s%d, 6' % (S_T2, S_WM))
    a('s_add_u32 s%d, s%d, s%d' % (S_T1, S_T1, S_T2))
    a('s_add_u32 s%d, s%d, %d' % (S_T1, S_T1, 576 * 128))
    a('v_lshlrev_b32 v15, 1, v%d' % VI)
    for rt2 in range(2):
        a('buffer_load_ushort v%d, v15, s[%d:%d], s%d offen offset:%d' % (Z0 + rt2, S_ZT, S_ZT + 3, S_T1, 32 * rt2))
    for c in range(4, NC):
        stage(True, False, True, last=(c == NC - 1))
    sp.stamp()
    Lok = a.newlabel('g2_fok')
    Lre = a.newlabel('g2_fre')
    a('s_cmp_lg_u32 s%d, 0' % S_WAVE)
    a('s_cbranch_scc1 %s' % Lok)
    a('s_lshl_b32 s%d, s%d, 6' % (S_T1, S_GRP))
    a('s_mov_b32 s%d, 0' % S_SPIN)
    a('v_and_b32 v14, 3, v0')
    a('v_lshlrev_b32 v14, 2, v14')
    a.label(Lre)
    a('buffer_load_dword v13, v14, s[%d:%d], s%d offen sc1' % (S_FX, S_FX + 3, S_T1))
    a('s_waitcnt vmcnt(0)')
    a('v_cmp_ne_u32 vcc, s%d, v13' % S_NONCE)
    a('s_add_u32 s%d, s%d, 1' % (S_SPIN, S_SPIN))
    a('s_nop 3')
    a('s_cbranch_vccz %s' % Lok)
    a('s_sleep 2')
    a('s_cmp_lt_u32 s%d, %d' % (S_SPIN, SPIN_MAX))
    a('s_cbranch_scc1 %s' % Lre)
    a.label(Lok)
    a('s_barrier')
    sp.stamp()
    a('s_lshl_b32 s%d, s%d, 2' % (S_T1, S_GRP))
    a('s_add_u32 s%d, s%d, s%d' % (S_T1, S_T1, S_KS))
    a('s_mul_i32 s%d, s%d, %d' % (S_T1, S_T1, 4 * 24576))
    a('s_mul_i32 s%d, s%d, 3072' % (S_T2, S_WN))
    a('s_add_u32 s%d, s%d, s%d' % (S_T1, S_T1, S_T2))
    a('s_mul_i32 s%d, s%d, 12288' % (S_T2, S_WM))
    a('s_add_u32 s%d, s%d, s%d' % (S_T1, S_T1, S_T2))
    SZ = [S_LA, S_LB, S_LC]
    for z in range(3):
        a('s_add_u32 s%d, s%d, %d' % (S_T2, S_KS, z + 1))
        a('s_and_b32 s%d, s%d, 3' % (S_T2, S_T2))
        a('s_mul_i32 s%d, s%d, 24576' % (S_T2, S_T2))
        a('s_add_u32 s%d, s%d, s%d' % (SZ[z], S_T1, S_T2))
    a('v_add_u32 v28, 6144, v29')
    for rt2 in range(2):
        for n3 in range(3):
            for z in range(3):
                a('buffer_load_dwordx4 %s, v%d, s[%d:%d], s%d offen offset:%d sc1' % (
                    vr(PV + 24 * z + 12 * rt2 + 4 * n3, 4), 28 if rt2 else 29, S_PT, S_PT + 3, SZ[z], 1024 * n3))
    a('s_waitcnt vmcnt(18) lgkmcnt(0)')
    T = 32
    for rt2 in range(2):
        a('v_lshlrev_b32 v%d, 16, v%d' % (Z0 + rt2, Z0 + rt2))
    for rt2 in range(2):
        for k in range(12):
            s_ = SAC + 12 * rt2 + k
            a('v_add_f32 v%d, v%d, v%d' % (s_, s_, Z0 + rt2))
    for k in range(0, 24, 2):
        a('v_cvt_pk_bf16_f32 v%d, v%d, v%d' % (T, SAC + k, SAC + k + 1))
        a('v_lshlrev_b32 v%d, 16, v%d' % (SAC + k, T))
        a('v_and_b32 v%d, 0xffff0000, v%d' % (SAC + k + 1, T))
    BF = 36
    for n3 in range(3):
        for d in range(2):
            a('v_lshlrev_b32 v%d, 16, v%d' % (BF + 4 * n3 + 2 * d, BV + 2 * n3 + d))
            a('v_and_b32 v%d, 0xffff0000, v%d' % (BF + 4 * n3 + 2 * d + 1, BV + 2 * n3 + d))
    nl2e = f32h(-1.4426950408889634)

    def rnd(m):
        for d in range(2):
            a('v_cvt_pk_bf16_f32 v%d, v%d, v%d' % (T + d, m[2 * d], m[2 * d + 1]))
        for d in range(2):
            a('v_lshlrev_b32 v%d, 16, v%d' % (m[2 * d], T + d))
            a('v_and_b32 v%d, 0xffff0000, v%d' % (m[2 * d + 1], T + d))

    for rt2 in range(2):
        for n3 in range(3):
            n = 3 * rt2 + n3
            k0 = 12 * rt2 + 4 * n3
            a('s_waitcnt vmcnt(%d)' % (3 * (5 - n) + n))
            m = [ACC + k0 + r for r in range(4)]
            e = [52 + r for r in range(4)]
            for r in range(4):
                a('v_add_f32 v%d, v%d, v%d' % (e[r], PV + k0 + r, PV + 24 + k0 + r))
                a('v_add_f32 v%d, v%d, v%d' % (m[r], m[r], PV + 48 + k0 + r))
            for r in range(4):
                a('v_add_f32 v%d, v%d, v%d' % (m[r], m[r], e[r]))
            rnd(m)
            for r in range(4):
                a('v_add_f32 v%d, v%d, v%d' % (m[r], m[r], BF + 4 * n3 + r))
            rnd(m)
            for r in range(4):
                a('v_mul_f32 v%d, %s, v%d' % (e[r], nl2e, m[r]))
            for r in range(4):
                a('v_exp_f32 v%d, v%d' % (e[r], e[r]))
            for r in range(4):
                a('v_add_f32 v%d, 1.0, v%d' % (e[r], e[r]))
            for r in range(4):
                a('v_rcp_f32 v%d, v%d' % (e[r], e[r]))
            for r in range(4):
                a('v_mul_f32 v%d, v%d, v%d' % (m[r], m[r], e[r]))
            rnd(m)
            for r in range(4):
                a('v_mul_f32 v%d, v%d, v%d' % (m[r], m[r], SAC + k0 + r))
            rnd(m)
            xv = XV + 6 * rt2 + 2 * n3
            for d in range(2):
                a('v_lshlrev_b32 v%d, 16, v%d' % (e[2 * d], xv + d))
                a('v_and_b32 v%d, 0xffff0000, v%d' % (e[2 * d + 1], xv + d))
            for r in range(4):
                a('v_add_f32 v%d, v%d, v%d' % (m[r], m[r], e[r]))
            for d in range(2):
                a('v_cvt_pk_bf16_f32 v%d, v%d, v%d' % (xv + d, m[2 * d], m[2 * d + 1]))
            a('buffer_store_dwordx2 %s, v16, s[%d:%d], %s offen offset:%d' % (
                vr(xv, 2), S_OUT, S_OUT + 3, 's%d' % S_OA if rt2 else '0', 32 * n3))
    if instr:
        sp.stamp()
        a('s_waitcnt vmcnt(0)')
        sp.stamp()
        a('s_mov_b32 s70, 63')
        sp.stamp(real=True)
        a('s_lshl_b32 s71, s2, 3')
        a('s_add_u32 s71, s71, s%d' % S_WAVE)
        sp.dump(66, 67, S_H, 71, 1)
    a('s_endpgm')
```

```python
import struct
from asmlib import *
from layout import *
from k_g2 import decode_ids
MODE = ''

P1_STG = 24576
P1_RING = 6 * P1_STG
P1_XB = 3 * P1_STG
P1_RED = P1_XB + 5 * 16384
P1_CBL = P1_RING
P1_LDS = 163840

XF = 112
ACCS = (96, 80)
WB = 56
V_RA = 2
V_RC = 4
V_DK = 6
V_DJ = 9
V_DO = 12
V_CSA = 15
V_ST = 16
V_STA = 20
V_B1 = 22
V_BF = 26
V_B1A = 34
V_CS = 36
V_O = 44
V_HA = 52
V_RTA = 53
V_TT = 54
V_T0 = 1
V_XO = 80
V_XR = 82
V_FL = 88

S_X, S_W1, S_T, S_LD, S_H, S_RT, S_B1, S_SM = 8, 12, 16, 20, 24, 28, 32, 80
S_WAVE, S_G, S_WR, S_MT, S_U, S_KS = 36, 37, 38, 39, 40, 41
S_CNT, S_P, S_RB, S_WBASE, S_PITCH, S_LOFF = 42, 43, 44, 45, 46, 47
S_CUR, S_PREV, S_NT_, S_TB, S_T1, S_T2, S_T3 = 48, 49, 50, 51, 52, 53, 54
S_DW, S_T4, S_NONCE, S_N2, S_SPIN = 55, 56, 57, 58, 59
S_DBG = 84
S_PG = 96
S_PGO = 79
SM_BASE = WS_STATS
SPIN_MAX = 20000


def f32h(x):
    return '0x%08x' % struct.unpack('<I', struct.pack('<f', x))[0]


def panel_id(a, dst, ridx):
    a('s_lshl_b32 s%d, s%d, 2' % (S_T1, ridx))
    a('s_add_u32 s%d, s%d, s%d' % (S_T1, S_T1, S_U))
    a('s_add_u32 s%d, s%d, s%d' % (S_T2, S_T1, S_TB))
    a('s_mul_i32 s%d, s%d, 18' % (S_T3, S_KS))
    a('s_add_u32 s%d, s%d, s%d' % (S_T3, S_T3, S_T1))
    a('s_sub_u32 s%d, s%d, s%d' % (S_T3, S_T3, S_NT_))
    a('s_cmp_lt_u32 s%d, s%d' % (S_T1, S_NT_))
    a('s_cselect_b32 s%d, s%d, s%d' % (dst, S_T2, S_T3))


def set_load_panel(a, ridx):
    panel_id(a, S_T1, ridx)
    a('s_cmp_lt_u32 s%d, 72' % S_T1)
    a('s_cselect_b32 s%d, s%d, s%d' % (S_LD, S_W1, S_T))
    a('s_cselect_b32 s%d, s%d, s%d' % (S_LD + 1, S_W1 + 1, S_T + 1))
    a('s_cselect_b32 s%d, s%d, s%d' % (S_LD + 2, S_W1 + 2, S_T + 2))
    a('s_cselect_b32 s%d, 8, 1' % S_PITCH)
    a('s_cselect_b32 s%d, 0, 72' % S_T2)
    a('s_mul_i32 s%d, s%d, %d' % (S_PITCH, S_PITCH, D * 2))
    a('s_sub_u32 s%d, s%d, s%d' % (S_T1, S_T1, S_T2))
    a('s_lshl_b32 s%d, s%d, 7' % (S_LOFF, S_T1))
    a('s_cmp_lt_u32 s%d, s%d' % (ridx, S_CNT))
    a('s_cselect_b32 s%d, s%d, 0' % (S_LD + 2, S_LD + 2))
    for i in range(3):
        a('v_mad_u32_u24 v%d, v%d, s%d, v%d' % (V_DO + i, V_DK + i, S_PITCH, V_DJ + i))


def dma_one(a, st, i):
    a('s_mul_i32 s%d, s%d, %d' % (S_T1, S_PITCH, 192 * st))
    a('s_add_u32 s%d, s%d, s%d' % (S_T2, S_WBASE, S_DW))
    a('s_add_u32 m0, s%d, %d' % (S_T2, 1024 * i))
    a('s_add_u32 s%d, s%d, s%d' % (S_T1, S_T1, S_LOFF))
    a('buffer_load_dwordx4 v%d, s[%d:%d], s%d offen lds' % (V_DO + i, S_LD, S_LD + 3, S_T1))


def dma_x(a, vm, piece, slot):
    a('s_lshl_b32 s%d, s%d, 11' % (S_T2, S_WAVE))
    for i in range(2):
        a('s_add_u32 m0, s%d, %d' % (S_T2, P1_XB + 16384 * slot + 1024 * i - 128 * piece))
        a('buffer_load_dwordx4 v%d, s[%d:%d], 0 offen offset:%d lds' % (V_XO + i, S_X, S_X + 3, 128 * piece))
        vm.add('x%d' % piece)


def xreads(a, lg, piece, slot):
    for j in range(2):
        for rt in range(2):
            a('ds_read_b128 %s, v%d offset:%d' % (
                vr(XF + 72 * rt + 4 * (2 * piece + j), 4), V_XR + j + (2 if slot == 4 else 0),
                16384 * (slot % 4) + 2048 * rt))
            lg.add('xr%d' % piece)


def adv(a, s):
    a('s_add_u32 s%d, s%d, %d' % (s, s, P1_STG))
    a('s_cmp_ge_u32 s%d, %d' % (s, P1_RING))
    a('s_cselect_b32 s%d, 0, s%d' % (s, s))


def epi_loads(a, lg):
    for nt in range(2):
        a('ds_read_b128 %s, v%d offset:%d' % (vr(V_CS + 4 * nt, 4), V_CSA, 64 * nt))
        lg.add('el')
        a('ds_read_b128 %s, v%d offset:%d' % (vr(V_BF + 4 * nt, 4), V_CSA, 256 + 64 * nt))
        lg.add('el')
    a('v_add_u32 v%d, 1024, v%d' % (V_CSA, V_CSA))


def fetch_shared(a, vm):
    for rt in range(2):
        a('buffer_load_dwordx2 %s, v%d, s[%d:%d], 0 offen offset:%d' % (
            vr(V_ST + 2 * rt, 2), V_STA, S_SM, S_SM + 3, 128 * rt))
        vm.add('sh')
    panel_id(a, S_T4, S_WAVE)
    a('s_lshl_b32 s%d, s%d, 9' % (S_T4, S_T4))
    a('s_add_u32 s%d, s%d, %d' % (S_T4, S_T4, WS_CS - SM_BASE))
    a('s_lshl_b32 s%d, s%d, 10' % (S_T1, S_WAVE))
    a('s_add_u32 m0, s%d, %d' % (S_T1, P1_CBL))
    a('v_lshlrev_b32 v%d, 4, v0' % V_T0)
    a('buffer_load_dwordx4 v%d, s[%d:%d], s%d offen lds' % (V_T0, S_SM, S_SM + 3, S_T4))
    vm.add('sh')


def epi_ops(acc, isT, st_flags):
    o = []
    for rt in range(2):
        for nt in range(2):
            for r2 in range(2):
                for e in range(2):
                    r = 2 * r2 + e
                    if isT:
                        o.append('v_mul_f32 v%d, v%d, v%d' % (V_TT + e, V_ST + 2 * rt + 1, V_CS + 4 * nt + r))
                    else:
                        o.append('v_fma_f32 v%d, v%d, v%d, v%d' % (
                            V_TT + e, V_ST + 2 * rt + 1, V_CS + 4 * nt + r, V_BF + 4 * nt + r))
                for e in range(2):
                    t = acc + 8 * rt + 4 * nt + 2 * r2 + e
                    o.append('v_fma_f32 v%d, v%d, v%d, v%d' % (t, V_ST + 2 * rt, t, V_TT + e))
                if not isT:
                    for e in range(2):
                        t = acc + 8 * rt + 4 * nt + 2 * r2 + e
                        o.append('v_max_f32 v%d, 0, v%d' % (t, t))
                    for e in range(2):
                        t = acc + 8 * rt + 4 * nt + 2 * r2 + e
                        o.append('v_mul_f32 v%d, v%d, v%d' % (t, t, t))
                t = acc + 8 * rt + 4 * nt + 2 * r2
                if isT:
                    o.append('v_cvt_pk_bf16_f32 v%d, v%d, v%d' % (V_O + 4 * nt + 2 * r2 + rt, t, t + 1))
                else:
                    o.append('v_cvt_pk_bf16_f32 v%d, v%d, v%d' % (V_O + 4 * rt + 2 * nt + r2, t, t + 1))
        if not isT:
            o.append('s_lshl_b32 s%d, s%d, 14' % (S_T4, S_PREV))
            for d in range(2):
                o.append('v_permlane16_swap_b32 v%d, v%d' % (V_O + 4 * rt + d, V_O + 4 * rt + 2 + d))
            o.append('buffer_store_dwordx4 %s, v%d, s[%d:%d], s%d offen offset:%d %s' % (
                vr(V_O + 4 * rt, 4), V_HA, S_H, S_H + 3, S_T4, 2048 * rt, st_flags))
    if isT:
        for nt in range(2):
            for pp in range(2):
                o.append('s_sub_u32 s%d, s%d, 72\ns_lshl_b32 s%d, s%d, 18\ns_add_u32 s%d, s%d, %d\n' % (
                    S_T4, S_PREV, S_T4, S_T4, S_T4, S_T4, (8 * nt + pp) * 8192) +
                    'buffer_store_dwordx2 %s, v%d, s[%d:%d], s%d offen %s' % (
                    vr(V_O + 4 * nt + 2 * pp, 2), V_RTA, S_RT, S_RT + 3, S_T4, st_flags))
    return o


def bf16_round(a, v):
    a('v_cvt_pk_bf16_f32 v%d, v%d, v%d' % (v, v, v))
    a('v_lshlrev_b32 v%d, 16, v%d' % (v, v))


def wave_allreduce(a, v, t):
    for r in (1, 2, 4, 8):
        a('v_add_f32_dpp v%d, v%d, v%d row_ror:%d row_mask:0xf bank_mask:0xf' % (v, v, v, r))
    a('v_mov_b32 v%d, v%d' % (t, v))
    a('v_permlane16_swap_b32 v%d, v%d' % (v, t))
    a('v_add_f32 v%d, v%d, v%d' % (v, v, t))
    a('v_mov_b32 v%d, v%d' % (t, v))
    a('v_permlane32_swap_b32 v%d, v%d' % (v, t))
    a('v_add_f32 v%d, v%d, v%d' % (v, v, t))


def wread1(a, lg, js, k):
    buf = js % 3
    jj = js % 6
    nt, e2 = k >> 1, k & 1
    a('ds_read_b64_tr_b16 %s, v%d offset:%d' % (
        vr(WB + 8 * buf + 4 * nt + 2 * e2, 2), V_RC + nt, (32 * jj + 4 * e2) * 128))
    lg.add('w%d' % js)


def read_switch(a):
    for nt in range(2):
        a('v_add_u32 v%d, s%d, v%d' % (V_RC + nt, S_RB, V_RA + nt))
    adv(a, S_RB)


def poll_flags(a, vm):
    Lok = a.newlabel('p1_flok')
    Lre = a.newlabel('p1_flre')
    a('s_cmp_lg_u32 s%d, 0' % S_WAVE)
    a('s_cbranch_scc1 %s' % Lok)
    a('s_mov_b32 s%d, 0' % S_SPIN)
    a('v_lshlrev_b32 v%d, 4, v0' % V_T0)
    a('buffer_load_dwordx4 %s, v%d, s[%d:%d], 0 offen offset:0' % (vr(V_FL, 4), V_T0, S_DBG + 4, S_DBG + 7))
    a.label(Lre)
    a('s_waitcnt vmcnt(0)')
    a('v_xor_b32 v%d, s%d, v%d' % (V_FL, S_NONCE, V_FL))
    a('v_xor_b32 v%d, s%d, v%d' % (V_FL + 1, S_NONCE, V_FL + 1))
    a('v_xor_b32 v%d, s%d, v%d' % (V_FL + 2, S_NONCE, V_FL + 2))
    a('v_xor_b32 v%d, s%d, v%d' % (V_FL + 3, S_NONCE, V_FL + 3))
    a('v_or3_b32 v%d, v%d, v%d, v%d' % (V_FL, V_FL, V_FL + 1, V_FL + 2))
    a('v_or_b32 v%d, v%d, v%d' % (V_FL, V_FL, V_FL + 3))
    a('v_cmp_ne_u32 vcc, 0, v%d' % V_FL)
    a('s_add_u32 s%d, s%d, 1' % (S_SPIN, S_SPIN))
    a('s_nop 3')
    a('s_cbranch_vccz %s' % Lok)
    a('s_sleep 8')
    a('buffer_load_dwordx4 %s, v%d, s[%d:%d], 0 offen offset:0 sc1' % (vr(V_FL, 4), V_T0, S_DBG + 4, S_DBG + 7))
    a('s_cmp_lt_u32 s%d, %d' % (S_SPIN, SPIN_MAX))
    a('s_cbranch_scc1 %s' % Lre)
    a.label(Lok)


def publish(a, delta):
    L = a.newlabel('p1_pub')
    a('s_cmp_lg_u32 s%d, 0' % S_WAVE)
    a('s_cbranch_scc1 %s' % L)
    a('s_add_u32 s%d, s%d, s%d' % (S_T1, S_NONCE, S_P))
    a('s_add_i32 s%d, s%d, %d' % (S_T1, S_T1, delta))
    a('v_mov_b32 v%d, s%d' % (V_T0, S_T1))
    a('v_mov_b32 v35, 0')
    a('buffer_store_dword v%d, v35, s[%d:%d], s%d offen sc1' % (V_T0, S_PG, S_PG + 3, S_PGO))
    a.label(L)


def prefetch(a):
    a('s_load_dwordx2 s[92:93], s[0:1], %d' % KA_W2)
    a('s_getpc_b64 s[94:95]')
    a('s_add_u32 s94, s94, tab_Tinv@rel32@lo+4')
    a('s_addc_u32 s95, s95, tab_Tinv@rel32@hi+12')
    a('s_sub_u32 s%d, s%d, 1' % (S_T1, S_P))
    a('s_lshl_b32 s%d, s%d, 8' % (S_T1, S_T1))
    a('s_add_u32 s%d, s%d, s2' % (S_T1, S_T1))
    a('s_lshl_b32 s%d, s%d, 13' % (S_T2, S_T1))
    a('s_sub_u32 s%d, s%d, %d' % (S_T3, S_T2, 648 * 8192))
    a('v_lshlrev_b32 v%d, 7, v0' % V_T0)
    a('s_waitcnt lgkmcnt(0)')
    a('s_cmp_lt_u32 s%d, 648' % S_T1)
    a('s_cselect_b32 s%d, s92, s94' % S_B1)
    a('s_cselect_b32 s%d, s93, s95' % (S_B1 + 1))
    a('s_cselect_b32 s%d, s%d, s%d' % (S_T2, S_T2, S_T3))
    a('s_mov_b32 s%d, %d' % (S_T3, D * D * 2 + 61440))
    a('s_cselect_b32 s%d, %d, s%d' % (S_B1 + 2, F * D * 2, S_T3))
    a('s_and_b32 s%d, s%d, 0xffff' % (S_B1 + 1, S_B1 + 1))
    a('buffer_load_dword v34, v%d, s[%d:%d], s%d offen' % (V_T0, S_B1, S_B1 + 3, S_T2))


def body(a, vm, lg, kind, par, st_flags, sp=None):
    first = kind == 'first'
    ACC = ACCS[par]
    PACC = ACCS[1 - par]
    fill = [] if first or 'noepi' in MODE else epi_ops(PACC, kind.startswith('T'), st_flags)
    nfill = len(fill)
    E0, E1 = 6, 16
    slots = (E1 - E0 + 1) * 4
    emitted = 0

    for js in range(18):
        if sp and js % 6 == 0:
            sp.stamp()
        nxt = js + 2
        buf = js % 3

        def mf(k):
            nonlocal emitted
            rt, nt = k >> 1, k & 1
            acc = vr(ACC + 8 * rt + 4 * nt, 4)
            a('v_mfma_f32_16x16x32_bf16 %s, %s, %s, %s' % (
                acc, vr(WB + 8 * buf + 4 * nt, 4), vr(XF + 72 * rt + 4 * js, 4), '0' if js == 0 else acc))

        def filler(k):
            nonlocal emitted
            if fill and E0 <= js <= E1:
                if js == E0 and k == 0:
                    lg.wait('el')
                want = ((js - E0) * 4 + k + 1) * nfill // slots
                while emitted < want:
                    t = fill[emitted]
                    a(t)
                    if 'buffer_store' in t:
                        vm.add('es')
                    emitted += 1

        lg.wait('w%d' % js)
        if first and js == 10:
            lg.wait('xr8')
        mf(0)
        if first and js == 8:
            vm.wait('x5', 'x6', 'x7', 'x8')
            a('s_barrier')
            for pc in range(5, 9):
                xreads(a, lg, pc, pc - 5)
                if pc == 6:
                    lg.wait('xr5')
        if nxt % 6 == 0:
            st = (nxt // 6) % 3
            if first and nxt == 18:
                poll_flags(a, vm)
            if kind == 'W' and js == 4:
                vm.wait('d%d' % st, 'sh', 'es')
            else:
                vm.wait('d%d' % st, 'sh')
            a('s_barrier')
            read_switch(a)
            if kind == 'W' and js == 4:
                publish(a, -1)
        wread1(a, lg, nxt % 18, 0)
        wread1(a, lg, nxt % 18, 1)
        filler(0)
        mf(1)
        wread1(a, lg, nxt % 18, 2)
        wread1(a, lg, nxt % 18, 3)
        if nxt == 18:
            a('s_add_u32 s%d, s%d, 2' % (S_T4, S_P))
            set_load_panel(a, S_T4)
        if js == 5 and not first:
            epi_loads(a, lg)
        if js == 17 and first:
            fetch_shared(a, vm)
        if js == 5 and not first and 'nopf' not in MODE:
            Lp = a.newlabel('p1_pf')
            a('s_cmp_lg_u32 s%d, 5' % S_WAVE)
            a('s_cbranch_scc1 %s' % Lp)
            prefetch(a)
            a.label(Lp)
        if first and js in (5, 6):
            if js == 5:
                srd(a, S_B1, 92, 93, S * DF * 2)
                srd(a, S_DBG, 94, 95, S * DF * 2)
            wt_loads(a, vm, js - 5)
        if first and js == 16:
            wt_stores(a, vm)
            srd(a, S_DBG, 64, 65, 256)
        filler(1)
        mf(2)
        if first and js < 16:
            if js < 4:
                dma_x(a, vm, 5 + js, js)
            if js >= 10:
                todo = {10: [0, 1], 11: [2, 3], 12: [4, 5], 13: [6], 14: [7], 15: [8]}[js]
                for n in todo:
                    dma_one(a, n // 3, n % 3)
                    vm.add('d%d' % (n // 3))
                    if n % 3 == 2:
                        adv(a, S_WBASE)
        elif js % 2 == 0:
            n = ((js + 2) % 18) // 2
            dma_one(a, n // 3, n % 3)
            vm.add('d%d' % (n // 3))
            if n % 3 == 2:
                adv(a, S_WBASE)
        filler(2)
        mf(3)
        filler(3)
    assert emitted == nfill
    a('s_mov_b32 s%d, s%d' % (S_PREV, S_CUR))
    a('s_add_u32 s%d, s%d, 1' % (S_P, S_P))
    panel_id(a, S_CUR, S_P)


def p0_stats(a, vm):
    vm.wait('s0')
    X = 96
    U = 132
    for d in range(8):
        a('v_lshlrev_b32 v%d, 16, v%d' % (U + 2 * d, X + d))
        a('v_and_b32 v%d, 0xffff0000, v%d' % (U + 2 * d + 1, X + d))
    a('v_add_f32 v148, v%d, v%d' % (U, U + 1))
    a('v_add_f32 v149, v%d, v%d' % (U + 2, U + 3))
    for i in range(4, 16, 2):
        a('v_add_f32 v148, v148, v%d' % (U + i))
        a('v_add_f32 v149, v149, v%d' % (U + i + 1))
    a('v_add_f32 v148, v148, v149')
    wave_allreduce(a, 148, 149)
    a('v_mul_f32 v148, %s, v148' % f32h(1.0 / D))
    for i in range(16):
        a('v_sub_f32 v%d, v%d, v148' % (U + i, U + i))
    a('v_mul_f32 v150, v%d, v%d' % (U, U))
    a('v_mul_f32 v151, v%d, v%d' % (U + 8, U + 8))
    for i in range(1, 8):
        a('v_fmac_f32 v150, v%d, v%d' % (U + i, U + i))
        a('v_fmac_f32 v151, v%d, v%d' % (U + 8 + i, U + 8 + i))
    a('v_cmp_gt_u32 vcc, 8, v0')
    a('v_cndmask_b32 v151, 0, v151, vcc')
    a('v_add_f32 v150, v150, v151')
    wave_allreduce(a, 150, 149)
    a('v_mul_f32 v150, %s, v150' % f32h(1.0 / D))
    bf16_round(a, 148)
    bf16_round(a, 150)
    a('v_add_f32 v150, %s, v150' % f32h(1e-5))
    bf16_round(a, 150)
    a('v_sqrt_f32 v150, v150')
    bf16_round(a, 150)
    a('v_rcp_f32 v152, v150')
    a('v_mul_f32 v153, v148, v152')
    a('v_sub_f32 v153, 0, v153')
    a('v_cmp_eq_u32 vcc, 0, v0')
    a('v_mov_b32 v149, 0x7fffffff')
    a('v_cndmask_b32 v149, v149, v154, vcc')
    a('buffer_store_dwordx2 v[152:153], v149, s[%d:%d], 0 offen sc1' % (S_SM, S_SM + 3))
    vm.add('p0s')


def p0_colsum(a, vm):
    vm.wait('c0')
    C = 112
    A = 132
    for m in range(5):
        for d in range(4):
            if m == 0:
                a('v_lshlrev_b32 v%d, 16, v%d' % (A + 2 * d, C + d))
                a('v_and_b32 v%d, 0xffff0000, v%d' % (A + 2 * d + 1, C + d))
            else:
                a('v_lshlrev_b32 v%d, 16, v%d' % (140 + 2 * d, C + 4 * m + d))
                a('v_and_b32 v%d, 0xffff0000, v%d' % (141 + 2 * d, C + 4 * m + d))
        if m:
            for i in range(8):
                a('v_add_f32 v%d, v%d, v%d' % (A + i, A + i, 140 + i))
    for r in (4, 8):
        for i in range(8):
            a('v_add_f32_dpp v%d, v%d, v%d row_ror:%d row_mask:0xf bank_mask:0xf' % (A + i, A + i, A + i, r))
    a('v_and_b32 v148, 3, v0')
    a('v_lshrrev_b32 v149, 4, v0')
    a('v_lshl_add_u32 v148, v149, 2, v148')
    a('v_lshlrev_b32 v148, 5, v148')
    a('s_lshl_b32 s%d, s%d, 9' % (S_T1, S_WAVE))
    a('s_add_u32 s%d, s%d, %d' % (S_T1, S_T1, P1_RED))
    a('v_add_u32 v148, s%d, v148' % S_T1)
    a('ds_write_b128 v148, v[132:135]')
    a('ds_write_b128 v148, v[136:139] offset:16')
    a('s_waitcnt lgkmcnt(0)')
    a('s_barrier')
    Ls = a.newlabel('p0_skip')
    a('s_cmp_lg_u32 s%d, 0' % S_WAVE)
    a('s_cbranch_scc1 %s' % Ls)
    a('v_and_b32 v148, 31, v0')
    a('v_lshrrev_b32 v149, 5, v0')
    a('v_lshlrev_b32 v150, 2, v148')
    a('v_lshl_add_u32 v151, v149, 11, v150')
    a('v_add_u32 v151, %d, v151' % P1_RED)
    for i in range(16):
        a('ds_read_b32 v%d, v151 offset:%d' % (132 + i, 128 * i))
        if i == 7:
            a('s_waitcnt lgkmcnt(0)')
    a('s_waitcnt lgkmcnt(0)')
    for i in range(1, 16):
        a('v_add_f32 v132, v132, v%d' % (132 + i))
    a('v_mov_b32 v133, v132')
    a('v_permlane32_swap_b32 v132, v133')
    a('v_add_f32 v132, v132, v133')
    a('v_lshlrev_b32 v104, 16, v104')
    a('v_cmp_gt_u32 vcc, 32, v0')
    a('v_cndmask_b32 v132, v104, v132, vcc')
    a('v_lshl_add_u32 v150, v149, 8, v150')
    a('s_lshr_b32 s%d, s2, 1' % S_T1)
    a('s_lshl_b32 s%d, s%d, 9' % (S_T1, S_T1))
    a('s_and_b32 s%d, s2, 1' % S_T2)
    a('s_lshl_b32 s%d, s%d, 7' % (S_T2, S_T2))
    a('s_add_u32 s%d, s%d, s%d' % (S_T1, S_T1, S_T2))
    a('s_add_u32 s%d, s%d, %d' % (S_T1, S_T1, WS_CS - SM_BASE))
    a('s_cmp_lt_u32 s2, 162')
    a('s_cselect_b32 s%d, s%d, 0x7fffffff' % (S_T1, S_T1))
    a('buffer_store_dword v132, v150, s[%d:%d], s%d offen sc1' % (S_SM, S_SM + 3, S_T1))
    a.label(Ls)


WTD = 36


WT_RE = 36
WT_IM = 26
WT_A = 44
S_WR_, S_WI_, S_WT_ = 92, 100 - 4, 32


def wt_loads(a, vm, rnd):
    SR, SI = S_B1, S_DBG
    a('s_lshl_b32 s%d, s2, 1' % S_T1)
    a('s_add_u32 s%d, s%d, s%d' % (S_T1, S_T1, S_G if rnd == 0 else S_WAVE))
    a('s_and_b32 s%d, s%d, 31' % (S_T2, S_T1))
    a('s_lshr_b32 s%d, s%d, 5' % (S_T3, S_T1))
    a('s_lshl_b32 s%d, s%d, 7' % (S_T3, S_T3))
    a('s_add_u32 s%d, s%d, s%d' % (S_T2, S_T2, S_T3))
    a('s_mul_i32 s%d, s%d, %d' % (S_T2, S_T2, DF * 2))
    L, Q = WT_A + 2, WT_A + 3
    if rnd == 0:
        a('s_lshl_b32 s%d, s%d, 6' % (S_T3, S_WR))
        a('v_add_u32 v%d, s%d, v0' % (L, S_T3))
        a('v_cmp_eq_u32 vcc, 0, v%d' % L)
        a('v_mov_b32 v%d, 288' % Q)
        a('v_cndmask_b32 v%d, v%d, v%d, vcc' % (Q, L, Q))
    else:
        a('v_add_u32 v%d, 256, v0' % L)
        a('v_cmp_eq_u32 vcc, 32, v0')
        a('v_cndmask_b32 v%d, v%d, 0, vcc' % (Q, L))
    a('v_lshlrev_b32 v%d, 13, v%d' % (Q, Q))
    a('s_lshl_b32 s%d, s%d, 4' % (S_T1, S_T1))
    a('v_add_u32 v%d, s%d, v%d' % (WT_A + rnd, S_T1, Q))
    a('v_lshlrev_b32 v%d, 1, v%d' % (L, L))
    if rnd == 1:
        a('s_cmp_lt_u32 s%d, 2' % S_WAVE)
        a('s_cselect_b32 s%d, 33, 0' % S_T3)
        a('v_cmp_gt_u32 vcc, s%d, v0' % S_T3)
        a('v_mov_b32 v%d, 0x7fffffff' % Q)
        a('v_cndmask_b32 v%d, v%d, v%d, vcc' % (L, Q, L))
        a('v_cndmask_b32 v%d, v%d, v%d, vcc' % (WT_A + 1, Q, WT_A + 1))
    for e in range(4):
        a('s_add_u32 s%d, s%d, %d' % (S_T3, S_T2, 32 * e * DF * 2))
        a('buffer_load_ushort v%d, v%d, s[%d:%d], s%d offen' % (WT_RE + 4 * rnd + e, L, SR, SR + 3, S_T3))
        a('buffer_load_ushort v%d, v%d, s[%d:%d], s%d offen' % (WT_IM + 4 * rnd + e, L, SI, SI + 3, S_T3))
        vm.add('wt', 2)


def wt_stores(a, vm):
    vm.wait('wt')
    srd(a, S_B1, 66, 67, 289 * 8192, WS_WT)
    for i in range(8):
        a('v_lshl_or_b32 v%d, v%d, 16, v%d' % (WT_RE + i, WT_IM + i, WT_RE + i))
    for rnd in range(2):
        a('buffer_store_dwordx4 %s, v%d, s[%d:%d], 0 offen sc1' % (vr(WT_RE + 4 * rnd, 4), WT_A + rnd, S_B1, S_B1 + 3))
        vm.add('wts')


def p1_body(a, st_flags='', instr=False, mega=False):
    vm = Cnt(a, 'vmcnt', 63)
    lg = Cnt(a, 'lgkmcnt', 15)
    sp = Stamps(a, 21, 70, 72, instr)
    if instr:
        a('s_memtime s[74:75]')
    a('s_memrealtime s[76:77]')
    a('s_load_dwordx2 s[4:5], s[0:1], %d' % KA_X)
    a('s_load_dwordx4 s[92:95], s[0:1], %d' % KA_WR)
    a('s_load_dwordx4 s[60:63], s[0:1], %d' % KA_W1)
    a('s_load_dwordx4 s[64:67], s[0:1], %d' % KA_DBG)
    a('s_getpc_b64 s[68:69]')
    a('s_add_u32 s68, s68, tab_T@rel32@lo+4')
    a('s_addc_u32 s69, s69, tab_T@rel32@hi+12')
    a('v_lshrrev_b32 v1, 6, v0')
    a('v_mov_b32 v35, v0')
    a('v_and_b32 v0, 63, v0')
    decode_ids(a, S_MT, S_KS, S_U, S_T1, S_T2)
    a('v_readfirstlane_b32 s%d, v1' % S_WAVE)
    a('s_lshr_b32 s%d, s%d, 2' % (S_G, S_WAVE))
    a('s_and_b32 s%d, s%d, 3' % (S_WR, S_WAVE))
    a('s_cmp_eq_u32 s%d, 0' % S_KS)
    a('s_cselect_b32 s%d, 3, 2' % S_NT_)
    a('s_cselect_b32 s%d, 0, 1' % S_TB)
    a('s_lshl_b32 s%d, s%d, 1' % (S_T1, S_KS))
    a('s_add_u32 s%d, s%d, s%d' % (S_TB, S_TB, S_T1))
    a('s_add_u32 s%d, s%d, 72' % (S_TB, S_TB))
    a('s_or_b32 s%d, s%d, s%d' % (S_T1, S_KS, S_U))
    a('s_cmp_eq_u32 s%d, 0' % S_T1)
    a('s_cselect_b32 s%d, 6, 5' % S_CNT)
    a('s_mul_i32 s%d, s%d, 3072' % (S_DW, S_WAVE))
    a('s_lshl_b32 s%d, s%d, 2' % (S_T1, S_KS))
    a('s_add_u32 s%d, s%d, s%d' % (S_T1, S_T1, S_U))
    a('s_lshl_b32 s%d, s%d, 3' % (S_T1, S_T1))
    a('s_add_u32 s%d, s%d, s%d' % (S_T1, S_T1, S_WAVE))
    a('s_lshl_b32 s%d, s%d, 7' % (S_T2, S_MT))
    a('s_add_u32 s%d, s%d, s%d' % (S_T2, S_T2, S_T1))
    a('s_lshl_b32 s%d, s%d, 3' % (S_T2, S_T2))
    a('v_mov_b32 v154, s%d' % S_T2)
    a('s_and_b32 s%d, s%d, 15' % (S_T2, S_T1))
    a('s_lshl_b32 s%d, s%d, 1' % (S_T2, S_T2))
    a('s_bfe_u32 s%d, s%d, 0x10004' % (S_T3, S_T1))
    a('s_add_u32 s%d, s%d, s%d' % (S_T2, S_T2, S_T3))
    a('s_lshl_b32 s%d, s%d, 6' % (S_T2, S_T2))
    a('s_lshr_b32 s%d, s%d, 5' % (S_T3, S_T1))
    a('s_add_u32 s%d, s%d, s%d' % (S_T2, S_T2, S_T3))
    a('s_lshl_b32 s%d, s%d, 2' % (S_T3, S_MT))
    a('s_add_u32 s%d, s%d, s%d' % (S_T2, S_T2, S_T3))
    a('s_mul_i32 s%d, s%d, %d' % (S_T4, S_T2, D * 2))
    a('v_lshlrev_b32 v22, 4, v0')
    a('v_add_u32 v23, 1024, v22')
    a('v_cmp_gt_u32 vcc, 8, v0')
    a('v_mov_b32 v24, 0x7fffffff')
    a('v_cndmask_b32 v23, v24, v23, vcc')
    a('s_cmp_lt_u32 s2, 144')
    a('s_cselect_b32 s%d, 8, 1' % S_PITCH)
    a('s_cselect_b32 s%d, 0, 144' % S_T2)
    a('s_mul_i32 s%d, s%d, %d' % (S_PITCH, S_PITCH, D * 2))
    a('s_sub_u32 s%d, s2, s%d' % (S_LOFF, S_T2))
    a('s_lshl_b32 s%d, s%d, 6' % (S_LOFF, S_LOFF))
    a('v_lshrrev_b32 v24, 2, v35')
    a('v_and_b32 v25, 3, v35')
    a('v_lshlrev_b32 v25, 4, v25')
    a('v_mad_u32_u24 v24, v24, s%d, v25' % S_PITCH)
    a('s_waitcnt lgkmcnt(0)')
    srd(a, S_X, 4, 5, S * D * 2)
    srd(a, S_W1, 60, 61, D * F * 2)
    srd(a, S_T, 68, 69, D * D * 2)
    srd(a, S_DBG, 64, 65, 256)
    srd(a, S_B1, 62, 63, F * 2)
    srd(a, S_SM, 66, 67, 0x20000, SM_BASE)
    a('s_mov_b32 s%d, 0x20000' % (S_LD + 3))
    Ln = a.newlabel('p1_nn')
    a('s_or_b32 s%d, s2, s%d' % (S_T1, S_WAVE))
    a('s_cmp_lg_u32 s%d, 0' % S_T1)
    a('s_cbranch_scc1 %s' % Ln)
    a('s_or_b32 s%d, s76, 1' % S_T1)
    a('v_mov_b32 v26, s%d' % S_T1)
    a('v_mov_b32 v27, 0')
    a('buffer_store_dword v26, v27, s[%d:%d], 0 offen sc1' % (S_DBG, S_DBG + 3))
    a.label(Ln)
    a('buffer_load_dwordx4 v[96:99], v22, s[%d:%d], s%d offen' % (S_X, S_X + 3, S_T4))
    a('buffer_load_dwordx4 v[100:103], v23, s[%d:%d], s%d offen' % (S_X, S_X + 3, S_T4))
    vm.add('s0', 2)
    a('s_cmp_lt_u32 s2, 144')
    a('s_cselect_b32 s%d, s%d, s%d' % (S_LD, S_W1, S_T))
    a('s_cselect_b32 s%d, s%d, s%d' % (S_LD + 1, S_W1 + 1, S_T + 1))
    a('s_cselect_b32 s%d, s%d, s%d' % (S_LD + 2, S_W1 + 2, S_T + 2))
    a('s_cmp_lt_u32 s2, 162')
    a('s_cselect_b32 s%d, s%d, 0' % (S_LD + 2, S_LD + 2))
    for m in range(5):
        a('s_mul_i32 s%d, s%d, %d' % (S_T1, S_PITCH, 128 * m))
        a('s_add_u32 s%d, s%d, s%d' % (S_T1, S_T1, S_LOFF))
        a('buffer_load_dwordx4 %s, v24, s[%d:%d], s%d offen' % (vr(112 + 4 * m, 4), S_LD, S_LD + 3, S_T1))
        vm.add('c0')
    a('v_and_b32 v25, 31, v0')
    a('v_lshlrev_b32 v25, 1, v25')
    a('s_lshl_b32 s%d, s2, 6' % S_T1)
    a('buffer_load_ushort v104, v25, s[%d:%d], s%d offen' % (S_B1, S_B1 + 3, S_T1))
    vm.add('c0')
    a('v_lshrrev_b32 v20, 3, v0')
    a('v_and_b32 v21, 7, v0')
    a('v_bfe_u32 v22, v0, 4, 1')
    a('s_mul_i32 s%d, s%d, 3' % (S_T1, S_WAVE))
    for i in range(3):
        a('s_add_u32 s%d, s%d, %d' % (S_T2, S_T1, i))
        a('s_lshl_b32 s%d, s%d, 3' % (S_T3, S_T2))
        a('v_add_u32 v%d, s%d, v20' % (V_DK + i, S_T3))
        a('s_and_b32 s%d, s%d, 1' % (S_T2, S_T2))
        a('s_lshl_b32 s%d, s%d, 1' % (S_T2, S_T2))
        a('v_add_u32 v23, s%d, v22' % S_T2)
        a('v_lshlrev_b32 v23, 1, v23')
        a('v_xor_b32 v23, v23, v21')
        a('v_lshlrev_b32 v%d, 4, v23' % (V_DJ + i))
    a('s_lshl_b32 s%d, s%d, 2' % (S_N2, S_MT))
    a('s_lshr_b32 s%d, s%d, 1' % (S_T1, S_WAVE))
    a('s_add_u32 s%d, s%d, s%d' % (S_T1, S_T1, S_N2))
    a('s_and_b32 s%d, s%d, 1' % (S_T2, S_WAVE))
    a('s_lshl_b32 s%d, s%d, 6' % (S_T2, S_T2))
    a('s_add_u32 s%d, s%d, s%d' % (S_T1, S_T1, S_T2))
    a('s_add_u32 s%d, s%d, s%d' % (S_N2, S_N2, S_WR))
    for i in range(2):
        a('v_add_u32 v22, %d, v20' % (8 * i))
        a('v_lshrrev_b32 v23, 1, v22')
        a('v_xor_b32 v23, v23, v21')
        a('v_lshlrev_b32 v22, 7, v22')
        a('v_add_u32 v22, s%d, v22' % S_T1)
        a('v_mul_u32_u24 v22, %d, v22' % (D * 2))
        a('v_lshl_add_u32 v%d, v23, 4, v22' % (V_XO + i))
    a('s_mov_b32 s%d, 0' % S_P)
    a('s_mov_b32 s%d, 0' % S_WBASE)
    a('s_mov_b32 s%d, 0' % S_RB)
    set_load_panel(a, S_P)

    def wst(st):
        for i in range(3):
            dma_one(a, st, i)
            vm.add('d%d' % st)
        adv(a, S_WBASE)
    dma_x(a, vm, 0, 0)
    dma_x(a, vm, 1, 1)
    wst(0)
    p0_stats(a, vm)
    for pc in range(2, 5):
        dma_x(a, vm, pc, pc)
    srd(a, S_H, 66, 67, S * F * 2, WS_H)
    srd(a, S_RT, 66, 67, 288 * 8192, WS_RT)
    srd(a, S_DBG + 4, 66, 67, 1024, WS_FLAG0)
    srd(a, S_PG, 66, 67, 64 * 64, WS_PROG)
    a('s_lshl_b32 s%d, s%d, 2' % (S_PGO, S_MT))
    a('s_add_u32 s%d, s%d, s%d' % (S_PGO, S_PGO, S_KS))
    a('s_lshl_b32 s%d, s%d, 4' % (S_PGO, S_PGO))
    a('s_add_u32 s%d, s%d, s%d' % (S_PGO, S_PGO, S_U))
    a('s_lshl_b32 s%d, s%d, 2' % (S_PGO, S_PGO))
    p0_colsum(a, vm)
    a('v_mov_b32 v148, 0')
    Lq = a.newlabel('p1_nq')
    a('s_cmp_lg_u32 s%d, 0' % S_WAVE)
    a('s_cbranch_scc1 %s' % Lq)
    a('buffer_load_dword v149, v148, s[%d:%d], 0 offen' % (S_DBG, S_DBG + 3))
    a.label(Lq)
    wst(1)
    wst(2)
    a('v_and_b32 v30, 15, v0')
    a('v_lshrrev_b32 v31, 4, v0')
    a('s_lshl_b32 s%d, s%d, 5' % (S_T2, S_N2))
    a('v_add_u32 v24, s%d, v30' % S_T2)
    a('v_lshlrev_b32 v%d, 3, v24' % V_STA)
    a('v_and_b32 v25, 1, v31')
    a('v_lshrrev_b32 v26, 1, v31')
    a('v_lshl_add_u32 v25, v25, 1, v26')
    a('s_lshl_b32 s%d, s%d, 2' % (S_T3, S_G))
    a('v_add_u32 v25, s%d, v25' % S_T3)
    a('v_lshrrev_b32 v26, 1, v30')
    a('v_xor_b32 v25, v25, v26')
    a('v_lshlrev_b32 v24, 7, v30')
    a('v_lshl_add_u32 v24, v25, 4, v24')
    a('s_mul_i32 s%d, s%d, %d' % (S_T3, S_MT, 72 * 16384))
    a('s_lshl_b32 s%d, s%d, 12' % (S_T2, S_WR))
    a('s_add_u32 s%d, s%d, s%d' % (S_T3, S_T3, S_T2))
    a('v_add_u32 v%d, s%d, v24' % (V_HA, S_T3))
    a('v_lshlrev_b32 v24, 14, v31')
    a('v_lshl_add_u32 v24, v30, 3, v24')
    a('s_lshl_b32 s%d, s%d, 17' % (S_T3, S_G))
    a('s_lshl_b32 s%d, s%d, 7' % (S_T2, S_N2))
    a('s_add_u32 s%d, s%d, s%d' % (S_T3, S_T3, S_T2))
    a('v_add_u32 v%d, s%d, v24' % (V_RTA, S_T3))
    a('s_lshl_b32 s%d, s%d, 7' % (S_T3, S_G))
    a('s_add_u32 s%d, s%d, %d' % (S_T3, S_T3, P1_CBL))
    a('v_lshl_add_u32 v%d, v31, 4, s%d' % (V_CSA, S_T3))
    a('s_lshl_b32 s%d, s%d, 12' % (S_T3, S_WR))
    a('s_add_u32 s%d, s%d, %d' % (S_T3, S_T3, P1_XB))
    a('v_lshrrev_b32 v24, 1, v30')
    a('v_xor_b32 v24, v24, v31')
    a('v_lshlrev_b32 v25, 7, v30')
    a('v_add_u32 v25, s%d, v25' % S_T3)
    a('v_lshl_add_u32 v%d, v24, 4, v25' % V_XR)
    a('v_xor_b32 v24, 4, v24')
    a('v_lshl_add_u32 v%d, v24, 4, v25' % (V_XR + 1))
    a('v_add_u32 v%d, 0x10000, v%d' % (V_XR + 2, V_XR))
    a('v_add_u32 v%d, 0x10000, v%d' % (V_XR + 3, V_XR + 1))
    a('v_bfe_u32 v24, v0, 2, 2')
    a('v_and_b32 v25, 3, v0')
    a('v_lshl_add_u32 v26, v31, 3, v24')
    a('v_lshlrev_b32 v26, 7, v26')
    a('v_and_b32 v27, 1, v25')
    a('v_lshl_add_u32 v26, v27, 3, v26')
    a('v_lshrrev_b32 v27, 1, v24')
    a('v_and_b32 v28, 1, v31')
    a('v_lshl_add_u32 v27, v28, 1, v27')
    a('v_lshlrev_b32 v27, 1, v27')
    a('v_lshrrev_b32 v28, 1, v25')
    a('s_lshl_b32 s%d, s%d, 2' % (S_T3, S_G))
    for nt in range(2):
        a('v_add3_u32 v29, v28, s%d, %d' % (S_T3, 2 * nt))
        a('v_xor_b32 v29, v29, v27')
        a('v_lshl_add_u32 v%d, v29, 4, v26' % (V_RA + nt))
    panel_id(a, S_CUR, S_P)
    if instr:
        sp.init()
        a('v_writelane_b32 v21, s74, 0')
        a('v_writelane_b32 v21, s76, 62')
        a('s_mov_b32 s70, 1')
        sp.stamp()
    Lw = a.newlabel('p1_nw')
    Lg = a.newlabel('p1_ng')
    Lb = a.newlabel('p1_nb')
    vm.wait('x4')
    a('s_cmp_lg_u32 s%d, 0' % S_WAVE)
    a('s_cbranch_scc1 %s' % Lb)
    a('s_mov_b32 s%d, 0' % S_SPIN)
    a.label(Lw)
    a('v_readfirstlane_b32 s%d, v149' % S_NONCE)
    a('s_add_u32 s%d, s%d, 1' % (S_SPIN, S_SPIN))
    a('s_cmp_lg_u32 s%d, 0' % S_NONCE)
    a('s_cbranch_scc1 %s' % Lg)
    a('s_sleep 4')
    a('buffer_load_dword v149, v148, s[%d:%d], 0 offen sc1' % (S_DBG, S_DBG + 3))
    a('s_waitcnt vmcnt(0)')
    a('s_cmp_lt_u32 s%d, %d' % (S_SPIN, SPIN_MAX))
    a('s_cbranch_scc1 %s' % Lw)
    a.label(Lg)
    a('v_mov_b32 v150, %d' % (P1_LDS - 4))
    a('ds_write_b32 v150, v149')
    a('s_waitcnt lgkmcnt(0)')
    a.label(Lb)
    a('s_barrier')
    Lf = a.newlabel('p1_fl')
    a('s_cmp_lg_u32 s%d, 0' % S_WAVE)
    a('s_cbranch_scc1 %s' % Lf)
    a('s_lshl_b32 s%d, s2, 2' % S_T1)
    a('buffer_store_dword v149, v148, s[%d:%d], s%d offen sc1' % (S_DBG + 4, S_DBG + 7, S_T1))
    a.label(Lf)
    a('v_mov_b32 v%d, %d' % (V_T0, P1_LDS - 4))
    a('ds_read_b32 v35, v%d' % V_T0)
    lg.add('nn')
    read_switch(a)
    for k in range(4):
        wread1(a, lg, 0, k)
    for k in range(4):
        wread1(a, lg, 1, k)
    for pc in range(5):
        xreads(a, lg, pc, pc)
        if pc >= 1:
            lg.wait('xr%d' % (pc - 1))
    a('s_mov_b32 s%d, 1' % S_T4)
    set_load_panel(a, S_T4)
    lg.wait_all()
    a('v_readfirstlane_b32 s%d, v35' % S_NONCE)
    a('s_barrier')
    S_ = sp if instr else None
    body(a, vm, lg, 'first', 0, st_flags, S_)
    q_lg = ['w0'] * 4 + ['w1'] * 4
    q_first = list(vm.q)
    assert lg.q == q_lg, lg.q

    def run(kind, par, q_in):
        lg.q = list(q_lg)
        vm.q = list(q_in)
        body(a, vm, lg, kind, par, st_flags, S_)
        assert lg.q == q_lg
        return [t for t in vm.q if t != 'pf']

    def covers(actual, model):
        ia = [i for i, t in enumerate(actual) if t != 'es']
        im = [i for i, t in enumerate(model) if t != 'es']
        assert [actual[i] for i in ia] == [model[i] for i in im], (actual, model)
        for x, y in zip(ia, im):
            assert len(actual) - x >= len(model) - y, (actual, model)

    LT = a.newlabel('p1_bT')
    L0 = a.newlabel('p1_b0')
    LE0 = a.newlabel('p1_e0')
    LE1 = a.newlabel('p1_e1')
    LX = a.newlabel('p1_x')
    a('s_cmp_ge_u32 s%d, 72' % S_PREV)
    a('s_cbranch_scc1 %s' % LT)
    qW = run('W1', 1, q_first)
    a('s_branch %s' % L0)
    a.label(LT)
    qT = run('T1', 1, q_first)
    qM = [t for t in qW]
    covers(qT, qM)
    ys = lambda q: len(q) - max(i for i, t in enumerate(q) if t == 'es')
    assert ys(qT) >= ys(qM), (qT, qM)
    a.label(L0)
    q2 = run('W', 0, qM)
    covers(q2, qM)
    a('s_cmp_ge_u32 s%d, s%d' % (S_P, S_CNT))
    a('s_cbranch_scc1 %s' % LE0)
    q3 = run('W', 1, qM)
    covers(q3, qM)
    a('s_cmp_lt_u32 s%d, s%d' % (S_P, S_CNT))
    a('s_cbranch_scc1 %s' % L0)
    for par, L in ((1, LE1), (0, LE0)):
        a.label(L)
        sp.stamp()
        lg.q = list(q_lg)
        epi_loads(a, lg)
        lg.wait('el')
        for t in epi_ops(ACCS[par], False, st_flags):
            a(t)
        if par == 1:
            a('s_branch %s' % LX)
    a.label(LX)
    if mega:
        return sp
    if instr:
        sp.stamp()
        a('s_waitcnt vmcnt(0)')
        sp.stamp()
        a('s_mov_b32 s70, 63')
        sp.stamp(real=True)
        a('s_lshl_b32 s71, s2, 3')
        a('s_add_u32 s71, s71, s%d' % S_WAVE)
        sp.dump(66, 67, S_X, 71, 1)
```

```python
S = 2048
D = 576
F = 4608
DF = 289

WS_XN = 0x0000000
WS_WT = 0x0280000
WS_RT = 0x0500000
WS_ZT = 0x0780000
WS_Z0 = 0x0A00000
WS_H = 0x1000000
WS_PART = 0x2400000
PART_STRIDE = S * D * 4

KA_X, KA_WR, KA_WI, KA_BX, KA_W1, KA_B1, KA_W2, KA_B2, KA_OUT, KA_DBG, KA_WS = [8 * i for i in range(11)]
NAME = 'recurrent_scan__spectral_gfnet__dense_activation_squared_relu__prompt'
WS_STATS = 0x0A10000
WS_CS = 0x0A20000
WS_FLAG0 = 0x0A70000
WS_FLAGX = 0x0A40000
ZT_BLK = 578 * 128
WS_PROG = 0x0A50000
WS_FLAGZ = 0x0A60000
```

```python
import numpy as np


def bf16(x):
    u = int(np.float32(x).view(np.uint32))
    return ((u + 0x7fff + ((u >> 16) & 1)) >> 16) & 0xffff


def cos576(j):
    j %= 576
    if j % 144 == 0:
        return [1.0, 0.0, -1.0, 0.0][j // 144]
    return float(np.cos(2 * np.pi * j / 576))


def tab_T():
    L = ['.section .rodata,"a"', '.p2align 8']
    for j in range(576):
        L.append('.set ct_%d, 0x%04x' % (j, bf16(cos576(j))))
    L += ['.altmacro',
          '.macro em2 a, b',
          '.short ct_\\a, ct_\\b',
          '.endm',
          'tab_T:',
          '.set dd, 0',
          '.rept 576',
          '  em2 %((288*dd)%576), 0',
          '  .set pp, 1',
          '  .rept 287',
          '    em2 %((pp*dd)%576), %((pp*dd+144)%576)',
          '    .set pp, pp+1',
          '  .endr',
          '  .set dd, dd+1',
          '.endr',
          '.noaltmacro']
    return '\n'.join(L) + '\n'


def _dw(vals):
    L = []
    vals = list(int(v) for v in vals)
    for i in range(0, len(vals), 8):
        L.append('.long ' + ','.join('0x%x' % v for v in vals[i:i + 8]))
    return L


def _frag(fn):
    out = np.zeros((64, 4), np.uint32)
    for lane in range(64):
        i, h = lane & 31, lane >> 5
        for d in range(4):
            lo = bf16(fn(i, h, 2 * d))
            hi = bf16(fn(i, h, 2 * d + 1))
            out[lane, d] = lo | (hi << 16)
    return out.reshape(-1)


def cs(num, den):
    num %= den
    if (4 * num) % den == 0:
        k = 4 * num // den
        return [(1.0, 0.0), (0.0, 1.0), (-1.0, 0.0), (0.0, -1.0)][k]
    t = 2 * np.pi * num / den
    return float(np.cos(t)), float(np.sin(t))


def sig(j, h, e):
    return 16 * j + 8 * (e >> 2) + 4 * h + (e & 3)


FT_F1 = 0
FT_C64 = 8192
FT_C32 = 24576
FT_TW1 = 28672
FT_TW2 = 45056
FT_SIZE = 61440


def tab_F():
    d = []
    for part in range(2):
        for j in range(4):
            def fn(i, h, e, j=j, part=part):
                kap = 16 * j + 8 * h + e
                n1, c = kap >> 1, kap & 1
                co, si = cs(n1 * i, 32)
                if part == 0:
                    return co if c == 0 else si
                return -si if c == 0 else co
            d.append(_frag(fn))
    for part in range(2):
        for u in range(2):
            for j in range(4):
                d.append(_frag(lambda i, h, e, u=u, j=j, part=part: cs((32 * u + i) * sig(j, h, e), 64)[part]))
    for part in range(2):
        for j in range(2):
            d.append(_frag(lambda i, h, e, j=j, part=part: cs((2 * (i & 15) + (i >> 4)) * sig(j, h, e), 32)[part]))
    scale = 1.0 / (2048.0 * 576.0)
    for which in range(2):
        for t in range(2):
            for rq in range(4):
                for part in range(2):
                    o = np.zeros((64, 4), np.float32)
                    for lane in range(64):
                        i, h = lane & 31, lane >> 5
                        for e in range(4):
                            m = 8 * rq + 4 * h + e
                            if which == 0:
                                co, si = cs((32 * t + m) * i, 2048)
                                o[lane, e] = co if part == 0 else -si
                            else:
                                co, si = cs((32 * t + i) * m, 2048)
                                o[lane, e] = (co if part == 0 else si) * scale
                    d.append(o.view(np.uint32).reshape(-1))
    d = np.concatenate(d)
    assert d.size * 4 == FT_SIZE
    return '\n'.join(['.section .rodata,"a"', '.p2align 8', 'tab_F:'] + _dw(d)) + '\n'


def tab_Tinv():
    L = ['.section .rodata,"a"', '.p2align 8']
    for j in range(576):
        L.append('.set c2_%d, 0x%04x' % (j, bf16(2 * cos576(j))))
    L += ['.altmacro',
          '.macro em4 a, b, c, d',
          '.short c2_\\a, c2_\\b, c2_\\c, c2_\\d',
          '.endm',
          'tab_Tinv:',
          '.set nn, 0',
          '.rept 6',
          '  .rept 48',
          '    .short 0x3f80, 0xbf80',
          '  .endr',
          '  .rept 96',
          '    .short 0',
          '  .endr',
          '  .set kk, 2',
          '  .rept 574',
          '    .set pp, kk>>1',
          '    .set ph, (kk&1)*144',
          '    .set jj, 0',
          '    .rept 12',
          '      .set dd, nn*96 + ((jj ^ ((kk>>2)&2))*8)',
          '      em4 %((pp*dd+ph)%576), %((pp*(dd+1)+ph)%576), %((pp*(dd+2)+ph)%576), %((pp*(dd+3)+ph)%576)',
          '      em4 %((pp*(dd+4)+ph)%576), %((pp*(dd+5)+ph)%576), %((pp*(dd+6)+ph)%576), %((pp*(dd+7)+ph)%576)',
          '      .set jj, jj+1',
          '    .endr',
          '    .set kk, kk+1',
          '  .endr',
          '  .set nn, nn+1',
          '.endr',
          '.noaltmacro']
    return '\n'.join(L) + '\n'
```

```python
import sys
sys.path.insert(0, 'gen')
from asmlib import *
from layout import *
import k_p1, k_g2, k_fft, tables
from k_p1 import S_WAVE, S_MT, S_U, S_KS, S_NONCE, S_T1, S_T2, S_T3, S_T4, S_SPIN, S_PG, S_PGO, S_P, SPIN_MAX
instr = '--instr' in sys.argv
out = [z for z in sys.argv[1:] if z.endswith('.s')]
out = out[0] if out else 'cdna_kernels/%s.s' % NAME
if '--dbg' in sys.argv:
    Stamps.DBG = [(128, [1, 2, 5, 8, 17, 19, 20, 21, 22, 24], 1), (16, [18, 19, 20, 26], 11)]
a = Asm()
a('s_cmp_ge_u32 s2, 256')
a('s_cbranch_scc1 g2_exit')
sp = k_p1.p1_body(a, st_flags='sc1', instr=instr, mega=True)
a('s_waitcnt vmcnt(2) lgkmcnt(0)')
if instr:
    a('v_mov_b32 v255, v21')
a('s_cmp_eq_u32 s%d, 0' % S_U)
a('s_cbranch_scc1 aux_part')
a('s_load_dwordx4 s[60:63], s[0:1], %d' % KA_W2)
a('s_load_dwordx2 s[6:7], s[0:1], %d' % KA_OUT)
a('s_sub_u32 s%d, s%d, 1' % (S_U, S_U))
a('s_mov_b32 s78, s%d' % S_P)
a('s_waitcnt lgkmcnt(0)')


def c_start(a):
    a('s_barrier')
    a('s_waitcnt vmcnt(0)')


def c_start2(a):
    L = a.newlabel('mg_pub')
    a('s_cmp_lg_u32 s%d, 0' % S_WAVE)
    a('s_cbranch_scc1 %s' % L)
    a('s_add_u32 s%d, s%d, s78' % (S_T1, S_NONCE))
    a('v_mov_b32 v16, s%d' % S_T1)
    a('v_mov_b32 v17, 0')
    a('buffer_store_dword v16, v17, s[%d:%d], s%d offen sc1' % (S_PG, S_PG + 3, S_PGO))
    a.label(L)


k_g2.g2_body(a, instr=instr, hooks={'mega': 1, 'c_start': c_start, 'c_start2': c_start2, 'nostampinit': 1})
a.label('aux_part')
sp2 = Stamps(a, 255, 70, 72, instr)
sp2.stamp()
a('s_waitcnt vmcnt(0)')
a('s_barrier')
k_p1.publish(a, 0)
a('s_getpc_b64 s[4:5]')
a('s_add_u32 s4, s4, tab_F@rel32@lo+4')
a('s_addc_u32 s5, s5, tab_F@rel32@hi+12')
srd(a, 8, 4, 5, tables.FT_SIZE)
srd(a, 12, 66, 67, 288 * 8192, WS_RT)
srd(a, 16, 66, 67, 289 * 8192, WS_WT)
srd(a, 20, 66, 67, 32 * ZT_BLK, WS_ZT)
srd(a, 28, 66, 67, 256, WS_FLAGZ)
a('v_lshlrev_b32 v1, 4, v0')
a('s_lshl_b32 s24, s%d, 10' % S_WAVE)
for i in range(8):
    a('s_add_u32 s25, s24, %d' % (8192 * i))
    a('s_mov_b32 m0, s25')
    a('buffer_load_dwordx4 v1, s[8:11], s25 offen lds')
a('s_lshl_b32 s24, s%d, 2' % S_MT)
a('s_add_u32 s24, s24, s%d' % S_KS)
a('s_lshl_b32 s25, s%d, 6' % S_WAVE)
a('s_add_u32 s25, s25, s24')
a('s_cmp_gt_u32 s25, 288')
a('s_cbranch_scc0 aux_work')
a('s_waitcnt vmcnt(0)')
a('s_barrier')
a('s_branch aux_done')
a.label('aux_work')
a('s_mov_b32 s%d, 0' % S_SPIN)
a('v_lshlrev_b32 v1, 6, v0')
a('v_and_b32 v6, 3, v0')
a('buffer_load_dwordx4 v[2:5], v1, s[%d:%d], 0 offen' % (S_PG, S_PG + 3))
a.label('aux_rw')
a('s_waitcnt vmcnt(0)')
for r in (2, 3, 4, 5):
    a('v_subrev_u32 v%d, s%d, v%d' % (r, S_NONCE, r))
    a('v_subrev_u32 v%d, 1, v%d' % (r, r))
a('v_max3_u32 v2, v2, v3, v4')
a('v_max_u32 v2, v2, v5')
a('v_cmp_lt_u32 vcc, 15, v2')
a('s_add_u32 s%d, s%d, 1' % (S_SPIN, S_SPIN))
a('s_nop 3')
a('s_cbranch_vccz aux_go')
a('s_sleep 8')
a('buffer_load_dwordx4 v[2:5], v1, s[%d:%d], 0 offen sc1' % (S_PG, S_PG + 3))
a('s_cmp_lt_u32 s%d, %d' % (S_SPIN, SPIN_MAX))
a('s_cbranch_scc1 aux_rw')
a.label('aux_go')
sp2.stamp()
k_fft.fft_body(a, 25, 8, 12, 16, 20, 32, st_flags='sc1', lds=True, mid=lambda vm: a('s_barrier'), sp=sp2 if instr else None)
sp2.stamp()
a.label('aux_done')
a('s_waitcnt vmcnt(0)')
sp2.stamp()
a('s_barrier')
if instr:
    a('s_lshl_b32 s71, s2, 3')
    a('s_add_u32 s71, s71, s%d' % S_WAVE)
    sp2.dump(66, 67, 8, 71, 1)
a('s_cmp_lg_u32 s%d, 0' % S_WAVE)
a('s_cbranch_scc1 g2_exit')
a('s_lshl_b32 s24, s24, 2')
a('v_mov_b32 v2, s%d' % S_NONCE)
a('v_mov_b32 v3, 0')
a('buffer_store_dword v2, v3, s[28:31], s24 offen sc1')
a.label('g2_exit')
a('s_endpgm')
kn = NAME + '_kernel'
hdr = '''; generated by gen/gen_mega.py
; @launch %sgrid=(256,1,1) block=(512,1,1) lds=163840
.amdgcn_target "amdgcn-amd-amdhsa--gfx950"
''' % ('kernel=%s ' % kn if '--list' in sys.argv else '')
open(out, 'w').write(hdr + kernel_text(kn, a) + tables.tab_T() + tables.tab_Tinv() + tables.tab_F())
```

```python
import re

_REG = re.compile(r'^(-|\|)?(abs\()?([vas])(\d+|\[(\d+):(\d+)\])\)?\|?$')


def regs_of(op):
    op = op.strip()
    if op in ('vcc', 'vcc_lo', 'vcc_hi'):
        return {('x', 'vcc')}
    if op in ('exec', 'exec_lo', 'exec_hi'):
        return {('x', 'exec')}
    if op == 'm0':
        return {('x', 'm0')}
    m = _REG.match(op)
    if not m:
        return set()
    k = m.group(3)
    if m.group(5) is not None:
        return {(k, i) for i in range(int(m.group(5)), int(m.group(6)) + 1)}
    return {(k, int(m.group(4)))}


def split_ops(s):
    out, depth, cur = [], 0, ''
    for ch in s:
        if ch in '[(':
            depth += 1
        if ch in '])':
            depth -= 1
        if ch == ',' and depth == 0:
            out.append(cur.strip())
            cur = ''
        else:
            cur += ch
    if cur.strip():
        out.append(cur.strip())
    return out


TRANS = ('v_exp_f32', 'v_log_f32', 'v_rcp_f32', 'v_rsq_f32', 'v_sqrt_f32', 'v_sin_f32', 'v_cos_f32',
         'v_rcp_iflag_f32')


class Ins:
    __slots__ = ('text', 'mn', 'kind', 'rd', 'wr', 'a', 'b', 'c', 'passes', 'label', 'target', 'states',
                 'sdata', 'dpp', 'lds', 'sgpr_rd', 'ab')

    def __init__(self, text):
        self.text = text
        self.label = None
        self.target = None
        self.rd = set()
        self.wr = set()
        self.a = self.b = self.c = set()
        self.passes = 0
        self.states = 1
        self.sdata = set()
        self.dpp = False
        self.lds = False
        self.ab = set()
        t = text.split(';')[0].strip()
        if t.endswith(':'):
            self.label = t[:-1]
            self.kind = 'label'
            self.mn = ''
            self.states = 0
            return
        if t == '' or t.startswith('.'):
            self.kind = 'dir'
            self.mn = ''
            self.states = 0
            return
        parts = t.split(None, 1)
        mn = parts[0]
        self.mn = mn
        rest = parts[1] if len(parts) > 1 else ''
        ops = split_ops(rest)
        mods = []
        if ops:
            last = ops[-1].split()
            ops[-1] = last[0]
            mods = last[1:]
        R = [regs_of(o) for o in ops]
        if mn.startswith('v_mfma'):
            self.kind = 'mfma'
            self.wr = R[0]
            self.a, self.b, self.c = R[1], R[2], R[3]
            self.rd = R[1] | R[2] | R[3]
            self.passes = 8 if '32x32x16' in mn else 4 if '16x16x32' in mn else 16
        elif mn.startswith('v_'):
            self.kind = 'valu'
            self.dpp = ('_dpp' in mn) or any(m.startswith(('row_', 'quad_perm', 'wave_')) for m in mods)
            if mn.startswith('v_cmp'):
                self.wr = R[0]
                self.rd = set().union(*R[1:])
                if mn.startswith('v_cmpx'):
                    self.wr = self.wr | {('x', 'exec')}
            elif (mn.startswith('v_permlane') and 'swap' in mn) or mn.startswith('v_swap'):
                self.wr = R[0] | R[1]
                self.rd = R[0] | R[1]
            elif '_co_' in mn or mn.startswith('v_div_scale') or mn.startswith('v_mad_u64'):
                self.wr = R[0] | R[1]
                self.rd = set().union(*R[2:])
            else:
                self.wr = R[0]
                self.rd = set().union(*R[1:]) if len(R) > 1 else set()
                if mn.startswith('v_dot'):
                    self.ab = R[1] | R[2]
                if mn.startswith(('v_fmac', 'v_dot2c', 'v_pk_fmac', 'v_writelane')) or self.dpp or 'sdwa' in mn:
                    self.rd = self.rd | R[0]
        elif mn.startswith(('buffer_', 'global_', 'flat_')):
            self.kind = 'vmem'
            self.lds = ('lds' in mods) or ('_lds_' in mn)
            if mn in ('buffer_inv', 'buffer_wbl2'):
                pass
            elif 'load' in mn:
                if self.lds:
                    self.rd = set().union(*R) | {('x', 'm0')}
                else:
                    self.wr = R[0]
                    self.rd = set().union(*R[1:])
                    if 'd16' in mn:
                        self.rd |= R[0]
            elif 'store' in mn:
                self.rd = set().union(*R)
                d = R[0] if mn.startswith('buffer_') else R[1]
                if 'x4' in mn or 'x3' in mn:
                    self.sdata = d
            else:
                self.rd = set().union(*R)
                if 'sc0' in mods:
                    self.wr = R[0]
        elif mn.startswith('ds_'):
            self.kind = 'ds'
            if mn.startswith(('ds_read', 'ds_bpermute', 'ds_permute', 'ds_swizzle')) or '_rtn' in mn:
                self.wr = R[0]
                self.rd = set().union(*R[1:])
                if 'd16' in mn:
                    self.rd |= R[0]
            else:
                self.rd = set().union(*R)
        elif mn.startswith('s_'):
            self.kind = 'salu'
            if mn == 's_nop':
                self.states = int(ops[0], 0) + 1
            elif mn.startswith(('s_branch', 's_cbranch')):
                self.target = ops[0]
            elif mn.startswith(('s_cmp', 's_waitcnt', 's_barrier', 's_endpgm', 's_setprio', 's_sleep', 's_bitcmp')):
                self.rd = set().union(*R) if R else set()
            else:
                self.wr = R[0] if R else set()
                self.rd = set().union(*R[1:]) if len(R) > 1 else set()
                if 'saveexec' in mn:
                    self.wr = self.wr | {('x', 'exec')}
        else:
            raise ValueError('unknown instruction: ' + text)


def _isv(rs):
    return {r for r in rs if r[0] in 'va'}


def _iss(rs):
    return {r for r in rs if r[0] == 's' or r == ('x', 'vcc')}


def need(p, c):
    n = 0
    if p.kind == 'valu':
        pv = _isv(p.wr)
        ps = _iss(p.wr)
        if c.kind == 'mfma' and pv & c.rd:
            n = max(n, 2)
        if c.kind == 'mfma' and ('x', 'exec') in p.wr:
            n = max(n, 4)
        if p.mn.split('_e')[0] in TRANS or p.mn in TRANS:
            if c.kind in ('valu', 'mfma', 'vmem', 'ds') and pv & c.rd:
                n = max(n, 1)
        if c.kind == 'valu':
            if c.mn.startswith(('v_readfirstlane', 'v_readlane')) and pv & c.rd:
                n = max(n, 1)
            if c.mn.startswith('v_permlane') and pv & c.rd:
                n = max(n, 2)
            if c.dpp and pv & c.rd:
                n = max(n, 2)
            if c.dpp and ('x', 'exec') in p.wr:
                n = max(n, 5)
            if ps & c.rd:
                n = max(n, 4 if c.mn.startswith(('v_readlane', 'v_writelane')) else 2)
            if ('sdwa' in p.mn or 'op_sel' in p.text) and pv & (c.rd | c.wr):
                n = max(n, 1)
            if p.mn.startswith('v_div_scale') and c.mn.startswith('v_div_fmas'):
                n = max(n, 4)
        if p.mn.startswith('v_dot') and c.kind in ('valu', 'mfma', 'vmem', 'ds') and pv & (c.rd | c.wr):
            same_acc = (c.mn == p.mn and c.wr == p.wr and not (pv & c.ab))
            if not same_acc:
                n = max(n, 3)
        if c.kind == 'vmem' and ps & c.rd:
            n = max(n, 5)
        if c.kind == 'salu' and ps & c.rd:
            n = max(n, 1)
    elif p.kind == 'mfma':
        big = {4: 8, 8: 12, 16: 20}[p.passes]
        ovl = {4: 6, 8: 10, 16: 18}[p.passes]
        war = {4: 3, 8: 7, 16: 15}[p.passes]
        if c.kind == 'mfma':
            if p.wr & (c.a | c.b):
                n = max(n, big)
            if p.wr & c.c:
                if not (p.wr == c.c and p.passes == c.passes):
                    n = max(n, ovl)
            elif p.wr & c.wr:
                n = max(n, ovl)
        elif c.kind in ('valu', 'vmem', 'ds'):
            if p.wr & (c.rd | c.wr):
                n = max(n, big)
            if c.kind == 'valu' and p.c & c.wr:
                n = max(n, war)
            if c.kind in ('vmem', 'ds') and p.c & c.wr:
                n = max(n, war)
    elif p.kind == 'salu':
        if ('x', 'm0') in p.wr and c.kind == 'vmem' and c.lds:
            n = max(n, 1)
    elif p.kind == 'vmem':
        if p.sdata and (p.sdata & c.wr):
            n = max(n, 2)
    return n


class Asm:
    def __init__(self):
        self.ins = []
        self.uid = 0

    def __call__(self, text):
        for line in text.strip('\n').split('\n'):
            line = line.strip()
            if line == '':
                continue
            self.ins.append(Ins(line))

    def label(self, name):
        self.ins.append(Ins(name + ':'))

    def newlabel(self, base='L'):
        self.uid += 1
        return '%s_%d' % (base, self.uid)

    def comment(self, s):
        self.ins.append(Ins('; ' + s))

    def fix_hazards(self, verbose=False):
        MAXD = 20
        inserted = 0
        while True:
            ins = self.ins
            n = len(ins)
            lab = {x.label: i for i, x in enumerate(ins) if x.label}
            preds = [[] for _ in range(n)]
            for i, x in enumerate(ins):
                fall = not (x.mn in ('s_branch', 's_endpgm', 's_setpc_b64'))
                if fall and i + 1 < n:
                    preds[i + 1].append(i)
                if x.target is not None and x.target in lab:
                    preds[lab[x.target]].append(i)
            fixes = []
            for i, c in enumerate(ins):
                if c.kind in ('label', 'dir'):
                    continue
                if c.kind == 'salu' and not c.rd:
                    continue
                worst = 0
                stack = [(j, 0) for j in preds[i]]
                seen = {}
                while stack:
                    j, d = stack.pop()
                    if d >= MAXD:
                        continue
                    if seen.get(j, 99) <= d:
                        continue
                    seen[j] = d
                    p = ins[j]
                    if p.kind not in ('label', 'dir'):
                        nd = need(p, c)
                        if nd > d:
                            worst = max(worst, nd - d)
                    for k in preds[j]:
                        stack.append((k, d + p.states))
                if worst:
                    fixes.append((i, worst))
            if not fixes:
                break
            last = -10 ** 9
            applied = []
            for i, w in fixes:
                if i - last > 2 * MAXD + 8:
                    applied.append((i, w))
                    last = i
            for i, w in reversed(applied):
                if verbose:
                    print('hazard: nop %d before: %s' % (w, ins[i].text))
                k = w
                new = []
                while k > 0:
                    t = min(k, 16)
                    new.append(Ins('s_nop %d' % (t - 1)))
                    k -= t
                self.ins[i:i] = new
                inserted += 1
        return inserted

    def text(self):
        out = []
        for x in self.ins:
            if x.kind == 'label':
                out.append(x.text)
            else:
                out.append('    ' + x.text)
        return '\n'.join(out) + '\n'

    def max_regs(self):
        mv = ma = ms = -1
        for x in self.ins:
            for k, r in (x.rd | x.wr):
                if k == 'v':
                    mv = max(mv, r)
                elif k == 'a':
                    ma = max(ma, r)
                elif k == 's':
                    ms = max(ms, r)
        return mv + 1, ma + 1, ms + 1


def vr(base, n=1):
    return 'v%d' % base if n == 1 else 'v[%d:%d]' % (base, base + n - 1)


def ar(base, n=1):
    return 'a%d' % base if n == 1 else 'a[%d:%d]' % (base, base + n - 1)


def sr(base, n=1):
    return 's%d' % base if n == 1 else 's[%d:%d]' % (base, base + n - 1)


def kernel_text(name, asm, wg_y=False):
    asm.fix_hazards()
    nv, na, ns = asm.max_regs()
    nv = max(nv, 1)
    acc = (nv + 3) // 4 * 4
    nfv = acc + na if na else nv
    t = '.text\n.globl %s\n.p2align 8\n.type %s,@function\n%s:\n' % (name, name, name)
    t += asm.text()
    t += '.section .rodata,"a"\n.p2align 6\n.amdhsa_kernel %s\n' % name
    t += '  .amdhsa_next_free_vgpr %d\n' % nfv
    t += '  .amdhsa_next_free_sgpr %d\n' % max(ns, 16)
    t += '  .amdhsa_accum_offset %d\n' % acc
    t += '  .amdhsa_group_segment_fixed_size 0\n'
    t += '  .amdhsa_kernarg_size 88\n'
    t += '  .amdhsa_user_sgpr_count 2\n'
    t += '  .amdhsa_user_sgpr_kernarg_segment_ptr 1\n'
    t += '  .amdhsa_system_sgpr_workgroup_id_x 1\n'
    if wg_y:
        t += '  .amdhsa_system_sgpr_workgroup_id_y 1\n'
    t += '  .amdhsa_float_denorm_mode_32 3\n'
    t += '.end_amdhsa_kernel\n'
    return t


class Cnt:
    def __init__(self, a, name, maxn):
        self.a = a
        self.name = name
        self.maxn = maxn
        self.q = []

    def add(self, tag, n=1):
        self.q += [tag] * n

    def wait(self, *tags):
        last = -1
        for i, t in enumerate(self.q):
            if t in tags:
                last = i
        if last < 0:
            return
        n = len(self.q) - 1 - last
        n = min(n, self.maxn)
        self.a('s_waitcnt %s(%d)' % (self.name, n))
        self.q = self.q[len(self.q) - n:] if n else []

    def wait_all(self):
        self.a('s_waitcnt %s(0)' % self.name)
        self.q = []


def srd(a, d, lo, hi, nbytes, add=0):
    if add:
        a('s_add_u32 s%d, s%d, 0x%x' % (d, lo, add))
        a('s_addc_u32 s%d, s%d, 0' % (d + 1, hi))
    else:
        a('s_mov_b32 s%d, s%d' % (d, lo))
        a('s_mov_b32 s%d, s%d' % (d + 1, hi))
    a('s_and_b32 s%d, s%d, 0xffff' % (d + 1, d + 1))
    a('s_mov_b32 s%d, 0x%x' % (d + 2, nbytes))
    a('s_mov_b32 s%d, 0x20000' % (d + 3))


def interleave(main, fill, per=1, start=0):
    out = []
    fill = list(fill)
    for i, m in enumerate(main):
        out.append(m)
        if i >= start:
            for _ in range(per):
                if fill:
                    out.append(fill.pop(0))
    out += fill
    return out


class Stamps:
    def __init__(self, a, v, s_idx, st, on=True):
        self.a, self.v, self.si, self.st, self.on = a, v, s_idx, st, on

    def init(self):
        if not self.on:
            return
        self.a('s_mov_b32 s%d, 0' % self.si)
        self.a('v_mov_b32 v%d, 0' % self.v)

    LIGHT = False

    def stamp(self, real=False):
        if not self.on or (Stamps.LIGHT and not real):
            return
        a = self.a
        a('%s s[%d:%d]' % ('s_memrealtime' if real else 's_memtime', self.st, self.st + 1))
        a('s_waitcnt lgkmcnt(0)')
        a('s_mov_b32 m0, s%d' % self.si)
        a('s_nop 0')
        a('v_writelane_b32 v%d, s%d, m0' % (self.v, self.st))
        a('s_add_u32 s%d, s%d, 1' % (self.si, self.si))

    def rstamp(self, lane):
        if not self.on:
            return
        a = self.a
        a('s_memrealtime s[%d:%d]' % (self.st, self.st + 1))
        a('s_waitcnt lgkmcnt(0)')
        a('v_writelane_b32 v%d, s%d, %d' % (self.v, self.st, lane))

    DBG = None

    def dump(self, ws_lo, ws_hi, srd_base, s_slot, vtmp):
        if not self.on:
            return
        a = self.a
        if Stamps.DBG:
            for slot, lanes, pos in Stamps.DBG:
                L = a.newlabel('dbg')
                a('s_cmp_lg_u32 s%d, %d' % (s_slot, slot))
                a('s_cbranch_scc1 %s' % L)
                srd(a, srd_base, 64, 65, 256)
                a('v_readlane_b32 s%d, v%d, 0' % (self.st + 1, self.v))
                for k, ln in enumerate(lanes):
                    a('v_readlane_b32 s%d, v%d, %d' % (self.st, self.v, ln))
                    a('s_sub_u32 s%d, s%d, s%d' % (self.st, self.st, self.st + 1))
                    a('v_mov_b32 v%d, s%d' % (vtmp, self.st))
                    a('v_mov_b32 v%d, %d' % (vtmp + 1, 4 * (pos + k)))
                    a('buffer_store_dword v%d, v%d, s[%d:%d], 0 offen' % (vtmp, vtmp + 1, srd_base, srd_base + 3))
                a.label(L)
        srd(a, srd_base, ws_lo, ws_hi, 1 << 24, 0x8000000)
        a('s_lshl_b32 s%d, s%d, 8' % (self.st, s_slot))
        a('v_lshlrev_b32 v%d, 2, v0' % vtmp)
        a('buffer_store_dword v%d, v%d, s[%d:%d], s%d offen' % (self.v, vtmp, srd_base, srd_base + 3, self.st))
```

```python
from asmlib import *
from layout import *
from tables import *

R0 = 6
R1 = 38
R2 = 102
R3 = 150
R4 = 214
R5 = 246
MF = 'v_mfma_f32_32x32x16_bf16'


def rt_dma(a, s_q, S_RT, s_priv, T1, T2, V):
    a('s_cmp_eq_u32 s%d, 288' % s_q)
    a('s_cselect_b32 s%d, 0, s%d' % (T1, s_q))
    a('s_lshl_b32 s%d, s%d, 13' % (T1, T1))
    a('v_lshrrev_b32 v%d, 4, v0' % V)
    a('v_and_b32 v%d, 7, v0' % (V + 1))
    a('v_xor_b32 v%d, v%d, v%d' % (V, V, V + 1))
    a('v_and_b32 v%d, 0x38, v0' % (V + 1))
    a('v_or_b32 v%d, v%d, v%d' % (V + 1, V + 1, V))
    a('v_lshlrev_b32 v%d, 4, v%d' % (V + 1, V + 1))
    a('v_xor_b32 v%d, 64, v%d' % (V + 2, V + 1))
    for n in range(8):
        if n % 4 == 0:
            a('s_add_u32 s%d, s%d, %d' % (T2, T1, 1024 * n))
            a('s_add_u32 m0, s%d, %d' % (s_priv, 1024 * n))
        a('buffer_load_dwordx4 v%d, s[%d:%d], s%d offen offset:%d lds' % (
            V + 1 + (n & 1), S_RT, S_RT + 3, T2, 1024 * (n % 4)))


def fft_body(a, s_q, S_TAB, S_RT, S_WT, S_ZT, st, ld_flags='', st_flags='', lds=False, mid=None, sp=None, s_lbase=None, s_priv=None, post_w=None):
    vm = Cnt(a, 'vmcnt', 63)
    lg = Cnt(a, 'lgkmcnt', 15) if lds else vm
    T1, T2, T3 = st, st + 1, st + 2
    a('v_lshlrev_b32 v1, 4, v0')
    a('v_and_b32 v2, 31, v0')
    a('v_lshrrev_b32 v3, 5, v0')
    a('v_lshlrev_b32 v4, 7, v2')
    a('v_lshl_add_u32 v4, v3, 4, v4')
    a('v_lshrrev_b32 v5, 1, v2')
    a('v_mul_u32_u24 v5, %d, v5' % ZT_BLK)
    a('v_and_b32 v2, 1, v2')
    a('v_lshl_add_u32 v2, v2, 2, v3')
    a('s_and_b32 s%d, s%d, 1' % (T1, s_q))
    a('s_lshl_b32 s%d, s%d, 1' % (T1, T1))
    a('s_and_b32 s%d, s%d, 4' % (T2, s_q))
    a('s_or_b32 s%d, s%d, s%d' % (T1, T1, T2))
    a('v_xor_b32 v2, s%d, v2' % T1)
    a('v_xor_b32 v3, 2, v2')
    a('v_lshl_add_u32 v2, v2, 4, v5')
    a('v_lshl_add_u32 v3, v3, 4, v5')
    if lds:
        a('v_add_u32 v5, s%d, v1' % s_lbase)
    a('s_cmp_eq_u32 s%d, 288' % s_q)
    a('s_cselect_b32 s%d, 0, s%d' % (T1, s_q))
    a('s_lshl_b32 s%d, s%d, 13' % (T1, T1))

    def ldtab(dst, off, tag):
        if lds:
            a('ds_read_b128 %s, v5 offset:%d' % (vr(dst, 4), off))
            lg.add(tag)
            return
        a('s_mov_b32 s%d, %d' % (T3, off & ~0xfff))
        a('buffer_load_dwordx4 %s, v1, s[%d:%d], s%d offen offset:%d' % (vr(dst, 4), S_TAB, S_TAB + 3, T3, off & 0xfff))
        vm.add(tag)

    if lds:
        pass
    else:
        for t in range(2):
            a('s_add_u32 s%d, s%d, %d' % (T2, T1, 4096 * t))
            for j in range(4):
                a('buffer_load_dwordx4 %s, v4, s[%d:%d], s%d offen offset:%d %s' % (
                    vr(R0 + 16 * t + 4 * j, 4), S_RT, S_RT + 3, T2, 32 * j, ld_flags))
                vm.add('in')
    if lds:
        a('v_and_b32 v%d, 31, v0' % R5)
        a('v_lshrrev_b32 v%d, 5, v0' % (R5 + 1))
        a('v_bfe_u32 v%d, v0, 1, 3' % (R5 + 2))
        a('v_xor_b32 v%d, v%d, v%d' % (R5 + 1, R5 + 1, R5 + 2))
        a('v_lshlrev_b32 v%d, 7, v%d' % (R5, R5))
        a('v_add_u32 v%d, s%d, v%d' % (R5, s_priv, R5))
        for j in range(4):
            a('v_xor_b32 v%d, %d, v%d' % (R5 + 2, 2 * j, R5 + 1))
            a('v_lshl_add_u32 v%d, v%d, 4, v%d' % (R5 + 3 + j, R5 + 2, R5))
        for t in range(2):
            for j in range(4):
                a('ds_read_b128 %s, v%d offset:%d' % (vr(R0 + 16 * t + 4 * j, 4), R5 + 3 + j, 4096 * t))
                lg.add('inl')
        lg.wait('inl')
    for k in range(8):
        ldtab(R2 + 4 * k, FT_F1 + 1024 * k, 'f1')

    def ldtw(base, c):
        for k in range(4):
            ldtab(R4 + 16 * (c & 1) + 4 * k, base + 4096 * c + 1024 * k, 'tw%d' % c)

    ldtw(FT_TW1, 0)
    ldtw(FT_TW1, 1)
    if not lds:
        for k in range(16):
            ldtab(R3 + 4 * k, FT_C64 + 1024 * k, 'c64')
    vm.wait('in')
    Ln = a.newlabel('fft_n')
    Ld = a.newlabel('fft_d')
    a('s_cmp_eq_u32 s%d, 288' % s_q)
    a('s_cbranch_scc1 %s' % Ld)
    a('s_cmp_lg_u32 s%d, 0' % s_q)
    a('s_cbranch_scc1 %s' % Ln)
    for i in range(32):
        a('v_and_b32 v%d, 0xffff, v%d' % (R0 + i, R0 + i))
    a('s_branch %s' % Ln)
    a.label(Ld)
    for i in range(32):
        a('v_lshrrev_b32 v%d, 16, v%d' % (R0 + i, R0 + i))
    a.label(Ln)
    lg.wait('f1')
    Dre = lambda t: R1 + 16 * t
    Dim = lambda t: R1 + 32 + 16 * t
    if sp:
        sp.stamp()
    for t in range(2):
        for j in range(4):
            for part in range(2):
                acc = vr((Dre, Dim)[part](t), 16)
                a('%s %s, %s, %s, %s' % (MF, acc, vr(R0 + 16 * t + 4 * j, 4), vr(R2 + 16 * part + 4 * j, 4),
                                         '0' if j == 0 else acc))
    if lds:
        for k in range(16):
            ldtab(R3 + 4 * k, FT_C64 + 1024 * k, 'c64')
            if k == 7:
                lg.wait('tw1')
    if mid:
        mid(vm)
    a('s_lshl_b32 s%d, s%d, 13' % (T1, s_q))
    for u in range(2):
        a('s_add_u32 s%d, s%d, %d' % (T2, T1, 4096 * u))
        for g in range(4):
            a('buffer_load_dwordx4 %s, v1, s[%d:%d], s%d offen offset:%d %s' % (
                vr(R0 + 16 * u + 4 * g, 4), S_WT, S_WT + 3, T2, 1024 * g, ld_flags))
            vm.add('w')

    if post_w:
        post_w(vm)

    def cmul_pack(t, r2, cr, ci, negwhich):
        jf = 2 * t + (r2 >> 2)
        o = 4 * jf + (r2 & 3)
        r = 2 * r2
        x, y, c_, s_ = vr(Dre(t) + r, 2), vr(Dim(t) + r, 2), vr(cr(r), 2), vr(ci(r), 2)
        a('v_pk_mul_f32 %s, %s, %s' % (vr(R5, 2), x, c_))
        a('v_pk_mul_f32 %s, %s, %s' % (vr(R5 + 2, 2), x, s_))
        a('v_pk_fma_f32 %s, %s, %s, %s neg_lo:[1,0,0] neg_hi:[1,0,0]' % (vr(R5, 2), y, s_, vr(R5, 2)))
        a('v_pk_fma_f32 %s, %s, %s, %s' % (vr(R5 + 2, 2), y, c_, vr(R5 + 2, 2)))
        a('v_cvt_pk_bf16_f32 v%d, v%d, v%d' % (R2 + o, R5, R5 + 1))
        a('v_cvt_pk_bf16_f32 v%d, v%d, v%d' % (R2 + 16 + o, R5 + 2, R5 + 3))
        a('v_xor_b32 v%d, 0x80008000, v%d' % (R2 + 32 + o, R2 + 16 * negwhich + o))

    def twiddle(base, nxt, negwhich):
        for c in range(4):
            t = c >> 1
            lg.wait('tw%d' % c)
            b = R4 + 16 * (c & 1)
            for r2 in range(4 * (c & 1), 4 * (c & 1) + 4):
                cr = lambda r, b=b: b + 8 * ((r >> 2) & 1) + (r & 3)
                ci = lambda r, b=b: b + 8 * ((r >> 2) & 1) + 4 + (r & 3)
                cmul_pack(t, r2, cr, ci, negwhich)
            if c + 2 < 4:
                ldtw(base, c + 2)
            elif nxt is not None:
                ldtw(nxt, c - 2)

    twiddle(FT_TW1, FT_TW2, 0)
    Ore = lambda j: vr(R2 + 4 * j, 4)
    Oim = lambda j: vr(R2 + 16 + 4 * j, 4)
    One = lambda j: vr(R2 + 32 + 4 * j, 4)
    C64 = lambda u, j: vr(R3 + 16 * u + 4 * j, 4)
    S64 = lambda u, j: vr(R3 + 32 + 16 * u + 4 * j, 4)
    lg.wait('c64')
    if sp:
        sp.stamp()
    for u in range(2):
        for j in range(4):
            ar, ai = vr(Dre(u), 16), vr(Dim(u), 16)
            a('%s %s, %s, %s, %s' % (MF, ar, C64(u, j), Ore(j), '0' if j == 0 else ar))
            a('%s %s, %s, %s, %s' % (MF, ai, C64(u, j), Oim(j), '0' if j == 0 else ai))
            a('%s %s, %s, %s, %s' % (MF, ar, S64(u, j), Oim(j), ar))
            a('%s %s, %s, %s, %s' % (MF, ai, S64(u, j), One(j), ai))
    vm.wait('w')
    for u in range(2):
        for r2 in range(8):
            for e in range(2):
                w = R0 + 16 * u + 2 * r2 + e
                a('v_lshlrev_b32 v%d, 16, v%d' % (R5 + 4 + e, w))
                a('v_and_b32 v%d, 0xffff0000, v%d' % (R5 + 6 + e, w))
            cmul_pack(u, r2, lambda r: R5 + 4 + (r & 1), lambda r: R5 + 6 + (r & 1), 1)
    for k in range(4):
        ldtab(R0 + 4 * k, FT_C32 + 1024 * k, 'c32')
    if sp:
        sp.stamp()
    for v in range(2):
        for j in range(4):
            ar, ai = vr(Dre(v), 16), vr(Dim(v), 16)
            a('%s %s, %s, %s, %s' % (MF, ar, Ore(j), C64(v, j), '0' if j == 0 else ar))
            a('%s %s, %s, %s, %s' % (MF, ai, Oim(j), C64(v, j), '0' if j == 0 else ai))
            a('%s %s, %s, %s, %s' % (MF, ar, One(j), S64(v, j), ar))
            a('%s %s, %s, %s, %s' % (MF, ai, Ore(j), S64(v, j), ai))
    twiddle(FT_TW2, None, 1)
    lg.wait('c32')
    C32 = lambda j: vr(R0 + 4 * j, 4)
    S32 = lambda j: vr(R0 + 8 + 4 * j, 4)
    if sp:
        sp.stamp()
    for v in range(2):
        for j in range(2):
            ar, ai = vr(Dre(v), 16), vr(Dim(v), 16)
            a('%s %s, %s, %s, %s' % (MF, ar, C32(j), Ore(2 * v + j), '0' if j == 0 else ar))
            a('%s %s, %s, %s, %s' % (MF, ai, C32(j), Oim(2 * v + j), '0' if j == 0 else ai))
            a('%s %s, %s, %s, %s' % (MF, ar, S32(j), One(2 * v + j), ar))
            a('%s %s, %s, %s, %s' % (MF, ai, S32(j), Ore(2 * v + j), ai))
    if sp:
        sp.stamp()
    a('s_lshl_b32 s%d, s%d, 8' % (T1, s_q))
    n = 0
    if lds:
        a('v_bfe_u32 v%d, v0, 1, 4' % R5)
        a('v_mul_u32_u24 v%d, %d, v%d' % (R5 + 1, ZT_BLK - 256, R5))
        a('v_sub_u32 v2, v2, v%d' % (R5 + 1))
        a('v_sub_u32 v3, v3, v%d' % (R5 + 1))
        a('v_add_u32 v2, s%d, v2' % s_priv)
        a('v_add_u32 v3, s%d, v3' % s_priv)
    for v in range(2):
        for c in range(2):
            src = (Dre, Dim)[c](v)
            for gp in range(2):
                o = R3 + 4 * n
                n += 1
                for d in range(4):
                    a('v_cvt_pk_bf16_f32 v%d, v%d, v%d' % (o + d, src + 8 * gp + 2 * d, src + 8 * gp + 2 * d + 1))
                a('v_permlane32_swap_b32 v%d, v%d' % (o, o + 2))
                a('v_permlane32_swap_b32 v%d, v%d' % (o + 1, o + 3))
                if lds:
                    a('ds_write_b128 v%d, %s offset:%d' % (2 + gp, vr(o, 4), 4096 * v + 128 * c))
                else:
                    a('s_add_u32 s%d, s%d, %d' % (T2, T1, 16 * ZT_BLK * v))
                    a('buffer_store_dwordx4 %s, v%d, s[%d:%d], s%d offen offset:%d %s' % (
                        vr(o, 4), 2 + gp, S_ZT, S_ZT + 3, T2, 128 * c, st_flags))
    if lds:
        a('v_add_u32 v%d, s%d, v1' % (R5, s_priv))
        a('v_lshrrev_b32 v%d, 4, v0' % (R5 + 1))
        a('v_mul_u32_u24 v%d, %d, v%d' % (R5 + 1, ZT_BLK, R5 + 1))
        a('v_and_b32 v%d, 15, v0' % (R5 + 2))
        a('v_lshl_add_u32 v%d, v%d, 4, v%d' % (R5 + 1, R5 + 2, R5 + 1))
        a('s_waitcnt lgkmcnt(0)')
        for k in range(8):
            a('ds_read_b128 %s, v%d offset:%d' % (vr(R1 + 4 * k, 4), R5, 1024 * k))
        for k in range(8):
            a('s_waitcnt lgkmcnt(%d)' % (7 - k))
            a('s_add_u32 s%d, s%d, %d' % (T2, T1, 4 * ZT_BLK * k))
            a('buffer_store_dwordx4 %s, v%d, s[%d:%d], s%d offen %s' % (
                vr(R1 + 4 * k, 4), R5 + 1, S_ZT, S_ZT + 3, T2, st_flags))
```

```python
import struct
from asmlib import *
from layout import *
MODE = ''
FH = 4

NH = 18
NC = 5
CSLOT = [2, 3, 0, 2, 3]
WSL = [73728, 98304, 122880, 49152]
XSL = [0, 16384, 32768, 147456]
XCHB = WSL[1]
NST = NH + NC
SLOT = 40960
NSLOT = 4
G2_LDS = 163840
SPIN_MAX = 20000
MF = 'v_mfma_f32_16x16x32_bf16'

S_H, S_W2, S_ZT, S_TI, S_PT, S_XI, S_OUT, S_B2, S_FX = 8, 12, 16, 20, 24, 28, 32, 80, 88
S_WAVE, S_MT, S_NT, S_KS, S_WM, S_WN = 36, 39, 40, 41, 37, 38
S_T1, S_T2, S_T3, S_T4, S_I, S_SLOT, S_OA, S_OB = 52, 53, 54, 56, 43, 44, 45, 46
S_LA, S_LB, S_NONCE, S_SPIN, S_GRP, S_LC = 47, 48, 57, 59, 49, 50
S_DBG = 84


def f32h(x):
    return '0x%08x' % struct.unpack('<I', struct.pack('<f', x))[0]


def decode_ids(a, s_mt, s_ks, s_u, t1, t2):
    a('s_and_b32 s%d, s2, 7' % t1)
    a('s_lshr_b32 s%d, s2, 3' % t2)
    a('s_lshr_b32 s%d, s%d, 1' % (s_ks, t1))
    a('s_and_b32 s%d, s%d, 1' % (t1, t1))
    a('s_lshl_b32 s%d, s%d, 3' % (t1, t1))
    a('s_lshr_b32 s%d, s%d, 2' % (s_mt, t2))
    a('s_add_u32 s%d, s%d, s%d' % (s_mt, s_mt, t1))
    a('s_and_b32 s%d, s%d, 3' % (s_u, t2))


def g2_setup(a):
    a('s_memrealtime s[76:77]')
    a('s_load_dwordx2 s[4:5], s[0:1], %d' % KA_X)
    a('s_load_dwordx4 s[60:63], s[0:1], %d' % KA_W2)
    a('s_load_dwordx4 s[64:67], s[0:1], %d' % KA_DBG)
    a('s_load_dwordx2 s[6:7], s[0:1], %d' % KA_OUT)
    a('v_lshrrev_b32 v1, 6, v0')
    a('v_and_b32 v0, 63, v0')
    decode_ids(a, S_MT, S_KS, S_NT, S_T1, S_T2)
    a('v_readfirstlane_b32 s%d, v1' % S_WAVE)
    a('s_waitcnt lgkmcnt(0)')
    srd(a, S_DBG, 64, 65, 256)
    Ln = a.newlabel('g2_nn')
    a('s_or_b32 s%d, s2, s%d' % (S_T1, S_WAVE))
    a('s_cmp_lg_u32 s%d, 0' % S_T1)
    a('s_cbranch_scc1 %s' % Ln)
    a('s_or_b32 s%d, s76, 1' % S_T1)
    a('v_mov_b32 v2, s%d' % S_T1)
    a('v_mov_b32 v3, 0')
    a('buffer_store_dword v2, v3, s[%d:%d], 0 offen sc1' % (S_DBG, S_DBG + 3))
    a.label(Ln)
    a('s_cmp_lt_u32 s%d, 1' % S_NT)
    a('s_cbranch_scc1 g2_exit')
    a('s_sub_u32 s%d, s%d, 1' % (S_NT, S_NT))
    a('s_mov_b32 s%d, 0' % S_NONCE)


def get_nonce(a):
    Lw = a.newlabel('g2_nw')
    Lg = a.newlabel('g2_ng')
    a('s_cmp_lg_u32 s%d, 0' % S_NONCE)
    a('s_cbranch_scc1 %s' % Lg)
    a('s_mov_b32 s%d, 0' % S_SPIN)
    a('v_mov_b32 v13, 0')
    a.label(Lw)
    a('buffer_load_dword v12, v13, s[%d:%d], 0 offen sc1' % (S_DBG, S_DBG + 3))
    a('s_waitcnt vmcnt(0)')
    a('v_readfirstlane_b32 s%d, v12' % S_NONCE)
    a('s_add_u32 s%d, s%d, 1' % (S_SPIN, S_SPIN))
    a('s_cmp_lg_u32 s%d, 0' % S_NONCE)
    a('s_cbranch_scc1 %s' % Lg)
    a('s_sleep 4')
    a('s_cmp_lt_u32 s%d, %d' % (S_SPIN, SPIN_MAX))
    a('s_cbranch_scc1 %s' % Lw)
    a.label(Lg)


def g2_body(a, instr=False, hooks=None):
    hooks = hooks or {}
    sp = Stamps(a, 255, 70, 72, instr)
    a('s_getpc_b64 s[68:69]')
    a('s_add_u32 s68, s68, tab_Tinv@rel32@lo+4')
    a('s_addc_u32 s69, s69, tab_Tinv@rel32@hi+12')
    srd(a, S_H, 66, 67, S * F * 2, WS_H)
    srd(a, S_W2, 60, 61, F * D * 2)
    srd(a, S_ZT, 66, 67, 32 * ZT_BLK, WS_ZT)
    srd(a, S_TI, 68, 69, D * D * 2)
    srd(a, S_PT, 66, 67, 48 * 16 * 24576, WS_PART)
    srd(a, S_XI, 4, 5, S * D * 2)
    srd(a, S_OUT, 6, 7, S * D * 2)
    srd(a, S_B2, 62, 63, D * 2)
    srd(a, S_FX, 66, 67, 256 * 64, WS_FLAGX)
    a('s_mul_i32 s%d, s%d, 3' % (S_GRP, S_MT))
    a('s_add_u32 s%d, s%d, s%d' % (S_GRP, S_GRP, S_NT))
    Lcomp = a.newlabel('g2_comp')
    a('s_cmp_lt_u32 s%d, 4' % S_WAVE)
    a('s_cbranch_scc1 %s' % Lcomp)

    a('s_sub_u32 s%d, s%d, 4' % (S_T4, S_WAVE))
    a('s_mul_i32 s%d, s%d, 72' % (S_T2, S_MT))
    a('s_mul_i32 s%d, s%d, %d' % (S_T3, S_KS, NH))
    a('s_add_u32 s%d, s%d, s%d' % (S_T2, S_T2, S_T3))
    a('s_lshl_b32 s%d, s%d, 14' % (S_T2, S_T2))
    a('s_lshl_b32 s%d, s%d, 12' % (S_T1, S_T4))
    a('s_add_u32 s%d, s%d, s%d' % (S_T2, S_T2, S_T1))
    a('v_lshl_add_u32 v2, v0, 4, s%d' % S_T2)
    a('v_lshrrev_b32 v12, 3, v0')
    a('v_mul_u32_u24 v12, %d, v12' % (D * 2))
    a('v_bfe_u32 v13, v0, 4, 1')
    a('v_lshlrev_b32 v13, 1, v13')
    a('v_and_b32 v14, 7, v0')
    a('v_xor_b32 v13, v13, v14')
    a('v_lshl_add_u32 v14, v13, 4, v12')
    a('v_xor_b32 v13, 4, v13')
    a('v_lshl_add_u32 v15, v13, 4, v12')
    a('s_mul_i32 s%d, s%d, 6' % (S_T1, S_T4))
    a('s_mul_i32 s%d, s%d, 384' % (S_LA, S_NT))
    for i in range(6):
        a('s_add_u32 s%d, s%d, %d' % (S_T2, S_T1, i))
        a('s_and_b32 s%d, s%d, 7' % (S_T3, S_T2))
        a('s_mul_i32 s%d, s%d, %d' % (S_T3, S_T3, 8 * D * 2))
        a('s_lshr_b32 s%d, s%d, 3' % (S_T2, S_T2))
        a('s_lshl_b32 s%d, s%d, 7' % (S_T2, S_T2))
        a('s_add_u32 s%d, s%d, s%d' % (S_T3, S_T3, S_T2))
        a('s_add_u32 s%d, s%d, s%d' % (S_T3, S_T3, S_LA))
        a('v_add_u32 v%d, s%d, v%d' % (20 + i, S_T3, 14 + (i & 1)))
    a('s_lshl_b32 s%d, s%d, 1' % (S_T2, S_MT))
    a('s_and_b32 s%d, s%d, 1' % (S_T3, S_KS))
    a('s_add_u32 s%d, s%d, s%d' % (S_T2, S_T2, S_T3))
    a('s_mul_i32 s%d, s%d, %d' % (S_T2, S_T2, ZT_BLK))
    a('s_lshl_b32 s%d, s%d, 11' % (S_I, S_T4))
    a('s_add_u32 s%d, s%d, s%d' % (S_T2, S_T2, S_I))
    a('v_lshl_add_u32 v26, v0, 4, s%d' % S_T2)
    a('s_lshl_b32 s%d, s%d, 1' % (S_T2, S_NT))
    a('s_lshr_b32 s%d, s%d, 1' % (S_T3, S_KS))
    a('s_add_u32 s%d, s%d, s%d' % (S_T2, S_T2, S_T3))
    a('s_mul_i32 s%d, s%d, %d' % (S_T2, S_T2, 576 * 192))
    a('s_mul_i32 s%d, s%d, 3072' % (S_LC, S_T4))
    a('s_add_u32 s%d, s%d, s%d' % (S_T2, S_T2, S_LC))
    a('v_lshl_add_u32 v27, v0, 4, s%d' % S_T2)
    a('s_lshl_b32 s%d, s%d, 12' % (S_LA, S_T4))
    a('s_mul_i32 s%d, s%d, 6144' % (S_LB, S_T4))
    a('s_mul_i32 s%d, s%d, %d' % (S_OB, S_KS, NH * 64 * D * 2))
    vm = Cnt(a, 'vmcnt', 63)

    def issue(st):
        if st < NH:
            a('s_mov_b32 s%d, %d' % (S_T1, 16384 * st))
            a('s_add_u32 s%d, s%d, %d' % (S_T2, S_OB, 64 * D * 2 * st))
            for i in range(6):
                a('s_add_u32 m0, s%d, %d' % (S_LB, WSL[st % 4] + 1024 * i))
                a('buffer_load_dwordx4 v%d, s[%d:%d], s%d offen lds' % (20 + i, S_W2, S_W2 + 3, S_T2))
                vm.add(st)
            a('s_add_u32 m0, s%d, %d' % (S_LA, XSL[st % 4]))
            for i in range(4):
                a('buffer_load_dwordx4 v2, s[%d:%d], s%d offen offset:%d lds' % (S_H, S_H + 3, S_T1, 1024 * i))
                vm.add(st)
        else:
            c = st - NH
            for hv in range(2 if c < 4 else 1):
                a('s_mov_b32 s%d, %d' % (S_T2, 12288 * (2 * c + hv)))
                a('s_add_u32 m0, s%d, %d' % (S_LC, WSL[CSLOT[c]] + 12288 * hv))
                for i in range(3):
                    a('buffer_load_dwordx4 v27, s[%d:%d], s%d offen offset:%d lds' % (S_TI, S_TI + 3, S_T2, 1024 * i))
                    vm.add(st)
            if c >= 3:
                issue_z(c)

    def issue_z(c):
        for hv in range(2 if c < 4 else 1):
            a('s_mov_b32 s%d, %d' % (S_T1, 8192 * (2 * c + hv)))
            a('s_add_u32 m0, s%d, %d' % (S_I, XSL[CSLOT[c]] + 8192 * hv))
            for i in range(2):
                a('buffer_load_dwordx4 v26, s[%d:%d], s%d offen offset:%d lds' % (S_ZT, S_ZT + 3, S_T1, 1024 * i))
                vm.add(NH + c)

    mega = 'mega' in hooks
    S_RDY = S_SLOT
    S_PG, S_FZ = 96, 92

    def poll_issue(v, z, fl='sc1'):
        if z:
            a('buffer_load_dwordx4 v[40:43], v31, s[%d:%d], 0 offen %s' % (S_FZ, S_FZ + 3, fl))
            a('buffer_load_dword v44, v38, s[%d:%d], 0 offen %s' % (S_FZ, S_FZ + 3, fl))
        else:
            a('buffer_load_dword v%d, v30, s[%d:%d], s%d offen %s' % (v, S_PG, S_PG + 3, S_OA, fl))

    def poll_eval(v):
        a('v_subrev_u32 v%d, s%d, v%d' % (v, S_NONCE, v))
        a('v_cmp_gt_u32 vcc, 16, v%d' % v)
        a('v_cndmask_b32 v%d, 0, v%d, vcc' % (v, v))
        a('v_lshl_add_u32 v%d, v%d, 2, v29' % (v, v))
        a('v_min_u32_dpp v%d, v%d, v%d quad_perm:[1,0,3,2] row_mask:0xf bank_mask:0xf' % (v, v, v))
        a('v_min_u32_dpp v%d, v%d, v%d quad_perm:[2,3,0,1] row_mask:0xf bank_mask:0xf' % (v, v, v))
        a('v_readfirstlane_b32 s%d, v%d' % (S_T1, v))
        a('s_max_u32 s%d, s%d, s%d' % (S_RDY, S_RDY, S_T1))

    def need_h(st):
        Lok = a.newlabel('g2_hok')
        Lre = a.newlabel('g2_hre')
        a('s_add_u32 s%d, s%d, %d' % (S_T3, S_T4, st))
        a('s_cmp_lt_u32 s%d, s%d' % (S_T3, S_RDY))
        a('s_cbranch_scc1 %s' % Lok)
        a('s_mov_b32 s%d, 0' % S_SPIN)
        a.label(Lre)
        poll_issue(36, False)
        a('s_waitcnt vmcnt(0)')
        poll_eval(36)
        a('s_add_u32 s%d, s%d, 1' % (S_SPIN, S_SPIN))
        a('s_cmp_lt_u32 s%d, s%d' % (S_T3, S_RDY))
        a('s_cbranch_scc1 %s' % Lok)
        a('s_sleep 2')
        a('s_cmp_lt_u32 s%d, %d' % (S_SPIN, SPIN_MAX))
        a('s_cbranch_scc1 %s' % Lre)
        a.label(Lok)

    def need_z(v):
        Lok = a.newlabel('g2_zok')
        Lre = a.newlabel('g2_zre')
        a('s_mov_b32 s%d, 0' % S_SPIN)
        a.label(Lre)
        for r in range(40, 45):
            a('v_xor_b32 v%d, s%d, v%d' % (r, S_NONCE, r))
        a('v_or3_b32 v40, v40, v41, v42')
        a('v_or3_b32 v40, v40, v43, v44')
        a('v_cmp_ne_u32 vcc, 0, v40')
        a('s_add_u32 s%d, s%d, 1' % (S_SPIN, S_SPIN))
        a('s_nop 3')
        a('s_cbranch_vccz %s' % Lok)
        a('s_sleep 8')
        poll_issue(v, True)
        a('s_waitcnt vmcnt(0)')
        a('s_cmp_lt_u32 s%d, %d' % (S_SPIN, SPIN_MAX))
        a('s_cbranch_scc1 %s' % Lre)
        a.label(Lok)

    if mega:
        srd(a, S_FZ, 66, 67, 2048, WS_FLAGZ)
        a('v_min_u32 v38, 32, v0')
        a('v_lshlrev_b32 v38, 2, v38')
        a('v_add_u32 v38, 1024, v38')
        a('v_and_b32 v29, 3, v0')
        a('v_lshlrev_b32 v30, 2, v29')
        a('v_lshlrev_b32 v31, 4, v0')
        a('s_lshl_b32 s%d, s%d, 2' % (S_OA, S_MT))
        a('s_add_u32 s%d, s%d, s%d' % (S_OA, S_OA, S_KS))
        a('s_lshl_b32 s%d, s%d, 6' % (S_OA, S_OA))
        a('s_lshl_b32 s%d, s%d, 2' % (S_T1, S_MT))
        a('s_add_u32 s%d, s%d, s%d' % (S_T1, S_T1, S_T4))
        a('s_mul_i32 s%d, s%d, %d' % (S_T2, S_T1, D * 2))
        a('s_mul_i32 s%d, s%d, 384' % (S_T3, S_NT))
        a('s_add_u32 s%d, s%d, s%d' % (S_T2, S_T2, S_T3))
        a('s_add_u32 s%d, s%d, s%d' % (S_T2, S_T2, S_OB))
        a('s_add_u32 s%d, s%d, %d' % (S_T2, S_T2, 5 * 64 * D * 2))
        a('s_add_u32 s100, s60, s%d' % S_T2)
        a('s_addc_u32 s101, s61, 0')
        a('s_min_u32 s%d, s%d, 60' % (S_T1, S_T1))
        a('s_mul_i32 s%d, s%d, %d' % (S_T1, S_T1, 14 * 128))
        a('s_lshl_b32 s%d, s%d, 1' % (S_T2, S_NT))
        a('s_lshr_b32 s%d, s%d, 1' % (S_T3, S_KS))
        a('s_add_u32 s%d, s%d, s%d' % (S_T2, S_T2, S_T3))
        a('s_mul_i32 s%d, s%d, %d' % (S_T2, S_T2, 576 * 192))
        a('s_add_u32 s%d, s%d, s%d' % (S_T2, S_T2, S_T1))
        a('s_add_u32 s74, s68, s%d' % S_T2)
        a('s_addc_u32 s75, s69, 0')
        a('s_cmp_eq_u32 s%d, 0' % S_KS)
        a('s_cselect_b32 s%d, 3, 2' % S_T4)
        a('s_mov_b32 s%d, s3' % S_RDY)
        sp.rstamp(56)

    POLLS = (5, 12)
    TA = 5

    def issue2(st):
        if mega:
            if st < NH:
                need_h(st)
        issue(st)
        if mega and st in POLLS:
            poll_issue(32, False)
            vm.add(st)
        if mega and 'tg' in MODE:
            for ts in ([5, 6, 7, 8] if st == 3 else [st + TA]):
              if 5 <= ts < NH:
                for k in range(6):
                    a('s_load_dword s%d, s[100:101], 0x%x' % (58, 64 * D * 2 * (ts - 5) + 64 * k))
              elif NH <= ts < NH + 5:
                for k in range(6):
                    a('s_load_dword s%d, s[74:75], 0x%x' % (58, 64 * (6 * (ts - NH) + k)))
        if mega and st == NH - 1:
            poll_issue(37, True, '')
            vm.add(st, 2)

    M = 48
    PV, BV, BF, T, E = 72, 108, 116, 128, 132
    for i in range(NH + 4):
        if i == NH + 3:
            vm.wait(i, i + 1)
        elif i == 1:
            a('s_waitcnt vmcnt(10)')
        else:
            vm.wait(i)
        if mega and i == NH - 1:
            Lz = a.newlabel('g2_zs')
            a('s_cmp_lg_u32 s%d, 4' % S_WAVE)
            a('s_cbranch_scc1 %s' % Lz)
            sp.rstamp(58)
            need_z(37)
            sp.rstamp(59)
            a.label(Lz)
        a('s_barrier')
        sp.stamp()
        if mega and i in POLLS:
            poll_eval(32)
        if i == NH - 1:
            for c in range(3):
                issue_z(c)
        if i <= NH - 1:
            issue2(i - 1 + NSLOT)
        elif i in (NH + 1, NH + 2):
            issue2(i + 2)
        if i == NH + 1:
            a('s_sub_u32 s%d, s%d, 4' % (S_T4, S_WAVE))
            a('s_mul_i32 s%d, s%d, 6144' % (S_T1, S_T4))
            a('s_add_u32 s%d, s%d, %d' % (S_T1, S_T1, XCHB))
            a('v_lshl_add_u32 v45, v0, 4, s%d' % S_T1)
            for k in range(6):
                a('ds_read_b128 %s, v45 offset:%d' % (vr(M + 4 * k, 4), 1024 * k))
            a('s_lshl_b32 s%d, s%d, 1' % (S_T2, S_NT))
            a('s_lshr_b32 s%d, s%d, 1' % (S_T3, S_KS))
            a('s_add_u32 s%d, s%d, s%d' % (S_T2, S_T2, S_T3))
            a('s_mul_i32 s%d, s%d, 192' % (S_T2, S_T2))
            a('s_lshr_b32 s%d, s%d, 1' % (S_T3, S_T4))
            a('s_mul_i32 s%d, s%d, 96' % (S_T3, S_T3))
            a('s_add_u32 s%d, s%d, s%d' % (S_T2, S_T2, S_T3))
            a('v_lshrrev_b32 v46, 4, v0')
            a('v_lshl_add_u32 v46, v46, 3, s%d' % S_T2)
            for n3 in range(3):
                a('buffer_load_dwordx2 %s, v46, s[%d:%d], 0 offen offset:%d' % (vr(BV + 2 * n3, 2), S_B2, S_B2 + 3, 32 * n3))
                vm.add('b2')
    get_nonce(a)
    a('s_lshl_b32 s%d, s%d, 2' % (S_T1, S_GRP))
    a('s_add_u32 s%d, s%d, s%d' % (S_T1, S_T1, S_KS))
    a('s_lshl_b32 s%d, s%d, 4' % (S_LB, S_T1))
    a('v_and_b32 v14, 3, v0')
    a('v_lshlrev_b32 v14, 2, v14')
    a('s_mul_i32 s%d, s%d, %d' % (S_T1, S_T1, 4 * 12288))
    a('s_lshr_b32 s%d, s%d, 1' % (S_T2, S_T4))
    a('s_mul_i32 s%d, s%d, 3072' % (S_T2, S_T2))
    a('s_add_u32 s%d, s%d, s%d' % (S_T1, S_T1, S_T2))
    a('s_and_b32 s%d, s%d, 1' % (S_T2, S_T4))
    a('s_mul_i32 s%d, s%d, 6144' % (S_T2, S_T2))
    a('s_add_u32 s%d, s%d, s%d' % (S_LA, S_T1, S_T2))
    a('v_lshlrev_b32 v47, 4, v0')
    for n3 in range(3):
        for d in range(2):
            a('v_lshlrev_b32 v%d, 16, v%d' % (BF + 4 * n3 + 2 * d, BV + 2 * n3 + d))
            a('v_and_b32 v%d, 0xffff0000, v%d' % (BF + 4 * n3 + 2 * d + 1, BV + 2 * n3 + d))
    a('s_waitcnt lgkmcnt(0)')
    for k in range(24):
        a('v_add_f32 v%d, v%d, v%d' % (M + k, M + k, BF + (k % 12)))
    Lok = a.newlabel('g2_fok')
    Lre = a.newlabel('g2_fre')
    a('s_mov_b32 s%d, 0' % S_SPIN)
    a.label(Lre)
    a('buffer_load_dword v13, v14, s[%d:%d], s%d offen sc1' % (S_FX, S_FX + 3, S_LB))
    a('s_waitcnt vmcnt(0)')
    a('v_cmp_ne_u32 vcc, s%d, v13' % S_NONCE)
    a('s_add_u32 s%d, s%d, 1' % (S_SPIN, S_SPIN))
    a('s_nop 3')
    a('s_cbranch_vccz %s' % Lok)
    a('s_sleep 2')
    a('s_cmp_lt_u32 s%d, %d' % (S_SPIN, SPIN_MAX))
    a('s_cbranch_scc1 %s' % Lre)
    a.label(Lok)
    sp.stamp()
    for n3 in range(3):
        for z in range(3):
            a('s_add_u32 s%d, s%d, %d' % (S_T2, S_KS, z + 1))
            a('s_and_b32 s%d, s%d, 3' % (S_T2, S_T2))
            a('s_mul_i32 s%d, s%d, 12288' % (S_T2, S_T2))
            a('s_add_u32 s%d, s%d, s%d' % (S_T2, S_T2, S_LA))
            a('buffer_load_dwordx4 %s, v47, s[%d:%d], s%d offen offset:%d sc1' % (
                vr(PV + 12 * z + 4 * n3, 4), S_PT, S_PT + 3, S_T2, 1024 * n3))
    nl2e = f32h(-1.4426950408889634)
    for n3 in range(3):
        a('s_waitcnt vmcnt(%d)' % (3 * (2 - n3)))
        for rt2 in range(2):
            m = [M + 12 * rt2 + 4 * n3 + r for r in range(4)]
            e = [E + r for r in range(4)]
            for z in range(3):
                for d in range(2):
                    p = PV + 12 * z + 4 * n3 + 2 * rt2 + d
                    a('v_lshlrev_b32 v%d, 16, v%d' % (e[2 * d], p))
                    a('v_and_b32 v%d, 0xffff0000, v%d' % (e[2 * d + 1], p))
                for r in range(4):
                    a('v_add_f32 v%d, v%d, v%d' % (m[r], m[r], e[r]))
            for d in range(2):
                a('v_cvt_pk_bf16_f32 v%d, v%d, v%d' % (T + d, m[2 * d], m[2 * d + 1]))
            for d in range(2):
                a('v_lshlrev_b32 v%d, 16, v%d' % (m[2 * d], T + d))
                a('v_and_b32 v%d, 0xffff0000, v%d' % (m[2 * d + 1], T + d))
            for r in range(4):
                a('v_mul_f32 v%d, %s, v%d' % (e[r], nl2e, m[r]))
            for r in range(4):
                a('v_exp_f32 v%d, v%d' % (e[r], e[r]))
            for r in range(4):
                a('v_add_f32 v%d, 1.0, v%d' % (e[r], e[r]))
            for r in range(4):
                a('v_rcp_f32 v%d, v%d' % (e[r], e[r]))
            for r in range(4):
                a('v_mul_f32 v%d, v%d, v%d' % (m[r], m[r], e[r]))
            for d in range(2):
                a('v_cvt_pk_bf16_f32 v%d, v%d, v%d' % (136 + 2 * rt2 + d, m[2 * d], m[2 * d + 1]))
        a('ds_write_b128 v45, v[136:139] offset:%d' % (1024 * n3))
    a('s_waitcnt lgkmcnt(0)')
    sp.stamp()
    a('s_barrier')
    if instr:
        a('s_lshl_b32 s71, s2, 3')
        a('s_add_u32 s71, s71, s%d' % S_WAVE)
        sp.dump(66, 67, S_H, 71, 1)
    a('s_endpgm')

    a.label(Lcomp)
    if instr and 'nostampinit' not in hooks:
        sp.init()
        a('v_writelane_b32 v255, s76, 62')
    sp.stamp()
    a('s_and_b32 s%d, s%d, 1' % (S_WM, S_WAVE))
    a('s_lshr_b32 s%d, s%d, 1' % (S_WN, S_WAVE))
    VI, VQ = 30, 31
    a('v_and_b32 v%d, 15, v0' % VI)
    a('v_lshrrev_b32 v%d, 4, v0' % VQ)
    a('v_lshrrev_b32 v12, 1, v%d' % VI)
    a('v_xor_b32 v12, v12, v%d' % VQ)
    a('s_lshl_b32 s%d, s%d, 13' % (S_T1, S_WM))
    a('v_lshlrev_b32 v13, 7, v%d' % VI)
    a('v_add_u32 v13, s%d, v13' % S_T1)
    a('v_lshl_add_u32 v2, v12, 4, v13')
    a('v_xor_b32 v12, 4, v12')
    a('v_lshl_add_u32 v3, v12, 4, v13')
    a('v_bfe_u32 v12, v0, 2, 2')
    a('v_and_b32 v13, 3, v0')
    a('v_lshl_add_u32 v14, v%d, 3, v12' % VQ)
    a('v_lshrrev_b32 v16, 1, v13')
    a('v_and_b32 v29, 1, v13')
    a('v_and_b32 v17, 1, v%d' % VQ)
    a('v_lshlrev_b32 v17, 1, v17')
    a('v_mul_u32_u24 v15, 192, v14')
    a('v_lshl_add_u32 v15, v29, 3, v15')
    a('s_mul_i32 s%d, s%d, 6' % (S_T1, S_WN))
    for n3 in range(3):
        a('v_add3_u32 v1, v16, s%d, %d' % (S_T1, 2 * n3))
        a('v_xor_b32 v1, v1, v17')
        a('v_lshl_add_u32 v%d, v1, 4, v15' % (18 + n3))
    a('v_lshrrev_b32 v1, 1, v12')
    a('v_add_u32 v17, v17, v1')
    a('v_lshlrev_b32 v17, 1, v17')
    a('v_lshlrev_b32 v15, 7, v14')
    a('v_lshl_add_u32 v15, v29, 3, v15')
    a('s_mul_i32 s%d, s%d, 6' % (S_T1, S_WN))
    for n6 in range(6):
        a('s_add_u32 s%d, s%d, %d' % (S_T2, S_T1, n6))
        a('s_and_b32 s%d, s%d, 3' % (S_T3, S_T2))
        a('s_lshl_b32 s%d, s%d, 1' % (S_T3, S_T3))
        a('s_lshr_b32 s%d, s%d, 2' % (S_T2, S_T2))
        a('s_lshl_b32 s%d, s%d, 13' % (S_T2, S_T2))
        a('v_add_u32 v1, s%d, v16' % S_T3)
        a('v_xor_b32 v1, v1, v17')
        a('v_lshl_add_u32 v1, v1, 4, v15')
        a('v_add_u32 v%d, s%d, v1' % (4 + n6, S_T2))
    a('v_lshlrev_b32 v15, 7, v14')
    a('v_lshl_add_u32 v15, v29, 3, v15')
    a('s_lshl_b32 s%d, s%d, 2' % (S_T1, S_WM))
    for rt2 in range(2):
        a('v_add3_u32 v1, v16, s%d, %d' % (S_T1, 2 * rt2))
        a('v_xor_b32 v1, v1, v17')
        a('v_lshl_add_u32 v%d, v1, 4, v15' % (10 + rt2))
    XA, WA = 21, 23
    FB = [32, 72]
    ACC = 112
    SAC = 208

    def set_addr(cstage):
        o = []
        for j in range(2):
            o.append('v_add_u32 v%d, s%d, v%d' % (XA + j, S_LA, (10 if cstage else 2) + j))
        for n in range(3 if cstage else 6):
            o.append('v_add_u32 v%d, s%d, v%d' % (WA + n, S_LB, (18 if cstage else 4) + n))
        o.append('s_add_u32 s%d, s%d, 1\ns_and_b32 s%d, s%d, 3\ns_lshl_b32 s%d, s%d, 14\ns_add_u32 s%d, s%d, 24576\n'
                 's_cmp_eq_u32 s%d, 3\ns_cselect_b32 s%d, %d, s%d\ns_cselect_b32 s%d, %d, s%d' % (
                     S_SLOT, S_SLOT, S_SLOT, S_SLOT, S_LA, S_SLOT, S_LB, S_LB,
                     S_SLOT, S_LA, XSL[3], S_LA, S_LB, WSL[3], S_LB))
        return o

    def reads(j, cstage):
        fb = FB[j]
        out = []
        for n in range(3 if cstage else 6):
            for e2 in range(2):
                out.append('ds_read_b64_tr_b16 %s, v%d offset:%d' % (
                    vr(fb + 16 + 4 * n + 2 * e2, 2), WA + n, (32 * j + 4 * e2) * (192 if cstage else 128)))
        xs = []
        if cstage:
            for rt2 in range(2):
                for e2 in range(2):
                    xs.append('ds_read_b64_tr_b16 %s, v%d offset:%d' % (
                        vr(fb + 4 * rt2 + 2 * e2, 2), XA + rt2, (32 * j + 4 * e2) * 128))
            return xs + out
        for rt4 in range(4):
            xs.append('ds_read_b128 %s, v%d offset:%d' % (vr(fb + 4 * rt4, 4), XA + j, 2048 * rt4))
        return [xs[0]] + out + xs[1:]

    def mfmas(j, cstage, zero):
        fb = FB[j]
        out = []
        for rt in range(2 if cstage else 4):
            for n in range(3 if cstage else 6):
                acc = vr(SAC + 12 * rt + 4 * n if cstage else ACC + 24 * rt + 4 * n, 4)
                out.append('%s %s, %s, %s, %s' % (MF, acc, vr(fb + 16 + 4 * n, 4), vr(fb + 4 * rt, 4),
                                                   '0' if zero else acc))
        return out

    def stage(cstage, zero, next_c, last=False, pre=None):
        a('s_waitcnt lgkmcnt(0)')
        for t in interleave(mfmas(0, cstage, zero), reads(1, cstage), 2 if cstage else 1):
            a(t)
        a('s_waitcnt lgkmcnt(0)')
        mf = mfmas(1, cstage, False)
        if last:
            for t in mf:
                a(t)
            return
        sa = set_addr(next_c)
        a(mf[0])
        for t in sa[:4]:
            a(t)
        a(mf[1])
        for t in sa[4:]:
            a(t)
        if pre:
            pre()
        a('s_barrier')
        for t in interleave(mf[2:], reads(0, next_c), 3 if cstage else 1):
            a(t)

    a('s_mov_b32 s%d, 0' % S_SLOT)
    a('s_mov_b32 s%d, %d' % (S_LA, XSL[0]))
    a('s_mov_b32 s%d, %d' % (S_LB, WSL[0]))
    for t in set_addr(False):
        a(t)
    if 'c_start' in hooks:
        hooks['c_start'](a)
    a('s_barrier')
    if 'c_start2' in hooks:
        hooks['c_start2'](a)
    sp.rstamp(61)
    XV, Z0 = 232, 250
    a('s_lshl_b32 s%d, s%d, 2' % (S_T1, S_MT))
    a('s_and_b32 s%d, s%d, 1' % (S_T2, S_KS))
    a('s_lshl_b32 s%d, s%d, 1' % (S_T2, S_T2))
    a('s_add_u32 s%d, s%d, s%d' % (S_T1, S_T1, S_T2))
    a('s_add_u32 s%d, s%d, s%d' % (S_T1, S_T1, S_WM))
    a('s_lshl_b32 s%d, s%d, 1' % (S_T2, S_NT))
    a('s_lshr_b32 s%d, s%d, 1' % (S_T3, S_KS))
    a('s_add_u32 s%d, s%d, s%d' % (S_T2, S_T2, S_T3))
    a('s_mul_i32 s%d, s%d, 192' % (S_T2, S_T2))
    a('s_mul_i32 s%d, s%d, 96' % (S_T3, S_WN))
    a('s_add_u32 s%d, s%d, s%d' % (S_T2, S_T2, S_T3))
    a('v_lshlrev_b32 v16, 7, v%d' % VI)
    a('v_add_u32 v16, s%d, v16' % S_T1)
    a('v_mul_u32_u24 v16, %d, v16' % (D * 2))
    a('v_lshl_add_u32 v17, v%d, 3, s%d' % (VQ, S_T2))
    a('v_add_u32 v16, v16, v17')
    a('s_mov_b32 s%d, %d' % (S_OA, 64 * D * 2))
    for rt2 in range(2):
        for n3 in range(3):
            a('buffer_load_dwordx2 %s, v16, s[%d:%d], %s offen offset:%d' % (
                vr(XV + 6 * rt2 + 2 * n3, 2), S_XI, S_XI + 3, 's%d' % S_OA if rt2 else '0', 32 * n3))
    a('s_lshr_b32 s%d, s%d, 1' % (S_T1, S_T1))
    a('s_mul_i32 s%d, s%d, %d' % (S_T1, S_T1, ZT_BLK))
    a('s_lshl_b32 s%d, s%d, 6' % (S_T2, S_WM))
    a('s_add_u32 s%d, s%d, s%d' % (S_T1, S_T1, S_T2))
    a('s_add_u32 s%d, s%d, %d' % (S_LC, S_T1, 576 * 128))
    sp.stamp()
    for t in reads(0, False):
        a(t)
    pre_h = hooks.get('pre_h')
    a('s_mov_b32 s%d, 0' % S_I)
    stage(False, True, False, pre=lambda: a('s_waitcnt vmcnt(6)'))
    hooks['pub'](a)
    a('s_mov_b32 s%d, 1' % S_I)
    Lh = a.newlabel('g2_hl')
    a.label(Lh)
    stage(False, False, False, pre=(lambda: pre_h(a)) if pre_h else None)
    a('s_add_u32 s%d, s%d, 1' % (S_I, S_I))
    a('s_cmp_lt_u32 s%d, %d' % (S_I, NH - 1))
    a('s_cbranch_scc1 %s' % Lh)
    stage(False, False, True)
    sp.stamp()
    sp.rstamp(60)
    XCH = lambda w: XCHB + 6144 * w
    Lown = a.newlabel('g2_own')
    Lj = a.newlabel('g2_j')
    a('v_lshlrev_b32 v29, 4, v0')
    a('s_lshl_b32 s%d, s%d, 2' % (S_T1, S_GRP))
    a('s_add_u32 s%d, s%d, s%d' % (S_T1, S_T1, S_WAVE))
    a('s_lshl_b32 s%d, s%d, 2' % (S_T1, S_T1))
    a('s_add_u32 s%d, s%d, s%d' % (S_OB, S_T1, S_KS))
    a('s_cmp_eq_u32 s%d, s%d' % (S_WAVE, S_KS))
    a('s_cbranch_scc1 %s' % Lown)
    a('s_mul_i32 s%d, s%d, 12288' % (S_T1, S_OB))
    for wm2 in range(2):
        for n6 in range(6):
            t0 = ACC + 24 * (2 * wm2) + 4 * n6
            t1 = t0 + 24
            a('v_cvt_pk_bf16_f32 v%d, v%d, v%d' % (t0, t0, t0 + 1))
            a('v_cvt_pk_bf16_f32 v%d, v%d, v%d' % (t0 + 1, t0 + 2, t0 + 3))
            a('v_cvt_pk_bf16_f32 v%d, v%d, v%d' % (t0 + 2, t1, t1 + 1))
            a('v_cvt_pk_bf16_f32 v%d, v%d, v%d' % (t0 + 3, t1 + 2, t1 + 3))
            k = 6 * wm2 + n6
            if k % 4 == 0:
                a('s_add_u32 s%d, s%d, %d' % (S_T2, S_T1, 1024 * k))
            a('buffer_store_dwordx4 %s, v29, s[%d:%d], s%d offen offset:%d sc1' % (
                vr(t0, 4), S_PT, S_PT + 3, S_T2, 1024 * (k % 4)))
    a('s_branch %s' % Lj)
    a.label(Lown)
    a('v_add_u32 v1, %d, v29' % XCH(0))
    for w in range(4):
        for rt2 in range(2):
            for n3 in range(3):
                a('ds_write_b128 v1, %s offset:%d' % (
                    vr(ACC + 24 * (2 * (w & 1) + rt2) + 4 * (3 * (w >> 1) + n3), 4),
                    XCH(w) - XCH(0) + 1024 * (3 * rt2 + n3)))
    a.label(Lj)
    def caddr(h):
        o = []
        for j in range(2):
            o.append('v_add_u32 v%d, %d, v%d' % (XA + j, XSL[CSLOT[h >> 1]] + 8192 * (h & 1), 10 + j))
        for n in range(3):
            o.append('v_add_u32 v%d, %d, v%d' % (WA + n, WSL[CSLOT[h >> 1]] + 12288 * (h & 1), 18 + n))
        return o

    def chalf(h):
        a('s_waitcnt lgkmcnt(0)')
        for t in interleave(mfmas(0, True, h == 0), reads(1, True), 2):
            a(t)
        a('s_waitcnt lgkmcnt(0)')
        mf = mfmas(1, True, False)
        if h == 8:
            for t in mf:
                a(t)
            return
        a(mf[0])
        for t in caddr(h + 1):
            a(t)
        if (h & 1) and (h >> 1) < 3:
            a('s_barrier')
        for t in interleave(mf[1:], reads(0, True), 2):
            a(t)

    for h in range(FH):
        chalf(h)
    a('s_waitcnt vmcnt(0)')
    get_nonce(a)
    a('s_lshl_b32 s%d, s%d, 2' % (S_T1, S_OB))
    a('v_mov_b32 v12, s%d' % S_NONCE)
    a('v_mov_b32 v13, 0')
    a('buffer_store_dword v12, v13, s[%d:%d], s%d offen sc1' % (S_FX, S_FX + 3, S_T1))
    a('v_lshlrev_b32 v15, 1, v%d' % VI)
    for rt2 in range(2):
        a('buffer_load_ushort v%d, v15, s[%d:%d], s%d offen offset:%d' % (Z0 + rt2, S_ZT, S_ZT + 3, S_LC, 32 * rt2))
    for h in range(FH, 9):
        chalf(h)
    sp.stamp()
    T = 32
    a('s_waitcnt vmcnt(0)')
    for rt2 in range(2):
        a('v_lshlrev_b32 v%d, 16, v%d' % (Z0 + rt2, Z0 + rt2))
    for rt2 in range(2):
        for k in range(12):
            s_ = SAC + 12 * rt2 + k
            a('v_add_f32 v%d, v%d, v%d' % (s_, s_, Z0 + rt2))
    for k in range(0, 24, 2):
        a('v_cvt_pk_bf16_f32 v%d, v%d, v%d' % (T, SAC + k, SAC + k + 1))
        a('v_lshlrev_b32 v%d, 16, v%d' % (SAC + k, T))
        a('v_and_b32 v%d, 0xffff0000, v%d' % (SAC + k + 1, T))
    XU = ACC
    for k in range(12):
        a('v_lshlrev_b32 v%d, 16, v%d' % (XU + 2 * k, XV + k))
        a('v_and_b32 v%d, 0xffff0000, v%d' % (XU + 2 * k + 1, XV + k))
    a('s_mul_i32 s%d, s%d, 6144' % (S_T1, S_WAVE))
    a('s_add_u32 s%d, s%d, %d' % (S_T1, S_T1, XCHB))
    a('v_add_u32 v1, s%d, v29' % S_T1)
    a('s_barrier')
    sp.stamp()
    G = 40
    for n3 in range(3):
        a('ds_read_b128 %s, v1 offset:%d' % (vr(G + 4 * n3, 4), 1024 * n3))
    for n3 in range(3):
        a('s_waitcnt lgkmcnt(%d)' % (2 - n3))
        for rt2 in range(2):
            k0 = 12 * rt2 + 4 * n3
            e = [56 + r for r in range(4)]
            for d in range(2):
                a('v_lshlrev_b32 v%d, 16, v%d' % (e[2 * d], G + 4 * n3 + 2 * rt2 + d))
                a('v_and_b32 v%d, 0xffff0000, v%d' % (e[2 * d + 1], G + 4 * n3 + 2 * rt2 + d))
            for r in range(4):
                a('v_fma_f32 v%d, v%d, v%d, v%d' % (e[r], e[r], SAC + k0 + r, XU + k0 + r))
            xv = XV + 6 * rt2 + 2 * n3
            for d in range(2):
                a('v_cvt_pk_bf16_f32 v%d, v%d, v%d' % (xv + d, e[2 * d], e[2 * d + 1]))
            a('buffer_store_dwordx2 %s, v16, s[%d:%d], %s offen offset:%d' % (
                vr(xv, 2), S_OUT, S_OUT + 3, 's%d' % S_OA if rt2 else '0', 32 * n3))
    if instr:
        sp.stamp()
        a('s_waitcnt vmcnt(0)')
        sp.stamp()
        a('s_mov_b32 s70, 63')
        sp.stamp(real=True)
        a('s_lshl_b32 s71, s2, 3')
        a('s_add_u32 s71, s71, s%d' % S_WAVE)
        sp.dump(66, 67, S_H, 71, 1)
    a('s_endpgm')
```

```python
import struct
from asmlib import *
from layout import *
from k_g2 import decode_ids
MODE = ''
MEGA = True
HOOK = {}
WTJ = 14
S_GPR = 101
S_FTR = 78

P1_STG = 24576
P1_RING = 6 * P1_STG
P1_XB = 3 * P1_STG
P1_CBL = P1_XB + 5 * 16384
P1_CSX = P1_CBL + 2048
P1_STX = P1_CSX + 512
P1_LDS = 163840

XF = 112
ACCS = (96, 80)
WB = 56
V_RC = 2
V_DKJ = 6
V_DO = 9
V_CSA = 12
V_CXA = 14
V_ST = 16
V_CXW = 20
V_ONE = 22
V_DUM = 26
V_BF = 28
V_CS = 36
V_O = 44
V_HA = 52
V_RTA = 53
V_TT = 54
V_T0 = 1
V_CSP = 76
V_XO = 80
V_XR = 82


def WBUF(buf, nt):
    return WB + 4 * ((2 * buf + nt) % 5)


S_X, S_W1, S_T, S_LD, S_H, S_RT, S_B1 = 8, 12, 16, 20, 24, 28, 32
S_R0, S_R1, S_N0, S_N1 = 80, 81, 82, 83
S_WAVE, S_G, S_WR, S_MT, S_U, S_KS = 36, 37, 38, 39, 40, 41
S_CNT, S_P, S_RB, S_WBASE, S_PITCH, S_LOFF = 42, 43, 44, 45, 46, 47
S_CUR, S_PREV, S_NT_, S_TB, S_T1, S_T2, S_T3 = 48, 49, 50, 51, 52, 53, 54
S_DW, S_T4, S_NONCE, S_N2, S_SPIN = 55, 56, 57, 58, 59
S_DBG = 84
S_PG = 96
S_PGO = 79
SPIN_MAX = 20000


def f32h(x):
    return '0x%08x' % struct.unpack('<I', struct.pack('<f', x))[0]


def panel_id(a, dst, ridx):
    a('s_lshl_b32 s%d, s%d, 2' % (S_T1, ridx))
    a('s_add_u32 s%d, s%d, s%d' % (S_T1, S_T1, S_U))
    a('s_add_u32 s%d, s%d, s%d' % (S_T2, S_T1, S_TB))
    a('s_mul_i32 s%d, s%d, 18' % (S_T3, S_KS))
    a('s_add_u32 s%d, s%d, s%d' % (S_T3, S_T3, S_T1))
    a('s_sub_u32 s%d, s%d, s%d' % (S_T3, S_T3, S_NT_))
    a('s_cmp_lt_u32 s%d, s%d' % (S_T1, S_NT_))
    a('s_cselect_b32 s%d, s%d, s%d' % (dst, S_T2, S_T3))


def set_load_panel(a, ridx, g2pre=False):
    panel_id(a, S_T1, ridx)
    a('s_cmp_lt_u32 s%d, 72' % S_T1)
    a('s_cselect_b32 s%d, s%d, s%d' % (S_LD, S_W1, S_T))
    a('s_cselect_b32 s%d, s%d, s%d' % (S_LD + 1, S_W1 + 1, S_T + 1))
    a('s_cselect_b32 s%d, s%d, s%d' % (S_LD + 2, S_W1 + 2, S_T + 2))
    a('s_cselect_b32 s%d, 8, 1' % S_PITCH)
    a('s_cselect_b32 s%d, 0, 72' % S_T2)
    a('s_mul_i32 s%d, s%d, %d' % (S_PITCH, S_PITCH, D * 2))
    a('s_sub_u32 s%d, s%d, s%d' % (S_T1, S_T1, S_T2))
    a('s_lshl_b32 s%d, s%d, 7' % (S_LOFF, S_T1))
    a('s_cmp_lt_u32 s%d, s%d' % (ridx, S_CNT))
    a('s_cselect_b32 s%d, s%d, 0' % (S_LD + 2, S_LD + 2))
    a('s_cmp_eq_u32 s%d, s%d' % (ridx, S_FTR))
    a('s_cselect_b32 s%d, s%d, s%d' % (S_LD, S_T, S_LD))
    a('s_cselect_b32 s%d, s%d, s%d' % (S_LD + 1, S_T + 1, S_LD + 1))
    a('s_cselect_b32 s%d, %d, s%d' % (S_LD + 2, 2 * D * D * 2 + 61440, S_LD + 2))
    a('s_cselect_b32 s%d, 128, s%d' % (S_PITCH, S_PITCH))
    a('s_cselect_b32 s%d, %d, s%d' % (S_LOFF, 2 * D * D * 2, S_LOFF))
    for i in range(3):
        a('v_and_b32 v%d, 0xffff, v%d' % (V_TT, V_DKJ + i))
        a('v_lshrrev_b32 v%d, 16, v%d' % (V_TT + 1, V_DKJ + i))
        a('v_mad_u32_u24 v%d, v%d, s%d, v%d' % (V_DO + i, V_TT, S_PITCH, V_TT + 1))
    if g2pre:
        L = a.newlabel('p1_g2p')
        a('s_cmp_lg_u32 s%d, s%d' % (ridx, S_GPR))
        a('s_cbranch_scc1 %s' % L)
        srd(a, S_LD, 92, 93, F * D * 2)
        a('s_mov_b32 s%d, 384' % S_PITCH)
        a('s_mul_i32 s%d, s%d, %d' % (S_LOFF, S_KS, 1152 * D * 2))
        a('s_mul_i32 s%d, s%d, 384' % (S_T1, S_U))
        a('s_add_u32 s%d, s%d, s%d' % (S_LOFF, S_LOFF, S_T1))
        a('s_sub_u32 s%d, s%d, 384' % (S_LOFF, S_LOFF))
        for i in range(3):
            a('v_and_b32 v%d, 63, v%d' % (V_TT, V_DKJ + i))
            a('v_lshrrev_b32 v%d, 16, v%d' % (V_TT + 1, V_DKJ + i))
            a('v_mul_u32_u24 v%d, %d, v%d' % (V_TT, D * 2, V_TT))
            a('v_add_u32 v%d, v%d, v%d' % (V_TT, V_TT, V_TT + 1))
            a('v_bfe_u32 v%d, v%d, 6, 2' % (V_TT + 1, V_DKJ + i))
            a('v_lshl_add_u32 v%d, v%d, 7, v%d' % (V_DO + i, V_TT + 1, V_TT))
        a.label(L)


def dma_one(a, st, i):
    a('s_mul_i32 s%d, s%d, %d' % (S_T1, S_PITCH, 192 * st))
    a('s_add_u32 s%d, s%d, s%d' % (S_T2, S_WBASE, S_DW))
    a('s_add_u32 m0, s%d, %d' % (S_T2, 1024 * i))
    a('s_add_u32 s%d, s%d, s%d' % (S_T1, S_T1, S_LOFF))
    a('buffer_load_dwordx4 v%d, s[%d:%d], s%d offen lds' % (V_DO + i, S_LD, S_LD + 3, S_T1))


def dma_x(a, vm, piece, slot):
    a('s_lshl_b32 s%d, s%d, 11' % (S_T2, S_WAVE))
    for i in range(2):
        a('s_add_u32 m0, s%d, %d' % (S_T2, P1_XB + 16384 * slot + 1024 * i - 128 * piece))
        a('buffer_load_dwordx4 v%d, s[%d:%d], 0 offen offset:%d lds' % (V_XO + i, S_X, S_X + 3, 128 * piece))
        vm.add('x%d' % piece)


def xreads(a, lg, piece, slot):
    for j in range(2):
        for rt in range(2):
            a('ds_read_b128 %s, v%d offset:%d' % (
                vr(XF + 72 * rt + 4 * (2 * piece + j), 4), V_XR + 2 * rt + j + (4 if slot == 4 else 0),
                16384 * (slot % 4)))
            lg.add('xr%d' % piece)


def adv(a, s):
    a('s_add_u32 s%d, s%d, %d' % (s, s, P1_STG))
    a('s_cmp_ge_u32 s%d, %d' % (s, P1_RING))
    a('s_cselect_b32 s%d, 0, s%d' % (s, s))


def epi_loads(a, lg, stats):
    for nt in range(2):
        a('ds_read_b128 %s, v%d' % (vr(V_CS + 4 * nt, 4), V_CXA + nt))
        a('ds_read_b128 %s, v%d offset:256' % (vr(V_O + 4 * nt, 4), V_CXA + nt))
        a('ds_read_b128 %s, v%d' % (vr(V_BF + 4 * nt, 4), V_CSA + nt))
        lg.add('el', 3)
        a('v_add_u32 v%d, 256, v%d' % (V_CSA + nt, V_CSA + nt))
    if stats:
        a('v_and_b32 v%d, 15, v0' % V_TT)
        a('s_lshl_b32 s%d, s%d, 8' % (S_T1, S_WR))
        a('s_add_u32 s%d, s%d, %d' % (S_T1, S_T1, P1_STX))
        a('v_lshl_add_u32 v%d, v%d, 3, s%d' % (V_TT, V_TT, S_T1))
        for rt in range(2):
            a('s_lshr_b32 s%d, s%d, 4' % (S_T1, S_R0 + rt))
            a('v_add_u32 v%d, s%d, v%d' % (V_TT + 1, S_T1, V_TT))
            a('ds_read_b64 %s, v%d' % (vr(V_ST + 2 * rt, 2), V_TT + 1))
            lg.add('el')


def epi_ops(acc, isT, st_flags):
    o = []
    for i in range(8):
        o.append('v_add_f32 v%d, v%d, v%d' % (V_CS + i, V_CS + i, V_O + i))
    for rt in range(2):
        for nt in range(2):
            for r2 in range(2):
                t = acc + 8 * rt + 4 * nt + 2 * r2
                for e in range(2):
                    o.append('v_fma_f32 v%d, -v%d, v%d, v%d' % (
                        t + e, V_ST + 2 * rt + 1, V_CS + 4 * nt + 2 * r2 + e, t + e))
                if isT:
                    for e in range(2):
                        o.append('v_mul_f32 v%d, v%d, v%d' % (t + e, V_ST + 2 * rt, t + e))
                    o.append('v_cvt_pk_bf16_f32 v%d, v%d, v%d' % (V_O + 4 * nt + 2 * r2 + rt, t, t + 1))
                else:
                    for e in range(2):
                        o.append('v_fma_f32 v%d, v%d, v%d, v%d' % (
                            t + e, V_ST + 2 * rt, t + e, V_BF + 4 * nt + 2 * r2 + e))
                    for e in range(2):
                        o.append('v_max_f32 v%d, 0, v%d' % (t + e, t + e))
                    for e in range(2):
                        o.append('v_mul_f32 v%d, v%d, v%d' % (t + e, t + e, t + e))
                    o.append('v_cvt_pk_bf16_f32 v%d, v%d, v%d' % (V_O + 4 * rt + 2 * nt + r2, t, t + 1))
        if not isT:
            o.append('s_lshl_b32 s%d, s%d, 14\ns_add_u32 s%d, s%d, s%d' % (S_T4, S_PREV, S_T4, S_T4, S_R0 + rt))
            for d in range(2):
                o.append('v_permlane16_swap_b32 v%d, v%d' % (V_O + 4 * rt + d, V_O + 4 * rt + 2 + d))
            o.append('buffer_store_dwordx4 %s, v%d, s[%d:%d], s%d offen %s' % (
                vr(V_O + 4 * rt, 4), V_HA, S_H, S_H + 3, S_T4, st_flags))
    if isT:
        o.append('SWAP_RT')
        for nt in range(2):
            for pp in range(2):
                o.append('s_sub_u32 s%d, s%d, 72\ns_lshl_b32 s%d, s%d, 18\ns_add_u32 s%d, s%d, s%d\ns_add_u32 s%d, s%d, %d\n' % (
                    S_T4, S_PREV, S_T4, S_T4, S_T4, S_T4, S_N0 + nt, S_T4, S_T4, pp * 8192) +
                    'buffer_store_dwordx2 %s, v%d, s[%d:%d], s%d offen %s' % (
                    vr(V_O + 4 * nt + 2 * pp, 2), V_RTA, S_RT, S_RT + 3, S_T4, st_flags))
    return o


def emit_epi(a, vm, t):
    if t == 'SWAP_RT':
        L = a.newlabel('p1_sw')
        a('s_cmp_eq_u32 s%d, 0' % S_G)
        a('s_cbranch_scc1 %s' % L)
        for k in range(4):
            a('v_swap_b32 v%d, v%d' % (V_O + 2 * k, V_O + 2 * k + 1))
        a.label(L)
        return
    a(t)
    if 'buffer_store' in t:
        vm.add('es')


def wread1(a, lg, js, k):
    jj = js % 6
    nt, e2 = k >> 1, k & 1
    a('ds_read_b64_tr_b16 %s, v%d offset:%d' % (
        vr(WBUF(js % 5, nt) + 2 * e2, 2), V_RC + 2 * (js & 1) + nt, (32 * jj + 4 * e2) * 128))
    lg.add('w%d_%d' % (js, nt))


def read_switch(a):
    a('s_add_u32 s%d, s%d, %d' % (S_RB, S_RB, P1_STG))
    a('s_cmp_ge_u32 s%d, %d' % (S_RB, P1_RING))
    a('s_cselect_b32 s%d, 0, s%d' % (S_RB, S_RB))
    a('s_mov_b32 s%d, %d' % (S_T1, P1_STG - P1_RING))
    a('s_cselect_b32 s%d, s%d, %d' % (S_T1, S_T1, P1_STG))
    for i in range(4):
        a('v_add_u32 v%d, s%d, v%d' % (V_RC + i, S_T1, V_RC + i))


def stats_finish(a, lg):
    RS, GR, T = V_CS, V_CS + 4, V_O
    a('v_and_b32 v%d, 3, v0' % T)
    a('v_cmp_eq_u32 vcc, 1, v%d' % T)
    a('v_cndmask_b32 v%d, v%d, v%d, vcc' % (GR, GR, GR + 1))
    a('v_cmp_eq_u32 vcc, 2, v%d' % T)
    a('v_cndmask_b32 v%d, v%d, v%d, vcc' % (GR, GR, GR + 2))
    a('v_cmp_eq_u32 vcc, 3, v%d' % T)
    a('v_cndmask_b32 v%d, v%d, v%d, vcc' % (GR, GR, GR + 3))
    a('v_mul_f32 v%d, %s, v%d' % (RS, f32h(1.0 / D), RS))
    a('v_mul_f32 v%d, %s, v%d' % (GR, f32h(1.0 / D), GR))
    a('v_fma_f32 v%d, -v%d, v%d, v%d' % (GR, RS, RS, GR))
    a('v_max_f32 v%d, 0, v%d' % (GR, GR))
    bf16_round(a, RS)
    bf16_round(a, GR)
    a('v_add_f32 v%d, %s, v%d' % (GR, f32h(1e-5), GR))
    bf16_round(a, GR)
    a('v_sqrt_f32 v%d, v%d' % (GR, GR))
    bf16_round(a, GR)
    a('v_rcp_f32 v%d, v%d' % (T + 2, GR))
    a('v_mov_b32 v%d, v%d' % (T + 3, RS))
    a('v_and_b32 v%d, 15, v0' % T)
    a('v_lshrrev_b32 v%d, 2, v%d' % (T + 1, T))
    a('v_lshrrev_b32 v%d, 4, v0' % (T + 4))
    a('v_cmp_eq_u32 vcc, v%d, v%d' % (T + 1, T + 4))
    a('s_lshl_b32 s%d, s%d, 8' % (S_T1, S_WR))
    a('s_lshl_b32 s%d, s%d, 7' % (S_T2, S_G))
    a('s_add_u32 s%d, s%d, s%d' % (S_T1, S_T1, S_T2))
    a('s_add_u32 s%d, s%d, %d' % (S_T1, S_T1, P1_STX))
    a('v_lshl_add_u32 v%d, v%d, 3, s%d' % (T, T, S_T1))
    a('v_mov_b32 v%d, %d' % (T + 1, P1_STX + 1024))
    a('v_cndmask_b32 v%d, v%d, v%d, vcc' % (T, T + 1, T))
    a('ds_write_b64 v%d, %s' % (T, vr(T + 2, 2)))
    lg.add('cw')


def publish(a, delta):
    L = a.newlabel('p1_pub')
    a('s_cmp_lg_u32 s%d, 0' % S_WAVE)
    a('s_cbranch_scc1 %s' % L)
    a('s_add_u32 s%d, s%d, s%d' % (S_T1, S_NONCE, S_P))
    a('s_add_i32 s%d, s%d, %d' % (S_T1, S_T1, delta))
    a('v_mov_b32 v%d, s%d' % (V_T0, S_T1))
    a('v_mov_b32 v%d, 0' % V_TT)
    a('buffer_store_dword v%d, v%d, s[%d:%d], s%d offen sc1' % (V_T0, V_TT, S_PG, S_PG + 3, S_PGO))
    a.label(L)


def prefetch2(a, Lp):
    La = a.newlabel('pf_aux')
    Lg = a.newlabel('pf_go')
    a('s_cmp_gt_u32 s%d, 2' % S_P)
    a('s_cbranch_scc1 %s' % Lp)
    a('s_cmp_eq_u32 s%d, 0' % S_U)
    a('s_cbranch_scc1 %s' % Lp)
    a('s_bfe_u32 s%d, s2, 0x10005' % S_T1)
    a('s_add_u32 s%d, s%d, 1' % (S_T1, S_T1))
    a('s_cmp_lg_u32 s%d, s%d' % (S_T1, S_P))
    a('s_cbranch_scc1 %s' % Lp)
    a('s_lshr_b32 s%d, s2, 5' % S_T1)
    a('s_lshl_b32 s%d, s%d, 3' % (S_T1, S_T1))
    a('s_sub_u32 s%d, s2, s%d' % (S_T1, S_T1))
    a('s_sub_u32 s%d, s%d, 8' % (S_T1, S_T1))
    a('s_lshl_b32 s%d, s%d, 1' % (S_T1, S_T1))
    a('s_add_u32 s%d, s%d, s%d' % (S_T1, S_T1, S_WAVE))
    a('s_sub_u32 s%d, s%d, 4' % (S_T1, S_T1))
    a.label(Lg)
    a('s_getpc_b64 s[94:95]')
    a('s_add_u32 s94, s94, tab_Tinv@rel32@lo+4')
    a('s_addc_u32 s95, s95, tab_Tinv@rel32@hi+12')
    a('s_lshl_b32 s%d, s%d, 14' % (S_T2, S_T1))
    a('s_sub_u32 s%d, s%d, %d' % (S_T3, S_T2, 324 * 16384))
    a('v_lshlrev_b32 v%d, 8, v0' % V_T0)
    a('s_cmp_lt_u32 s%d, 324' % S_T1)
    a('s_cselect_b32 s%d, s92, s94' % S_B1)
    a('s_cselect_b32 s%d, s93, s95' % (S_B1 + 1))
    a('s_cselect_b32 s%d, s%d, s%d' % (S_T2, S_T2, S_T3))
    a('s_mov_b32 s%d, %d' % (S_T3, D * D * 2 + 61440))
    a('s_cselect_b32 s%d, %d, s%d' % (S_B1 + 2, F * D * 2, S_T3))
    a('s_and_b32 s%d, s%d, 0xffff' % (S_B1 + 1, S_B1 + 1))
    a('buffer_load_dwordx2 v[%d:%d], v%d, s[%d:%d], s%d offen offset:124' % (V_DUM, V_DUM + 1, V_T0, S_B1, S_B1 + 3, S_T2))


def prefetch(a):
    a('s_getpc_b64 s[94:95]')
    a('s_add_u32 s94, s94, tab_F@rel32@lo+4')
    a('s_addc_u32 s95, s95, tab_F@rel32@hi+12')
    a('s_lshl_b32 s%d, s%d, 2' % (S_T2, S_MT))
    a('s_add_u32 s%d, s%d, s%d' % (S_T2, S_T2, S_KS))
    a('s_mul_i32 s%d, s%d, 3' % (S_T1, S_T2))
    a('s_add_u32 s%d, s%d, s%d' % (S_T1, S_T1, S_P))
    a('s_sub_u32 s%d, s%d, 1' % (S_T1, S_T1))
    a('s_mul_i32 s%d, s%d, 1457' % (S_T2, S_T1))
    a('s_lshr_b32 s%d, s%d, 16' % (S_T2, S_T2))
    a('s_mul_i32 s%d, s%d, %d' % (S_T2, S_T2, 1152 * 1152 - 45 * 16384))
    a('s_lshl_b32 s%d, s%d, 14' % (S_T3, S_T1))
    a('s_add_u32 s%d, s%d, s%d' % (S_T2, S_T2, S_T3))
    a('s_sub_u32 s%d, s%d, %d' % (S_T3, S_T3, 180 * 16384))
    a('v_lshlrev_b32 v%d, 8, v0' % V_T0)
    a('s_cmp_lt_u32 s%d, 180' % S_T1)
    a('s_cselect_b32 s%d, s92, s94' % S_B1)
    a('s_cselect_b32 s%d, s93, s95' % (S_B1 + 1))
    a('s_cselect_b32 s%d, s%d, s%d' % (S_T2, S_T2, S_T3))
    a('s_mov_b32 s%d, %d' % (S_T3, 61440))
    a('s_cselect_b32 s%d, %d, s%d' % (S_B1 + 2, F * D * 2, S_T3))
    a('s_and_b32 s%d, s%d, 0xffff' % (S_B1 + 1, S_B1 + 1))
    a('buffer_load_dwordx2 v[%d:%d], v%d, s[%d:%d], s%d offen offset:124' % (V_DUM, V_DUM + 1, V_T0, S_B1, S_B1 + 3, S_T2))


def touch_w(a, ahead):
    L = a.newlabel('p1_tw')
    a('s_cmp_lt_u32 s%d, 6' % S_WAVE)
    a('s_cbranch_scc1 %s' % L)
    a('s_add_u32 s%d, s%d, %d' % (S_T4, S_P, ahead))
    a('s_cmp_ge_u32 s%d, s%d' % (S_T4, S_CNT))
    a('s_cbranch_scc1 %s' % L)
    panel_id(a, S_T4, S_T4)
    a('s_lshl_b32 s%d, s%d, 7' % (S_T4, S_T4))
    a('s_and_b32 s%d, s%d, 7' % (S_T1, S_MT))
    a('s_lshl_b32 s%d, s%d, 1' % (S_T1, S_T1))
    a('s_add_u32 s%d, s%d, s%d' % (S_T1, S_T1, S_WAVE))
    a('s_sub_u32 s%d, s%d, 6' % (S_T1, S_T1))
    a('s_mul_i32 s%d, s%d, %d' % (S_T1, S_T1, 36 * F * 2))
    a('s_add_u32 s%d, s%d, s%d' % (S_T4, S_T4, S_T1))
    a('v_min_u32 v%d, 35, v0' % V_T0)
    a('v_mul_u32_u24 v%d, %d, v%d' % (V_T0, F * 2, V_T0))
    a('buffer_load_dword v%d, v%d, s[%d:%d], s%d offen' % (V_DUM, V_T0, S_W1, S_W1 + 3, S_T4))
    a.label(L)


def body(a, vm, lg, kind, par, st_flags, sp=None):
    first = kind == 'first'
    ACC = ACCS[par]
    PACC = ACCS[1 - par]
    fill = [] if first else epi_ops(PACC, kind == 'T1', st_flags)
    if 'novalu' in MODE:
        fill = [t for t in fill if not t.startswith('v_')]
    if 'plainst' in MODE:
        fill = [t.replace(' sc1', '') for t in fill]
    if 'oobst' in MODE:
        fill = [t.replace('s_lshl_b32 s%d, s%d, 14' % (S_T4, S_PREV), 's_mov_b32 s%d, 0x7f000000' % S_T4) for t in fill]
    E0, E1 = 6, 14
    slots = (E1 - E0 + 1) * 4
    emitted = 0

    for js in range(18):
        if sp and (js % 6 == 0 or ('fine' in MODE and (first or kind.endswith('1')))):
            sp.stamp()
        nx1 = (js + 1) % 18
        nx2 = (js + 2) % 18

        def mf(rt, nt):
            acc = vr(ACC + 8 * rt + 4 * nt, 4)
            a('v_mfma_f32_16x16x32_bf16 %s, %s, %s, %s' % (
                acc, vr(WB3(js, nt), 4), vr(XF + 72 * rt + 4 * js, 4), '0' if js == 0 else acc))

        def filler(k):
            nonlocal emitted
            if fill and E0 <= js <= E1:
                if js == E0 and k == 0:
                    lg.wait('el')
                want = ((js - E0) * 4 + k + 1) * len(fill) // slots
                while emitted < want:
                    emit_epi(a, vm, fill[emitted])
                    emitted += 1

        lg.wait('w%d_0' % js)
        if first and js == 10:
            lg.wait('xr8')
        mf(0, 0)
        if first and js == 8:
            vm.wait('x5', 'x6', 'x7', 'x8')
            a('s_barrier')
        if first and js in (8, 9):
            xreads(a, lg, 5 + 2 * (js - 8), 2 * (js - 8))
        if (js + 2) % 6 == 0:
            st = ((js + 2) // 6) % 3
            pub = kind == 'W' and js == 4
            if pub:
                vm.wait('d%d' % st, 'es')
            else:
                vm.wait('d%d' % st)
            if js == 4:
                lg.wait('cw')
            if first and js == 16:
                vm.wait('nn')
                get_nonce(a)
            a('s_barrier')
            if pub:
                publish(a, -1)
            if first and js == 16:
                a('v_mov_b32 v%d, %d' % (V_T0, P1_LDS - 4))
                a('ds_read_b32 v%d, v%d' % (V_NN, V_T0))
                lg.add('nn')
        rd3(a, lg, nx1, 1)
        filler(0)
        mf(1, 0)
        if js % 2 == 0 and not ('nocsm' in MODE and js > 0):
            acc = vr(V_CSP, 4)
            a('v_mfma_f32_16x16x32_bf16 %s, %s, %s, %s' % (acc, vr(WB3(js, 0), 4), vr(V_ONE, 4), '0' if js == 0 else acc))
        rd3(a, lg, nx2, 0)
        if js == 16:
            a('s_add_u32 s%d, s%d, 2' % (S_T4, S_P))
            set_load_panel(a, S_T4, kind == 'W')
        if js == 5 and not first:
            epi_loads(a, lg, kind.endswith('1'))
        if js == 5 and 'nopf' not in MODE and not first:
            Lp = a.newlabel('p1_pf')
            a('s_sub_u32 s%d, s%d, 4' % (S_T1, S_WAVE))
            a('s_cmp_gt_u32 s%d, 1' % S_T1)
            a('s_cbranch_scc1 %s' % Lp)
            prefetch2(a, Lp)
            a.label(Lp)
        if js == 5 and 'notouch' not in MODE:
            touch_w(a, 2)
        if first and js == 9:
            vm.wait('b1')
            a('v_lshlrev_b32 v93, 16, v93')
            a('s_lshl_b32 s%d, s%d, 8' % (S_T1, S_WAVE))
            a('s_add_u32 s%d, s%d, %d' % (S_T1, S_T1, P1_CBL))
            a('v_lshl_add_u32 v92, v0, 2, s%d' % S_T1)
            a('ds_write_b32 v92, v93')
            lg.add('bw')
        if first and js in (2, 3, 5, 6) and 'nowt' not in MODE:
            k = {2: 0, 3: 1, 5: 2, 6: 3}[js]
            wt_issue(a, vm, k >> 1, S_H, S_RT, (2 * (k & 1), 2 * (k & 1) + 1))
        if first and js == WTJ:
            if 'nowt' not in MODE:
                wt_stores(a, vm, S_H)
            srd(a, S_H, 66, 67, S * F * 2, WS_H)
            srd(a, S_RT, 66, 67, 288 * 8192, WS_RT)
            a('s_load_dwordx2 s[92:93], s[0:1], %d' % KA_W2)
            a('s_waitcnt lgkmcnt(0)')
        filler(1)
        lg.wait('w%d_1' % js)
        mf(0, 1)
        if first and not ('nostat' in MODE and js > 0):
            x0 = vr(XF + 4 * js, 4)
            a('v_mfma_f32_16x16x32_bf16 %s, %s, %s, %s' % (vr(V_CS, 4), vr(V_ONE, 4), x0, '0' if js == 0 else vr(V_CS, 4)))
        if first and js < 16:
            if js < 2:
                dma_x(a, vm, 5 + 2 * js, 2 * js)
                dma_x(a, vm, 6 + 2 * js, 2 * js + 1)
            if js >= 10:
                todo = {10: [0, 1], 11: [2, 3], 12: [4, 5], 13: [6], 14: [7], 15: [8]}[js]
                for n in todo:
                    dma_one(a, n // 3, n % 3)
                    vm.add('d%d' % (n // 3))
                    if n % 3 == 2:
                        adv(a, S_WBASE)
        elif js % 2 == 0:
            n = ((js + 2) % 18) // 2
            if js == 16 and kind == 'W':
                a('s_add_u32 s%d, s%d, 1' % (S_T1, S_P))
                a('s_cmp_ge_u32 s%d, s%d' % (S_T1, S_CNT))
                a('s_cselect_b32 s%d, 0x30000, s%d' % (S_WBASE, S_WBASE))
            dma_one(a, n // 3, n % 3)
            vm.add('d%d' % (n // 3))
            if n % 3 == 2:
                adv(a, S_WBASE)
        filler(2)
        if first and js in (8, 9):
            xreads(a, lg, 6 + 2 * (js - 8), 1 + 2 * (js - 8))
        mf(1, 1)
        if first and not ('nostat' in MODE and js > 0):
            x0 = vr(XF + 4 * js, 4)
            a('v_mfma_f32_16x16x32_bf16 %s, %s, %s, %s' % (vr(V_CS + 4, 4), x0, x0, '0' if js == 0 else vr(V_CS + 4, 4)))
        if kind == 'W' and js in (15, 17) and 'fft' in HOOK:
            L = a.newlabel('p1_ax')
            a('s_add_u32 s%d, s%d, 1' % (S_T1, S_P))
            a('s_cmp_lg_u32 s%d, s%d' % (S_T1, S_FTR))
            a('s_cbranch_scc1 %s' % L)
            HOOK['fft'](a, js)
            a.label(L)
            L = a.newlabel('p1_gx')
            a('s_add_u32 s%d, s%d, 1' % (S_T1, S_P))
            a('s_cmp_lg_u32 s%d, s%d' % (S_T1, S_GPR))
            a('s_cbranch_scc1 %s' % L)
            HOOK['g2'](a, js)
            a.label(L)
        if js == 17:
            a('ds_write_b128 v%d, %s' % (V_CXW, vr(V_CSP, 4)))
            lg.add('cw')
        filler(3)
    assert emitted == len(fill)
    if first:
        stats_finish(a, lg)
        lg.wait('nn')
        a('v_readfirstlane_b32 s%d, v%d' % (S_NONCE, V_NN))
    a('s_mov_b32 s%d, s%d' % (S_PREV, S_CUR))
    a('s_add_u32 s%d, s%d, 1' % (S_P, S_P))
    panel_id(a, S_CUR, S_P)


def WB3(js, nt):
    return WB + 4 * (js % 3) if nt == 0 else WB + 12 + 4 * (js % 2)


def rd3(a, lg, js, nt):
    jj = js % 6
    if jj in (0, 1):
        a('v_add_u32 v%d, s%d, v%d' % (V_RC + 2 * (js & 1) + nt, S_RBD + nt, V_RC + 2 * (js & 1) + nt))
    for e2 in range(2):
        a('ds_read_b64_tr_b16 %s, v%d offset:%d' % (
            vr(WB3(js, nt) + 2 * e2, 2), V_RC + 2 * (js & 1) + nt, (32 * jj + 4 * e2) * 128))
        lg.add('w%d_%d' % (js, nt))
    if jj == 1:
        a('s_add_u32 s%d, s%d, %d' % (S_RB + 0 if nt == 0 else S_RB1, S_RB if nt == 0 else S_RB1, P1_STG))
        r = S_RB if nt == 0 else S_RB1
        a('s_cmp_ge_u32 s%d, %d' % (r, P1_RING))
        a('s_cselect_b32 s%d, 0, s%d' % (r, r))
        a('s_mov_b32 s%d, %d' % (S_RBD + nt, P1_STG - P1_RING))
        a('s_cselect_b32 s%d, s%d, %d' % (S_RBD + nt, S_RBD + nt, P1_STG))


def get_nonce(a):
    Lw = a.newlabel('p1_nw')
    Lg = a.newlabel('p1_ng')
    Lb = a.newlabel('p1_nb')
    a('s_cmp_lg_u32 s%d, 0' % S_WAVE)
    a('s_cbranch_scc1 %s' % Lb)
    a('s_mov_b32 s%d, 0' % S_SPIN)
    a('v_mov_b32 v%d, 0' % V_TT)
    a.label(Lw)
    a('v_readfirstlane_b32 s%d, v%d' % (S_NONCE, V_NN))
    a('s_add_u32 s%d, s%d, 1' % (S_SPIN, S_SPIN))
    a('s_cmp_lg_u32 s%d, 0' % S_NONCE)
    a('s_cbranch_scc1 %s' % Lg)
    a('s_sleep 4')
    a('buffer_load_dword v%d, v%d, s[%d:%d], 0 offen sc1' % (V_NN, V_TT, S_DBG, S_DBG + 3))
    a('s_waitcnt vmcnt(0)')
    a('s_cmp_lt_u32 s%d, %d' % (S_SPIN, SPIN_MAX))
    a('s_cbranch_scc1 %s' % Lw)
    a.label(Lg)
    a('v_mov_b32 v%d, %d' % (V_TT, P1_LDS - 4))
    a('ds_write_b32 v%d, v%d' % (V_TT, V_NN))
    a('s_waitcnt lgkmcnt(0)')
    a.label(Lb)


def wave_allreduce(a, v, t):
    for r in (1, 2, 4, 8):
        a('v_add_f32_dpp v%d, v%d, v%d row_ror:%d row_mask:0xf bank_mask:0xf' % (v, v, v, r))
    a('v_mov_b32 v%d, v%d' % (t, v))
    a('v_permlane16_swap_b32 v%d, v%d' % (v, t))
    a('v_add_f32 v%d, v%d, v%d' % (v, v, t))
    a('v_mov_b32 v%d, v%d' % (t, v))
    a('v_permlane32_swap_b32 v%d, v%d' % (v, t))
    a('v_add_f32 v%d, v%d, v%d' % (v, v, t))


def bf16_round(a, v):
    a('v_cvt_pk_bf16_f32 v%d, v%d, v%d' % (v, v, v))
    a('v_lshlrev_b32 v%d, 16, v%d' % (v, v))


WT_RE = 44
WT_IM = 28
WT_AS = (90, 91)
WT_LA = (94, 95)
V_NN = 27
S_RB1, S_RBD = 88, 89


def wt_loads(a, vm, rnd, SR, SI):
    L, Q = V_TT, V_TT + 1
    a('s_lshr_b32 s%d, s2, 2' % S_T1)
    a('s_and_b32 s%d, s2, 3' % S_T3)
    if rnd == 0:
        a('s_lshl_b32 s%d, s%d, 3' % (S_T3, S_T3))
        a('s_add_u32 s%d, s%d, s%d' % (S_T3, S_T3, S_WAVE))
    else:
        a('s_lshl_b32 s%d, s%d, 2' % (S_T2, S_WAVE))
        a('s_add_u32 s%d, s%d, s%d' % (S_T3, S_T3, S_T2))
        a('s_add_u32 s%d, s%d, 32' % (S_T3, S_T3))
    a('s_lshl_b32 s%d, s%d, 3' % (S_T3, S_T3))
    a('v_lshrrev_b32 v%d, 3, v0' % L)
    a('v_add_u32 v%d, s%d, v%d' % (L, S_T3, L))
    if rnd == 0:
        a('v_cmp_eq_u32 vcc, 0, v%d' % L)
        a('v_mov_b32 v%d, 288' % Q)
        a('v_cndmask_b32 v%d, v%d, v%d, vcc' % (Q, L, Q))
    else:
        a('v_mov_b32 v%d, 288' % Q)
        a('v_cmp_eq_u32 vcc, v%d, v%d' % (Q, L))
        a('v_cndmask_b32 v%d, v%d, 0, vcc' % (Q, L))
    a('v_lshlrev_b32 v%d, 13, v%d' % (Q, Q))
    a('v_and_b32 v%d, 7, v0' % V_T0)
    a('v_lshl_add_u32 v%d, v%d, 4, v%d' % (Q, V_T0, Q))
    a('s_lshl_b32 s%d, s%d, 7' % (S_T2, S_T1))
    a('v_add_u32 v%d, s%d, v%d' % (WT_AS[rnd], S_T2, Q))
    a('s_and_b32 s%d, s%d, 3' % (S_T2, S_T1))
    a('s_lshl_b32 s%d, s%d, 3' % (S_T2, S_T2))
    a('s_lshr_b32 s%d, s%d, 2' % (S_T1, S_T1))
    a('s_lshl_b32 s%d, s%d, 7' % (S_T1, S_T1))
    a('s_add_u32 s%d, s%d, s%d' % (S_T2, S_T2, S_T1))
    a('s_mul_i32 s%d, s%d, %d' % (S_T2, S_T2, DF * 2))
    if rnd == 1:
        a('v_cmp_gt_u32 vcc, 0x121, v%d' % L)
        a('v_mov_b32 v%d, 0x7fffffff' % Q)
        a('v_cndmask_b32 v%d, v%d, v%d, vcc' % (WT_AS[1], Q, WT_AS[1]))
    a('v_add_u32 v%d, s%d, v%d' % (L, S_T3, V_T0))
    a('v_lshrrev_b32 v%d, 3, v0' % V_T0)
    if rnd == 1:
        a('v_cmp_gt_u32 vcc, 0x121, v%d' % L)
    a('v_mul_u32_u24 v%d, %d, v%d' % (V_T0, DF * 2, V_T0))
    a('v_lshl_add_u32 v%d, v%d, 1, v%d' % (L, L, V_T0))
    if rnd == 1:
        a('v_cndmask_b32 v%d, v%d, v%d, vcc' % (L, Q, L))
    a('v_add_u32 v%d, s%d, v%d' % (WT_LA[rnd], S_T2, L))


def wt_issue(a, vm, rnd, SR, SI, es):
    for e in es:
        a('s_mov_b32 s%d, %d' % (S_T3, 32 * e * DF * 2))
        a('buffer_load_ushort v%d, v%d, s[%d:%d], s%d offen' % (WT_RE + 4 * rnd + e, WT_LA[rnd], SR, SR + 3, S_T3))
        a('buffer_load_ushort v%d, v%d, s[%d:%d], s%d offen' % (WT_IM + 4 * rnd + e, WT_LA[rnd], SI, SI + 3, S_T3))
        vm.add('wt', 2)


def wt_stores(a, vm, SW):
    vm.wait('wt')
    srd(a, SW, 66, 67, 289 * 8192, WS_WT)
    for i in range(8):
        a('v_lshl_or_b32 v%d, v%d, 16, v%d' % (WT_IM + i, WT_IM + i, WT_RE + i))
    a('v_and_b32 v%d, 7, v0' % V_TT)
    a('v_lshrrev_b32 v%d, 3, v0' % (V_TT + 1))
    a('v_lshl_add_u32 v%d, v%d, 3, v%d' % (V_TT, V_TT, V_TT + 1))
    a('v_lshlrev_b32 v%d, 2, v%d' % (V_TT, V_TT))
    for i in range(8):
        a('ds_bpermute_b32 v%d, v%d, v%d' % (WT_RE + i, V_TT, WT_IM + i))
    a('s_waitcnt lgkmcnt(0)')
    for rnd in range(2):
        a('buffer_store_dwordx4 %s, v%d, s[%d:%d], 0 offen sc1' % (vr(WT_RE + 4 * rnd, 4), WT_AS[rnd], SW, SW + 3))
        vm.add('wts')


def p1_body(a, st_flags='', instr=False, mega=True):
    vm = Cnt(a, 'vmcnt', 63)
    lg = Cnt(a, 'lgkmcnt', 15)
    sp = Stamps(a, 21, 70, 72, instr)
    if instr:
        a('s_memtime s[74:75]')
    a('s_memrealtime s[76:77]')
    a('s_load_dwordx2 s[4:5], s[0:1], %d' % KA_X)
    a('s_load_dwordx4 s[92:95], s[0:1], %d' % KA_WR)
    a('s_load_dwordx4 s[60:63], s[0:1], %d' % KA_W1)
    a('s_load_dwordx4 s[64:67], s[0:1], %d' % KA_DBG)
    a('s_getpc_b64 s[68:69]')
    a('s_add_u32 s68, s68, tab_T@rel32@lo+4')
    a('s_addc_u32 s69, s69, tab_T@rel32@hi+12')
    a('v_lshrrev_b32 v1, 6, v0')
    a('v_and_b32 v0, 63, v0')
    decode_ids(a, S_MT, S_KS, S_U, S_T1, S_T2)
    a('v_readfirstlane_b32 s%d, v1' % S_WAVE)
    if 'nocode' not in MODE:
        Lc = a.newlabel('p1_ct')
        a('s_cmp_lg_u32 s%d, 7' % S_WAVE)
        a('s_cbranch_scc1 %s' % Lc)
        a('s_getpc_b64 s[%d:%d]' % (S_H, S_H + 1))
        a.label('code_here')
        a('s_and_b32 s%d, s%d, 0xffff' % (S_H + 1, S_H + 1))
        a('s_mov_b32 s%d, code_end-code_here' % (S_H + 2))
        a('s_mov_b32 s%d, 0x20000' % (S_H + 3))
        a('s_lshr_b32 s%d, s2, 3' % S_T1)
        a('s_lshl_b32 s%d, s%d, 13' % (S_T1, S_T1))
        a('v_lshlrev_b32 v%d, 7, v0' % V_T0)
        a('buffer_load_dword v%d, v%d, s[%d:%d], s%d offen' % (V_DUM, V_T0, S_H, S_H + 3, S_T1))
        a.label(Lc)
    a('s_lshr_b32 s%d, s%d, 2' % (S_G, S_WAVE))
    a('s_and_b32 s%d, s%d, 3' % (S_WR, S_WAVE))
    a('s_cmp_eq_u32 s%d, 0' % S_KS)
    a('s_cselect_b32 s%d, 3, 2' % S_NT_)
    a('s_cselect_b32 s%d, 0, 1' % S_TB)
    a('s_lshl_b32 s%d, s%d, 1' % (S_T1, S_KS))
    a('s_add_u32 s%d, s%d, s%d' % (S_TB, S_TB, S_T1))
    a('s_add_u32 s%d, s%d, 72' % (S_TB, S_TB))
    a('s_or_b32 s%d, s%d, s%d' % (S_T1, S_KS, S_U))
    a('s_cmp_eq_u32 s%d, 0' % S_T1)
    a('s_cselect_b32 s%d, 6, 5' % S_CNT)
    a('s_mul_i32 s%d, s%d, 3072' % (S_DW, S_WAVE))
    a('s_cmp_eq_u32 s%d, 0' % S_U)
    a('s_cselect_b32 s%d, s%d, 99' % (S_FTR, S_CNT))
    a('s_cselect_b32 s%d, 99, s%d' % (S_GPR, S_CNT))
    a('v_lshrrev_b32 v108, 3, v0')
    a('v_and_b32 v109, 7, v0')
    a('v_bfe_u32 v104, v0, 4, 1')
    a('s_mul_i32 s%d, s%d, 3' % (S_T1, S_WAVE))
    for i in range(3):
        a('s_add_u32 s%d, s%d, %d' % (S_T2, S_T1, i))
        a('s_lshl_b32 s%d, s%d, 3' % (S_T3, S_T2))
        a('v_add_u32 v106, s%d, v108' % S_T3)
        a('s_and_b32 s%d, s%d, 1' % (S_T2, S_T2))
        a('s_lshl_b32 s%d, s%d, 1' % (S_T2, S_T2))
        a('v_add_u32 v105, s%d, v104' % S_T2)
        a('v_lshlrev_b32 v105, 1, v105')
        a('v_xor_b32 v105, v105, v109')
        a('v_lshl_or_b32 v%d, v105, 20, v106' % (V_DKJ + i))
    a('s_lshl_b32 s%d, s%d, 2' % (S_N2, S_MT))
    a('s_lshr_b32 s%d, s%d, 1' % (S_T1, S_WAVE))
    a('s_add_u32 s%d, s%d, s%d' % (S_T1, S_T1, S_N2))
    a('s_and_b32 s%d, s%d, 1' % (S_T2, S_WAVE))
    a('s_lshl_b32 s%d, s%d, 6' % (S_T2, S_T2))
    a('s_add_u32 s%d, s%d, s%d' % (S_T1, S_T1, S_T2))
    a('s_add_u32 s%d, s%d, s%d' % (S_N2, S_N2, S_WR))
    for i in range(2):
        a('v_add_u32 v104, %d, v108' % (8 * i))
        a('v_lshrrev_b32 v105, 1, v104')
        a('v_xor_b32 v105, v105, v109')
        a('v_lshlrev_b32 v104, 7, v104')
        a('v_add_u32 v104, s%d, v104' % S_T1)
        a('v_mul_u32_u24 v104, %d, v104' % (D * 2))
        a('v_lshl_add_u32 v%d, v105, 4, v104' % (V_XO + i))
    a('s_mov_b32 s%d, 0' % S_P)
    a('s_mov_b32 s%d, 0' % S_WBASE)
    a('s_mov_b32 s%d, 0x20000' % (S_LD + 3))
    a('s_waitcnt lgkmcnt(0)')
    srd(a, S_X, 4, 5, S * D * 2)
    srd(a, S_W1, 60, 61, D * F * 2)
    srd(a, S_T, 68, 69, D * D * 2)
    set_load_panel(a, S_P)
    if 'not0' not in MODE:
        a('v_mul_u32_u24 v100, 57, v0')
        a('v_lshrrev_b32 v100, 9, v100')
        a('v_mul_u32_u24 v101, 9, v100')
        a('v_sub_u32 v101, v0, v101')
        a('s_lshl_b32 s%d, s%d, 2' % (S_T1, S_WAVE))
        a('v_add_u32 v102, s%d, v100' % S_T1)
        a('v_and_b32 v103, 15, v102')
        a('v_lshrrev_b32 v102, 4, v102')
        a('v_lshl_add_u32 v102, v103, 1, v102')
        a('s_lshl_b32 s%d, s%d, 2' % (S_T1, S_MT))
        a('s_add_u32 s%d, s%d, s%d' % (S_T1, S_T1, S_U))
        a('v_lshl_add_u32 v102, v102, 6, s%d' % S_T1)
        a('v_mul_u32_u24 v102, %d, v102' % (D * 2))
        a('v_lshl_add_u32 v102, v101, 7, v102')
        a('v_cmp_gt_u32 vcc, 36, v0')
        a('v_mov_b32 v103, 0x7fffffff')
        a('v_cndmask_b32 v102, v103, v102, vcc')
        a('buffer_load_dword v%d, v102, s[%d:%d], 0 offen' % (V_DUM, S_X, S_X + 3))
        a('s_and_b32 s%d, s%d, 7' % (S_T1, S_MT))
        a('s_lshl_b32 s%d, s%d, 3' % (S_T1, S_T1))
        a('s_add_u32 s%d, s%d, s%d' % (S_T1, S_T1, S_WAVE))
        a('s_mul_i32 s%d, s%d, 9' % (S_T1, S_T1))
        a('v_min_u32 v101, 8, v0')
        a('v_add_u32 v101, s%d, v101' % S_T1)
        a('v_mul_lo_u32 v101, v101, s%d' % S_PITCH)
        a('buffer_load_dword v%d, v101, s[%d:%d], s%d offen' % (V_DUM, S_LD, S_LD + 3, S_LOFF))
        vm.add('tch', 2)
    dma_x(a, vm, 0, 0)
    dma_x(a, vm, 1, 1)

    def wst(st):
        for i in range(3):
            dma_one(a, st, i)
            vm.add('d%d' % st)
        adv(a, S_WBASE)
    wst(0)
    for pc in range(2, 5):
        dma_x(a, vm, pc, pc)
    srd(a, S_DBG, 64, 65, 256)
    Ln = a.newlabel('p1_nn')
    a('s_or_b32 s%d, s2, s%d' % (S_T1, S_WAVE))
    a('s_cmp_lg_u32 s%d, 0' % S_T1)
    a('s_cbranch_scc1 %s' % Ln)
    a('s_or_b32 s%d, s76, 1' % S_T1)
    a('v_mov_b32 v104, s%d' % S_T1)
    a('v_mov_b32 v105, 0')
    a('buffer_store_dword v104, v105, s[%d:%d], 0 offen sc1' % (S_DBG, S_DBG + 3))
    a.label(Ln)
    if instr:
        sp.init()
        a('v_writelane_b32 v21, s74, 0')
        a('v_writelane_b32 v21, s76, 62')
        a('s_mov_b32 s70, 48')
        sp.stamp()
    srd(a, S_PG, 66, 67, 64 * 64, WS_PROG)
    a('s_lshl_b32 s%d, s%d, 2' % (S_PGO, S_MT))
    a('s_add_u32 s%d, s%d, s%d' % (S_PGO, S_PGO, S_KS))
    a('s_lshl_b32 s%d, s%d, 4' % (S_PGO, S_PGO))
    a('s_add_u32 s%d, s%d, s%d' % (S_PGO, S_PGO, S_U))
    a('s_lshl_b32 s%d, s%d, 2' % (S_PGO, S_PGO))
    MK, MN = S_SPIN, S_PREV
    a('s_and_b32 s%d, s%d, 1' % (MK, S_WR))
    a('s_lshr_b32 s%d, s%d, 1' % (MN, S_WR))
    a('s_lshl_b32 s%d, s%d, 11' % (S_R0, S_G))
    a('s_xor_b32 s%d, s%d, 2048' % (S_R1, S_R0))
    a('s_lshl_b32 s%d, s%d, 16' % (S_N0, MN))
    a('s_xor_b32 s%d, s%d, 0x10000' % (S_N1, S_N0))
    a('v_and_b32 v110, 15, v0')
    a('v_lshrrev_b32 v111, 4, v0')
    a('v_and_b32 v105, 1, v111')
    a('v_xor_b32 v105, s%d, v105' % MN)
    a('v_lshrrev_b32 v106, 1, v111')
    a('v_lshl_add_u32 v105, v105, 1, v106')
    a('s_lshl_b32 s%d, s%d, 2' % (S_T3, S_G))
    a('v_add_u32 v105, s%d, v105' % S_T3)
    a('v_lshrrev_b32 v106, 1, v110')
    a('v_xor_b32 v105, v105, v106')
    a('v_lshlrev_b32 v104, 7, v110')
    a('v_lshl_add_u32 v104, v105, 4, v104')
    a('s_mul_i32 s%d, s%d, %d' % (S_T3, S_MT, 72 * 16384))
    a('s_lshl_b32 s%d, s%d, 12' % (S_T2, S_WR))
    a('s_add_u32 s%d, s%d, s%d' % (S_T3, S_T3, S_T2))
    a('v_add_u32 v%d, s%d, v104' % (V_HA, S_T3))
    a('v_lshlrev_b32 v104, 14, v111')
    a('v_lshl_add_u32 v104, v110, 3, v104')
    a('s_lshl_b32 s%d, s%d, 17' % (S_T3, S_G))
    a('s_lshl_b32 s%d, s%d, 7' % (S_T2, S_N2))
    a('s_add_u32 s%d, s%d, s%d' % (S_T3, S_T3, S_T2))
    a('v_add_u32 v%d, s%d, v104' % (V_RTA, S_T3))
    a('s_lshl_b32 s%d, s%d, 7' % (S_T3, S_G))
    a('s_lshl_b32 s%d, s%d, 6' % (S_T2, MN))
    a('s_add_u32 s%d, s%d, s%d' % (S_T3, S_T3, S_T2))
    a('v_lshl_add_u32 v104, v111, 4, s%d' % S_T3)
    a('v_xor_b32 v105, 64, v104')
    a('v_add_u32 v%d, %d, v104' % (V_CSA, P1_CBL))
    a('v_add_u32 v%d, %d, v105' % (V_CSA + 1, P1_CBL))
    a('v_add_u32 v%d, %d, v104' % (V_CXA, P1_CSX))
    a('v_add_u32 v%d, %d, v105' % (V_CXA + 1, P1_CSX))
    a('s_lshl_b32 s%d, s%d, 8' % (S_T2, MK))
    a('v_add_u32 v%d, s%d, v%d' % (V_CXW, S_T2, V_CXA))
    a('s_lshl_b32 s%d, s%d, 12' % (S_T3, S_WR))
    a('s_add_u32 s%d, s%d, %d' % (S_T3, S_T3, P1_XB))
    a('v_lshrrev_b32 v104, 1, v110')
    a('v_xor_b32 v104, v104, v111')
    a('s_lshl_b32 s%d, s%d, 2' % (S_T2, MK))
    a('v_xor_b32 v104, s%d, v104' % S_T2)
    a('v_lshlrev_b32 v105, 7, v110')
    a('v_add_u32 v105, s%d, v105' % S_T3)
    a('v_lshl_add_u32 v106, v104, 4, v105')
    a('v_xor_b32 v104, 4, v104')
    a('v_lshl_add_u32 v107, v104, 4, v105')
    for rt in range(2):
        for j in range(2):
            a('v_add_u32 v%d, s%d, v%d' % (V_XR + 2 * rt + j, S_R0 + rt, 106 + j))
            a('v_add_u32 v%d, 0x10000, v%d' % (V_XR + 4 + 2 * rt + j, V_XR + 2 * rt + j))
    a('v_bfe_u32 v104, v0, 2, 2')
    a('v_and_b32 v105, 3, v0')
    a('v_lshl_add_u32 v106, v111, 3, v104')
    a('v_lshlrev_b32 v106, 7, v106')
    a('v_and_b32 v107, 1, v105')
    a('v_lshl_add_u32 v106, v107, 3, v106')
    a('v_lshrrev_b32 v107, 1, v104')
    a('v_and_b32 v108, 1, v111')
    a('v_lshl_add_u32 v107, v108, 1, v107')
    a('v_lshlrev_b32 v107, 1, v107')
    a('v_lshrrev_b32 v108, 1, v105')
    a('s_lshl_b32 s%d, s%d, 2' % (S_T3, S_G))
    a('s_lshl_b32 s%d, s%d, 1' % (S_T2, MN))
    a('s_add_u32 s%d, s%d, s%d' % (S_T3, S_T3, S_T2))
    a('s_lshl_b32 s%d, s%d, 12' % (S_T2, MK))
    a('v_add_u32 v109, s%d, v108' % S_T3)
    a('v_xor_b32 v109, v109, v107')
    for nt in range(2):
        if nt:
            a('v_xor_b32 v109, 2, v109')
        a('v_lshl_add_u32 v104, v109, 4, v106')
        a('v_add_u32 v%d, s%d, v104' % (V_RC + nt, S_T2))
        a('v_subrev_u32 v%d, s%d, v104' % (V_RC + 2 + nt, S_T2))
    for i in range(4):
        a('v_mov_b32 v%d, 0x3f803f80' % (V_ONE + i))
    a('s_mov_b32 s%d, 0' % S_RB)
    a('s_mov_b32 s%d, 0' % S_RB1)
    a('s_mov_b32 s%d, 0' % S_RBD)
    a('s_mov_b32 s%d, 0' % (S_RBD + 1))
    panel_id(a, S_CUR, S_P)
    wt_loads(a, vm, 0, S_H, S_RT)
    wt_loads(a, vm, 1, S_H, S_RT)
    if instr:
        a('s_mov_b32 s70, 1')
    vm.wait('x4')
    sp.stamp()
    a('s_barrier')
    rd3(a, lg, 0, 0)
    rd3(a, lg, 0, 1)
    rd3(a, lg, 1, 0)
    for pc in range(2):
        xreads(a, lg, pc, pc)
    wst(1)
    srd(a, S_H, 92, 93, S * DF * 2)
    srd(a, S_RT, 94, 95, S * DF * 2)
    wst(2)
    if 'notouch' not in MODE:
        touch_w(a, 1)
    if 'tx' in MODE:
        Lx = a.newlabel('p1_tx')
        a('s_sub_u32 s%d, s%d, 4' % (S_T1, S_WAVE))
        a('s_cmp_gt_u32 s%d, 1' % S_T1)
        a('s_cbranch_scc1 %s' % Lx)
        a('s_lshl_b32 s%d, s%d, 6' % (S_T1, S_T1))
        a('s_lshl_b32 s%d, s%d, 2' % (S_T2, S_MT))
        a('s_add_u32 s%d, s%d, s%d' % (S_T1, S_T1, S_T2))
        a('s_add_u32 s%d, s%d, s%d' % (S_T1, S_T1, S_U))
        a('s_mul_i32 s%d, s%d, %d' % (S_T1, S_T1, D * 2))
        a('v_lshrrev_b32 v104, 2, v0')
        a('v_mul_u32_u24 v104, %d, v104' % (128 * D * 2))
        a('v_and_b32 v105, 3, v0')
        a('v_lshl_add_u32 v104, v105, 7, v104')
        a('buffer_load_dword v%d, v104, s[%d:%d], s%d offen offset:640' % (V_DUM, S_X, S_X + 3, S_T1))
        a.label(Lx)
    for pc in range(2, 5):
        xreads(a, lg, pc, pc)
    srd(a, S_B1, 62, 63, F * 2)
    panel_id(a, S_T4, S_WAVE)
    a('s_lshl_b32 s%d, s%d, 7' % (S_T4, S_T4))
    a('v_lshlrev_b32 v92, 1, v0')
    a('buffer_load_ushort v93, v92, s[%d:%d], s%d offen' % (S_B1, S_B1 + 3, S_T4))
    vm.add('b1')
    a('s_mov_b32 s%d, 1' % S_T4)
    set_load_panel(a, S_T4)
    a('s_cmp_eq_u32 s%d, 0' % S_WAVE)
    a('s_cselect_b32 s%d, 0, 0x7fffffff' % S_T1)
    a('v_mov_b32 v%d, 0' % V_TT)
    a('buffer_load_dword v%d, v%d, s[%d:%d], s%d offen' % (V_NN, V_TT, S_DBG, S_DBG + 3, S_T1))
    vm.add('nn')
    lg.wait_all()
    a('s_barrier')
    S_ = sp if instr else None
    sp.rstamp(54)
    body(a, vm, lg, 'first', 0, st_flags, S_)
    q_lg = ['w0_0'] * 2 + ['w0_1'] * 2 + ['w1_0'] * 2 + ['cw']
    q_first = list(vm.q)

    def run(kind, par, q_in):
        lg.q = list(q_lg)
        vm.q = list(q_in)
        body(a, vm, lg, kind, par, st_flags, S_)
        assert lg.q == q_lg, (lg.q, q_lg)
        return list(vm.q)

    LT = a.newlabel('p1_bT')
    L0 = a.newlabel('p1_b0')
    LE0 = a.newlabel('p1_e0')
    LE1 = a.newlabel('p1_e1')
    LX = a.newlabel('p1_x')
    sp.rstamp(55)
    a('s_cmp_ge_u32 s%d, 72' % S_PREV)
    a('s_cbranch_scc1 %s' % LT)
    run('W1', 1, q_first)
    a('s_branch %s' % L0)
    a.label(LT)
    run('T1', 1, q_first)
    qM = ['d1', 'd2', 'es', 'd0']
    a.label(L0)
    q2 = run('W', 0, qM)
    assert q2[-1] == 'd0' and 'es' in q2, q2
    a('s_cmp_ge_u32 s%d, s%d' % (S_P, S_CNT))
    a('s_cbranch_scc1 %s' % LE0)
    run('W', 1, qM)
    a('s_cmp_lt_u32 s%d, s%d' % (S_P, S_CNT))
    a('s_cbranch_scc1 %s' % L0)
    for par, L in ((1, LE1), (0, LE0)):
        a.label(L)
        sp.stamp()
        a('s_waitcnt lgkmcnt(0)')
        a('s_barrier')
        lg.q = []
        epi_loads(a, lg, False)
        lg.wait('el')
        for t in epi_ops(ACCS[par], False, st_flags):
            emit_epi(a, vm, t)
        if par == 1:
            a('s_branch %s' % LX)
    a.label(LX)
    return sp
```

```python
import numpy as np


def bf16(x):
    u = int(np.float32(x).view(np.uint32))
    return ((u + 0x7fff + ((u >> 16) & 1)) >> 16) & 0xffff


def cos576(j):
    j %= 576
    if j % 144 == 0:
        return [1.0, 0.0, -1.0, 0.0][j // 144]
    return float(np.cos(2 * np.pi * j / 576))


def tab_T():
    L = ['.section .rodata,"a"', '.p2align 8']
    for j in range(576):
        L.append('.set ct_%d, 0x%04x' % (j, bf16(cos576(j))))
    L += ['.altmacro',
          '.macro em2 a, b',
          '.short ct_\\a, ct_\\b',
          '.endm',
          'tab_T:',
          '.set dd, 0',
          '.rept 576',
          '  em2 %((288*dd)%576), 0',
          '  .set pp, 1',
          '  .rept 287',
          '    em2 %((pp*dd)%576), %((pp*dd+144)%576)',
          '    .set pp, pp+1',
          '  .endr',
          '  .set dd, dd+1',
          '.endr',
          '.noaltmacro']
    return '\n'.join(L) + '\n'


def _dw(vals):
    L = []
    vals = list(int(v) for v in vals)
    for i in range(0, len(vals), 8):
        L.append('.long ' + ','.join('0x%x' % v for v in vals[i:i + 8]))
    return L


def _frag(fn):
    out = np.zeros((64, 4), np.uint32)
    for lane in range(64):
        i, h = lane & 31, lane >> 5
        for d in range(4):
            lo = bf16(fn(i, h, 2 * d))
            hi = bf16(fn(i, h, 2 * d + 1))
            out[lane, d] = lo | (hi << 16)
    return out.reshape(-1)


def cs(num, den):
    num %= den
    if (4 * num) % den == 0:
        k = 4 * num // den
        return [(1.0, 0.0), (0.0, 1.0), (-1.0, 0.0), (0.0, -1.0)][k]
    t = 2 * np.pi * num / den
    return float(np.cos(t)), float(np.sin(t))


def sig(j, h, e):
    return 16 * j + 8 * (e >> 2) + 4 * h + (e & 3)


FT_F1 = 0
FT_C64 = 8192
FT_C32 = 24576
FT_TW1 = 28672
FT_TW2 = 45056
FT_SIZE = 61440


def tab_F(swz=False):
    d = []
    for part in range(2):
        for j in range(4):
            def fn(i, h, e, j=j, part=part):
                kap = 16 * j + 8 * h + e
                n1, c = kap >> 1, kap & 1
                co, si = cs(n1 * i, 32)
                if part == 0:
                    return co if c == 0 else si
                return -si if c == 0 else co
            d.append(_frag(fn))
    for part in range(2):
        for u in range(2):
            for j in range(4):
                d.append(_frag(lambda i, h, e, u=u, j=j, part=part: cs((32 * u + i) * sig(j, h, e), 64)[part]))
    for part in range(2):
        for j in range(2):
            d.append(_frag(lambda i, h, e, j=j, part=part: cs((2 * (i & 15) + (i >> 4)) * sig(j, h, e), 32)[part]))
    scale = 1.0 / (2048.0 * 576.0)
    for which in range(2):
        for t in range(2):
            for rq in range(4):
                for part in range(2):
                    o = np.zeros((64, 4), np.float32)
                    for lane in range(64):
                        i, h = lane & 31, lane >> 5
                        for e in range(4):
                            m = 8 * rq + 4 * h + e
                            if which == 0:
                                co, si = cs((32 * t + m) * i, 2048)
                                o[lane, e] = co if part == 0 else -si
                            else:
                                co, si = cs((32 * t + i) * m, 2048)
                                o[lane, e] = (co if part == 0 else si) * scale
                    d.append(o.view(np.uint32).reshape(-1))
    d = np.concatenate(d)
    assert d.size * 4 == FT_SIZE
    if swz:
        g = d.reshape(-1, 8, 4)
        o = np.empty_like(g)
        for k in range(g.shape[0]):
            f = ((k >> 1) & 1) + 2 * ((k >> 3) & 1)
            o[k, np.arange(8) ^ (2 * f)] = g[k]
        d = o.reshape(-1)
    return '\n'.join(['.section .rodata,"a"', '.p2align 8', 'tab_F:'] + _dw(d)) + '\n'


def tab_Tinv():
    L = ['.section .rodata,"a"', '.p2align 8']
    for j in range(576):
        L.append('.set c2_%d, 0x%04x' % (j, bf16(2 * cos576(j))))
    L += ['.altmacro',
          '.macro em4 a, b, c, d',
          '.short c2_\\a, c2_\\b, c2_\\c, c2_\\d',
          '.endm',
          'tab_Tinv:',
          '.set nn, 0',
          '.rept 6',
          '  .rept 48',
          '    .short 0x3f80, 0xbf80',
          '  .endr',
          '  .rept 96',
          '    .short 0',
          '  .endr',
          '  .set kk, 2',
          '  .rept 574',
          '    .set pp, kk>>1',
          '    .set ph, (kk&1)*144',
          '    .set jj, 0',
          '    .rept 12',
          '      .set dd, nn*96 + ((jj ^ ((kk>>2)&2))*8)',
          '      em4 %((pp*dd+ph)%576), %((pp*(dd+1)+ph)%576), %((pp*(dd+2)+ph)%576), %((pp*(dd+3)+ph)%576)',
          '      em4 %((pp*(dd+4)+ph)%576), %((pp*(dd+5)+ph)%576), %((pp*(dd+6)+ph)%576), %((pp*(dd+7)+ph)%576)',
          '      .set jj, jj+1',
          '    .endr',
          '    .set kk, kk+1',
          '  .endr',
          '  .set nn, nn+1',
          '.endr',
          '.noaltmacro']
    return '\n'.join(L) + '\n'
```

```python
import sys
sys.path.insert(0, 'gen')
from asmlib import *
from layout import *
import k_p1, k_g2, k_fft, tables
from k_p1 import S_WAVE, S_MT, S_U, S_KS, S_NONCE, S_T1, S_T2, S_T3, S_T4, S_SPIN, S_PG, S_PGO, S_P, SPIN_MAX
instr = '--instr' in sys.argv
out = [z for z in sys.argv[1:] if z.endswith('.s')]
out = out[0] if out else 'cdna_kernels/%s.s' % NAME
if '--dbg' in sys.argv:
    Stamps.DBG = [(128, [1, 2, 5, 8, 17, 19, 20, 21, 22, 24], 1), (16, [18, 19, 20, 26], 11)]
k_p1.MEGA = True
Stamps.LIGHT = '--light' in sys.argv
for z in sys.argv:
    if z.startswith('--mode='):
        k_p1.MODE = k_g2.MODE = z[7:]
S_Q, S_LB, S_PR = 91, 3, 100


def fft_hook(a, js):
    V = k_p1.V_CS
    if js == 15:
        a('v_lshlrev_b32 v%d, 6, v0' % (V + 4))
        a('buffer_load_dwordx4 %s, v%d, s[%d:%d], 0 offen' % (vr(V, 4), V + 4, S_PG, S_PG + 3))
        a('s_mul_i32 s%d, s%d, 3' % (S_Q, S_MT))
        a('s_add_u32 s%d, s%d, s%d' % (S_Q, S_Q, S_KS))
        a('s_sub_u32 s%d, s%d, 1' % (S_Q, S_Q))
        a('s_mul_i32 s%d, s%d, 48' % (S_T1, S_WAVE))
        a('s_add_u32 s%d, s%d, s%d' % (S_Q, S_Q, S_T1))
        c6 = 'c5' not in k_p1.MODE
        a('s_cmp_lt_u32 s%d, %d' % (S_WAVE, 6 if c6 else 5))
        a('s_cselect_b32 s%d, s%d, 999' % (S_Q, S_Q))
        a('s_lshl_b32 s%d, s%d, 4' % (S_T1, S_WAVE))
        a('s_add_u32 s%d, s%d, s%d' % (S_T1, S_T1, S_MT))
        a('s_add_u32 s%d, s%d, %d' % (S_T1, S_T1, 288 if c6 else 240))
        a('s_cmp_eq_u32 s%d, 0' % S_KS)
        a('s_cselect_b32 s%d, s%d, s%d' % (S_Q, S_T1, S_Q))
        a('s_and_b32 s%d, s%d, 1' % (S_PR, S_P))
        a('s_mul_i32 s%d, s%d, %d' % (S_PR, S_PR, 3 * k_p1.P1_STG))
        a('s_sub_u32 s%d, %d, s%d' % (S_LB, 3 * k_p1.P1_STG, S_PR))
        a('s_lshl_b32 s%d, s%d, 13' % (S_T1, S_WAVE))
        a('s_add_u32 s%d, s%d, s%d' % (S_PR, S_PR, S_T1))
        return
    Lrw = a.newlabel('aux_rw')
    Lgo = a.newlabel('aux_go')
    Lsk = a.newlabel('aux_sk')
    a('s_waitcnt vmcnt(1)')
    a('s_cmp_gt_u32 s%d, 288' % S_Q)
    a('s_cbranch_scc1 %s' % Lsk)
    a('s_mov_b32 s%d, 0' % S_SPIN)
    a.label(Lrw)
    for r in range(4):
        a('v_subrev_u32 v%d, s%d, v%d' % (V + r, S_NONCE, V + r))
        a('v_subrev_u32 v%d, 1, v%d' % (V + r, V + r))
    a('v_max3_u32 v%d, v%d, v%d, v%d' % (V, V, V + 1, V + 2))
    a('v_max_u32 v%d, v%d, v%d' % (V, V, V + 3))
    a('v_cmp_lt_u32 vcc, 15, v%d' % V)
    a('s_add_u32 s%d, s%d, 1' % (S_SPIN, S_SPIN))
    a('s_nop 3')
    a('s_cbranch_vccz %s' % Lgo)
    a('s_sleep 8')
    a('buffer_load_dwordx4 %s, v%d, s[%d:%d], 0 offen sc1' % (vr(V, 4), V + 4, S_PG, S_PG + 3))
    a('s_waitcnt vmcnt(0)')
    a('s_cmp_lt_u32 s%d, %d' % (S_SPIN, SPIN_MAX))
    a('s_cbranch_scc1 %s' % Lrw)
    a.label(Lgo)
    k_fft.rt_dma(a, S_Q, k_p1.S_RT, S_PR, S_T1, S_T2, V)
    a.label(Lsk)


def g2_hook(a, js):
    V = k_p1.V_CS
    if js == 15:
        a('v_and_b32 v%d, 3, v0' % (V + 1))
        a('v_lshlrev_b32 v%d, 2, v%d' % (V + 2, V + 1))
        a('s_and_b32 s%d, s%d, 0xffffffc0' % (S_T1, S_PGO))
        a('buffer_load_dword v%d, v%d, s[%d:%d], s%d offen' % (V, V + 2, S_PG, S_PG + 3, S_T1))
        return
    Lre = a.newlabel('g2h_re')
    Lok = a.newlabel('g2h_ok')
    a('s_mov_b32 s%d, 0' % S_SPIN)
    a('s_waitcnt vmcnt(1)')
    a.label(Lre)
    a('v_subrev_u32 v%d, s%d, v%d' % (V, S_NONCE, V))
    a('v_cmp_gt_u32 vcc, 16, v%d' % V)
    a('v_cndmask_b32 v%d, 0, v%d, vcc' % (V, V))
    a('v_lshl_add_u32 v%d, v%d, 2, v%d' % (V, V, V + 1))
    a('v_min_u32_dpp v%d, v%d, v%d quad_perm:[1,0,3,2] row_mask:0xf bank_mask:0xf' % (V, V, V))
    a('v_min_u32_dpp v%d, v%d, v%d quad_perm:[2,3,0,1] row_mask:0xf bank_mask:0xf' % (V, V, V))
    a('v_readfirstlane_b32 s3, v%d' % V)
    a('s_add_u32 s%d, s%d, 1' % (S_SPIN, S_SPIN))
    a('s_cmp_ge_u32 s3, 6')
    a('s_cbranch_scc1 %s' % Lok)
    a('s_sleep 4')
    a('s_and_b32 s%d, s%d, 0xffffffc0' % (S_T1, S_PGO))
    a('buffer_load_dword v%d, v%d, s[%d:%d], s%d offen sc1' % (V, V + 2, S_PG, S_PG + 3, S_T1))
    a('s_waitcnt vmcnt(0)')
    a('s_cmp_lt_u32 s%d, %d' % (S_SPIN, SPIN_MAX))
    a('s_cbranch_scc1 %s' % Lre)
    a.label(Lok)
    a('s_mul_i32 s%d, s%d, 72' % (S_T2, S_MT))
    a('s_mul_i32 s%d, s%d, 18' % (S_T3, S_KS))
    a('s_add_u32 s%d, s%d, s%d' % (S_T2, S_T2, S_T3))
    a('s_lshl_b32 s%d, s%d, 14' % (S_T2, S_T2))
    a('s_mul_i32 s%d, s%d, 6144' % (S_T1, S_WAVE))
    a('s_add_u32 s%d, s%d, s%d' % (S_T2, S_T2, S_T1))
    a('v_lshlrev_b32 v%d, 4, v0' % V)
    for hf in range(2):
        a('s_add_u32 m0, s%d, %d' % (S_T1, 3072 * hf))
        a('s_add_u32 s%d, s%d, %d' % (S_T3, S_T2, 3072 * hf))
        for i in range(3):
            a('buffer_load_dwordx4 v%d, s[%d:%d], s%d offen offset:%d lds' % (V, k_p1.S_H, k_p1.S_H + 3, S_T3, 1024 * i))


k_p1.HOOK['fft'] = fft_hook
k_p1.HOOK['g2'] = g2_hook
a = Asm()
a('s_cmp_ge_u32 s2, 256')
a('s_cbranch_scc1 g2_exit')
if 'perm' in k_p1.MODE:
    a('s_lshr_b32 s3, s2, 5')
    a('s_and_b32 s2, s2, 31')
    a('s_lshl_b32 s2, s2, 3')
    a('s_or_b32 s2, s2, s3')
sp = k_p1.p1_body(a, st_flags='sc1', instr=instr, mega=True)
a('s_waitcnt vmcnt(2) lgkmcnt(0)')
if instr:
    a('v_mov_b32 v255, v21')
a('s_cmp_eq_u32 s%d, 0' % S_U)
a('s_cbranch_scc1 aux_part')
a('s_load_dwordx4 s[60:63], s[0:1], %d' % KA_W2)
a('s_load_dwordx2 s[6:7], s[0:1], %d' % KA_OUT)
a('s_sub_u32 s%d, s%d, 1' % (S_U, S_U))
a('s_mov_b32 s78, s%d' % S_P)
a('s_waitcnt lgkmcnt(0)')


def c_start(a):
    pass


def c_start2(a):
    pass


def pub_final(a):
    L = a.newlabel('mg_pub')
    a('s_cmp_lg_u32 s%d, 0' % S_WAVE)
    a('s_cbranch_scc1 %s' % L)
    a('s_add_u32 s%d, s%d, s78' % (S_T1, S_NONCE))
    a('v_mov_b32 v12, s%d' % S_T1)
    a('v_mov_b32 v13, 0')
    a('buffer_store_dword v12, v13, s[%d:%d], s%d offen sc1' % (S_PG, S_PG + 3, S_PGO))
    a.label(L)


k_g2.g2_body(a, instr=instr, hooks={'mega': 1, 'c_start': c_start, 'c_start2': c_start2, 'pub': pub_final, 'nostampinit': 1})
a.label('aux_part')
sp2 = Stamps(a, 255, 70, 72, instr)
sp2.stamp()
sp2.rstamp(56)
srd(a, 16, 66, 67, 289 * 8192, WS_WT)
srd(a, 20, 66, 67, 32 * ZT_BLK, WS_ZT)
srd(a, 28, 66, 67, 2048, WS_FLAGZ)
a('s_barrier')
a('s_cmp_gt_u32 s%d, 288' % S_Q)
a('s_cbranch_scc0 aux_work')
a('s_waitcnt vmcnt(0)')
a('s_barrier')
k_p1.publish(a, 0)
a('s_branch aux_done')
a.label('aux_work')
sp2.stamp()


def mid(vm):
    a('s_waitcnt vmcnt(0)')
    a('s_barrier')
    L = a.newlabel('aux_pub')
    a('s_cmp_lg_u32 s%d, 0' % S_WAVE)
    a('s_cbranch_scc1 %s' % L)
    a('s_add_u32 s%d, s%d, s%d' % (S_T1, S_NONCE, S_P))
    a('v_mov_b32 v250, s%d' % S_T1)
    a('v_mov_b32 v251, 0')
    a('buffer_store_dword v250, v251, s[%d:%d], s%d offen sc1' % (S_PG, S_PG + 3, S_PGO))
    a.label(L)


def post_w(vm):
    a('s_getpc_b64 s[94:95]')
    a('s_add_u32 s94, s94, tab_Tinv@rel32@lo+4')
    a('s_addc_u32 s95, s95, tab_Tinv@rel32@hi+12')
    a('s_mul_i32 s%d, s%d, 1821' % (S_T2, S_Q))
    a('s_lshr_b32 s%d, s%d, 16' % (S_T2, S_T2))
    a('s_add_u32 s%d, s%d, 1' % (S_T2, S_T2))
    a('s_mul_i32 s%d, s%d, %d' % (S_T2, S_T2, 45 * 16384))
    a('s_lshl_b32 s%d, s%d, 14' % (S_T3, S_Q))
    a('s_add_u32 s%d, s%d, s%d' % (S_T2, S_T2, S_T3))
    a('s_sub_u32 s%d, s%d, %d' % (S_T3, S_T3, 144 * 16384))
    a('v_lshlrev_b32 v4, 8, v0')
    a('s_cmp_lt_u32 s%d, 144' % S_Q)
    a('s_cselect_b32 s8, s92, s94')
    a('s_cselect_b32 s9, s93, s95')
    a('s_cselect_b32 s%d, s%d, s%d' % (S_T2, S_T2, S_T3))
    a('s_mov_b32 s%d, %d' % (S_T3, D * D * 2))
    a('s_cselect_b32 s10, %d, s%d' % (F * D * 2, S_T3))
    a('s_and_b32 s9, s9, 0xffff')
    a('s_mov_b32 s11, 0x20000')
    a('buffer_load_dword v254, v4, s[8:11], s%d offen' % S_T2)
    a('buffer_load_dword v254, v4, s[8:11], s%d offen offset:128' % S_T2)
    vm.add('t', 2)


k_fft.fft_body(a, S_Q, 8, 12, 16, 20, 32, st_flags='sc1', lds=True, mid=mid, sp=sp2 if instr else None, s_lbase=S_LB, s_priv=S_PR, post_w=post_w if 'pf3' in k_p1.MODE else None)
sp2.stamp()
a('s_waitcnt vmcnt(0)')
a('s_lshl_b32 s24, s%d, 2' % S_Q)
a('v_mov_b32 v2, s%d' % S_NONCE)
a('v_mov_b32 v3, 0')
a('buffer_store_dword v2, v3, s[28:31], s24 offen sc1')
a.label('aux_done')
sp2.stamp()
sp2.rstamp(57)
if instr:
    a('s_lshl_b32 s71, s2, 3')
    a('s_add_u32 s71, s71, s%d' % S_WAVE)
    sp2.dump(66, 67, 8, 71, 1)
a.label('g2_exit')
a('s_endpgm')
a.label('code_end')
kn = NAME + '_kernel'
hdr = '''; generated by gen/gen_mega.py
; @launch %sgrid=(256,1,1) block=(512,1,1) lds=163840
.amdgcn_target "amdgcn-amd-amdhsa--gfx950"
''' % ('kernel=%s ' % kn if '--list' in sys.argv else '')
open(out, 'w').write(hdr + kernel_text(kn, a).replace('CODE_BYTES', 'code_end-%s' % kn) + tables.tab_T() + tables.tab_Tinv() + tables.tab_F(True))
```

```python
import sys
sys.path.insert(0, 'gen')
from asmlib import *
from layout import *
import k_p1, k_g2, k_fft, tables
from k_p1 import S_WAVE, S_MT, S_U, S_KS, S_NONCE, S_T1, S_T2, S_T3, S_T4, S_SPIN, S_PG, S_PGO, S_P, SPIN_MAX
instr = '--instr' in sys.argv
out = [z for z in sys.argv[1:] if z.endswith('.s')]
out = out[0] if out else 'cdna_kernels/%s.s' % NAME
if '--dbg' in sys.argv:
    Stamps.DBG = [(128, [1, 2, 5, 8, 17, 19, 20, 21, 22, 24], 1), (16, [18, 19, 20, 26], 11)]
k_p1.MEGA = True
Stamps.LIGHT = '--light' in sys.argv
for z in sys.argv:
    if z.startswith('--mode='):
        k_p1.MODE = k_g2.MODE = z[7:]
S_Q, S_LB, S_PR = 91, 3, 100


def fft_hook(a, js):
    V = k_p1.V_CS
    if js == 15:
        a('v_lshlrev_b32 v%d, 6, v0' % (V + 4))
        a('buffer_load_dwordx4 %s, v%d, s[%d:%d], 0 offen' % (vr(V, 4), V + 4, S_PG, S_PG + 3))
        a('s_mul_i32 s%d, s%d, 3' % (S_Q, S_MT))
        a('s_add_u32 s%d, s%d, s%d' % (S_Q, S_Q, S_KS))
        a('s_sub_u32 s%d, s%d, 1' % (S_Q, S_Q))
        a('s_mul_i32 s%d, s%d, 48' % (S_T1, S_WAVE))
        a('s_add_u32 s%d, s%d, s%d' % (S_Q, S_Q, S_T1))
        c6 = 'c5' not in k_p1.MODE
        a('s_cmp_lt_u32 s%d, %d' % (S_WAVE, 6 if c6 else 5))
        a('s_cselect_b32 s%d, s%d, 999' % (S_Q, S_Q))
        a('s_lshl_b32 s%d, s%d, 4' % (S_T1, S_WAVE))
        a('s_add_u32 s%d, s%d, s%d' % (S_T1, S_T1, S_MT))
        a('s_add_u32 s%d, s%d, %d' % (S_T1, S_T1, 288 if c6 else 240))
        a('s_cmp_eq_u32 s%d, 0' % S_KS)
        a('s_cselect_b32 s%d, s%d, s%d' % (S_Q, S_T1, S_Q))
        a('s_and_b32 s%d, s%d, 1' % (S_PR, S_P))
        a('s_mul_i32 s%d, s%d, %d' % (S_PR, S_PR, 3 * k_p1.P1_STG))
        a('s_sub_u32 s%d, %d, s%d' % (S_LB, 3 * k_p1.P1_STG, S_PR))
        a('s_lshl_b32 s%d, s%d, 13' % (S_T1, S_WAVE))
        a('s_add_u32 s%d, s%d, s%d' % (S_PR, S_PR, S_T1))
        return
    Lrw = a.newlabel('aux_rw')
    Lgo = a.newlabel('aux_go')
    Lsk = a.newlabel('aux_sk')
    a('s_waitcnt vmcnt(1)')
    a('s_cmp_gt_u32 s%d, 288' % S_Q)
    a('s_cbranch_scc1 %s' % Lsk)
    a('s_mov_b32 s%d, 0' % S_SPIN)
    a.label(Lrw)
    for r in range(4):
        a('v_subrev_u32 v%d, s%d, v%d' % (V + r, S_NONCE, V + r))
        a('v_subrev_u32 v%d, 1, v%d' % (V + r, V + r))
    a('v_max3_u32 v%d, v%d, v%d, v%d' % (V, V, V + 1, V + 2))
    a('v_max_u32 v%d, v%d, v%d' % (V, V, V + 3))
    a('v_cmp_lt_u32 vcc, 15, v%d' % V)
    a('s_add_u32 s%d, s%d, 1' % (S_SPIN, S_SPIN))
    a('s_nop 3')
    a('s_cbranch_vccz %s' % Lgo)
    a('s_sleep 8')
    a('buffer_load_dwordx4 %s, v%d, s[%d:%d], 0 offen sc1' % (vr(V, 4), V + 4, S_PG, S_PG + 3))
    a('s_waitcnt vmcnt(0)')
    a('s_cmp_lt_u32 s%d, %d' % (S_SPIN, SPIN_MAX))
    a('s_cbranch_scc1 %s' % Lrw)
    a.label(Lgo)
    k_fft.rt_dma(a, S_Q, k_p1.S_RT, S_PR, S_T1, S_T2, V)
    a.label(Lsk)


def g2_hook(a, js):
    V = k_p1.V_CS
    if js == 15:
        a('v_and_b32 v%d, 3, v0' % (V + 1))
        a('v_lshlrev_b32 v%d, 2, v%d' % (V + 2, V + 1))
        a('s_and_b32 s%d, s%d, 0xffffffc0' % (S_T1, S_PGO))
        a('buffer_load_dword v%d, v%d, s[%d:%d], s%d offen' % (V, V + 2, S_PG, S_PG + 3, S_T1))
        return
    Lre = a.newlabel('g2h_re')
    Lok = a.newlabel('g2h_ok')
    a('s_mov_b32 s%d, 0' % S_SPIN)
    a('s_waitcnt vmcnt(1)')
    a.label(Lre)
    a('v_subrev_u32 v%d, s%d, v%d' % (V, S_NONCE, V))
    a('v_cmp_gt_u32 vcc, 16, v%d' % V)
    a('v_cndmask_b32 v%d, 0, v%d, vcc' % (V, V))
    a('v_lshl_add_u32 v%d, v%d, 2, v%d' % (V, V, V + 1))
    a('v_min_u32_dpp v%d, v%d, v%d quad_perm:[1,0,3,2] row_mask:0xf bank_mask:0xf' % (V, V, V))
    a('v_min_u32_dpp v%d, v%d, v%d quad_perm:[2,3,0,1] row_mask:0xf bank_mask:0xf' % (V, V, V))
    a('v_readfirstlane_b32 s3, v%d' % V)
    a('s_add_u32 s%d, s%d, 1' % (S_SPIN, S_SPIN))
    a('s_cmp_ge_u32 s3, 6')
    a('s_cbranch_scc1 %s' % Lok)
    a('s_sleep 4')
    a('s_and_b32 s%d, s%d, 0xffffffc0' % (S_T1, S_PGO))
    a('buffer_load_dword v%d, v%d, s[%d:%d], s%d offen sc1' % (V, V + 2, S_PG, S_PG + 3, S_T1))
    a('s_waitcnt vmcnt(0)')
    a('s_cmp_lt_u32 s%d, %d' % (S_SPIN, SPIN_MAX))
    a('s_cbranch_scc1 %s' % Lre)
    a.label(Lok)
    a('s_mul_i32 s%d, s%d, 72' % (S_T2, S_MT))
    a('s_mul_i32 s%d, s%d, 18' % (S_T3, S_KS))
    a('s_add_u32 s%d, s%d, s%d' % (S_T2, S_T2, S_T3))
    a('s_lshl_b32 s%d, s%d, 14' % (S_T2, S_T2))
    a('s_mul_i32 s%d, s%d, 6144' % (S_T1, S_WAVE))
    a('s_add_u32 s%d, s%d, s%d' % (S_T2, S_T2, S_T1))
    a('v_lshlrev_b32 v%d, 4, v0' % V)
    for hf in range(2):
        a('s_add_u32 m0, s%d, %d' % (S_T1, 3072 * hf))
        a('s_add_u32 s%d, s%d, %d' % (S_T3, S_T2, 3072 * hf))
        for i in range(3):
            a('buffer_load_dwordx4 v%d, s[%d:%d], s%d offen offset:%d lds' % (V, k_p1.S_H, k_p1.S_H + 3, S_T3, 1024 * i))


k_p1.HOOK['fft'] = fft_hook
k_p1.HOOK['g2'] = g2_hook
a = Asm()
a('s_cmp_ge_u32 s2, 256')
a('s_cbranch_scc1 g2_exit')
if 'ticket' in k_p1.MODE:
    a('s_load_dwordx2 s[4:5], s[0:1], %d' % KA_DBG)
    a('s_getreg_b32 s3, hwreg(HW_REG_XCC_ID)')
    a('s_and_b32 s3, s3, 7')
    a('v_readfirstlane_b32 s6, v0')
    a('s_cmp_ge_u32 s6, 64')
    a('s_cbranch_scc1 tk_wait')
    a('s_waitcnt lgkmcnt(0)')
    srd(a, 8, 4, 5, 256)
    a('s_mov_b32 s7, 0')
    a.label('tk_try')
    a('s_lshl_b32 s12, s3, 4')
    a('s_add_u32 s12, s12, 64')
    a('v_mov_b32 v2, s12')
    a('v_mov_b32 v1, 1')
    a('s_mov_b64 exec, 1')
    a('buffer_atomic_add v1, v2, s[8:11], 0 offen sc0')
    a('s_waitcnt vmcnt(0)')
    a('s_mov_b64 exec, -1')
    a('v_readfirstlane_b32 s12, v1')
    a('s_cmp_lt_u32 s12, 32')
    a('s_cbranch_scc1 tk_got')
    a('s_add_u32 s3, s3, 1')
    a('s_and_b32 s3, s3, 7')
    a('s_add_u32 s7, s7, 1')
    a('s_cmp_lt_u32 s7, 8')
    a('s_cbranch_scc1 tk_try')
    a.label('tk_got')
    a('s_lshl_b32 s12, s12, 3')
    a('s_or_b32 s12, s12, s3')
    a('v_mov_b32 v1, s12')
    a('v_mov_b32 v2, 0')
    a('ds_write_b32 v2, v1')
    a('s_waitcnt lgkmcnt(0)')
    a.label('tk_wait')
    a('s_barrier')
    a('v_mov_b32 v2, 0')
    a('ds_read_b32 v1, v2')
    a('s_waitcnt lgkmcnt(0)')
    a('v_readfirstlane_b32 s2, v1')
    a('s_and_b32 s2, s2, 255')
    a('s_barrier')
if 'perm' in k_p1.MODE:
    a('s_lshr_b32 s3, s2, 5')
    a('s_and_b32 s2, s2, 31')
    a('s_lshl_b32 s2, s2, 3')
    a('s_or_b32 s2, s2, s3')
sp = k_p1.p1_body(a, st_flags='sc1', instr=instr, mega=True)
a('s_waitcnt vmcnt(2) lgkmcnt(0)')
if instr:
    a('v_mov_b32 v255, v21')
a('s_cmp_eq_u32 s%d, 0' % S_U)
a('s_cbranch_scc1 aux_part')
a('s_load_dwordx4 s[60:63], s[0:1], %d' % KA_W2)
a('s_load_dwordx2 s[6:7], s[0:1], %d' % KA_OUT)
a('s_sub_u32 s%d, s%d, 1' % (S_U, S_U))
a('s_mov_b32 s78, s%d' % S_P)
a('s_waitcnt lgkmcnt(0)')


def c_start(a):
    pass


def c_start2(a):
    pass


def pub_final(a):
    L = a.newlabel('mg_pub')
    a('s_cmp_lg_u32 s%d, 0' % S_WAVE)
    a('s_cbranch_scc1 %s' % L)
    a('s_add_u32 s%d, s%d, s78' % (S_T1, S_NONCE))
    a('v_mov_b32 v12, s%d' % S_T1)
    a('v_mov_b32 v13, 0')
    a('buffer_store_dword v12, v13, s[%d:%d], s%d offen sc1' % (S_PG, S_PG + 3, S_PGO))
    a.label(L)


k_g2.g2_body(a, instr=instr, hooks={'mega': 1, 'c_start': c_start, 'c_start2': c_start2, 'pub': pub_final, 'nostampinit': 1})
a.label('aux_part')
sp2 = Stamps(a, 255, 70, 72, instr)
sp2.stamp()
sp2.rstamp(56)
srd(a, 16, 66, 67, 289 * 8192, WS_WT)
srd(a, 20, 66, 67, 32 * ZT_BLK, WS_ZT)
srd(a, 28, 66, 67, 2048, WS_FLAGZ)
a('s_barrier')
a('s_cmp_gt_u32 s%d, 288' % S_Q)
a('s_cbranch_scc0 aux_work')
a('s_waitcnt vmcnt(0)')
a('s_barrier')
k_p1.publish(a, 0)
a('s_branch aux_done')
a.label('aux_work')
sp2.stamp()


def mid(vm):
    a('s_waitcnt vmcnt(0)')
    a('s_barrier')
    L = a.newlabel('aux_pub')
    a('s_cmp_lg_u32 s%d, 0' % S_WAVE)
    a('s_cbranch_scc1 %s' % L)
    a('s_add_u32 s%d, s%d, s%d' % (S_T1, S_NONCE, S_P))
    a('v_mov_b32 v250, s%d' % S_T1)
    a('v_mov_b32 v251, 0')
    a('buffer_store_dword v250, v251, s[%d:%d], s%d offen sc1' % (S_PG, S_PG + 3, S_PGO))
    a.label(L)


def post_w(vm):
    a('s_getpc_b64 s[94:95]')
    a('s_add_u32 s94, s94, tab_Tinv@rel32@lo+4')
    a('s_addc_u32 s95, s95, tab_Tinv@rel32@hi+12')
    a('s_mul_i32 s%d, s%d, 1821' % (S_T2, S_Q))
    a('s_lshr_b32 s%d, s%d, 16' % (S_T2, S_T2))
    a('s_add_u32 s%d, s%d, 1' % (S_T2, S_T2))
    a('s_mul_i32 s%d, s%d, %d' % (S_T2, S_T2, 45 * 16384))
    a('s_lshl_b32 s%d, s%d, 14' % (S_T3, S_Q))
    a('s_add_u32 s%d, s%d, s%d' % (S_T2, S_T2, S_T3))
    a('s_sub_u32 s%d, s%d, %d' % (S_T3, S_T3, 144 * 16384))
    a('v_lshlrev_b32 v4, 8, v0')
    a('s_cmp_lt_u32 s%d, 144' % S_Q)
    a('s_cselect_b32 s8, s92, s94')
    a('s_cselect_b32 s9, s93, s95')
    a('s_cselect_b32 s%d, s%d, s%d' % (S_T2, S_T2, S_T3))
    a('s_mov_b32 s%d, %d' % (S_T3, D * D * 2))
    a('s_cselect_b32 s10, %d, s%d' % (F * D * 2, S_T3))
    a('s_and_b32 s9, s9, 0xffff')
    a('s_mov_b32 s11, 0x20000')
    a('buffer_load_dword v254, v4, s[8:11], s%d offen' % S_T2)
    a('buffer_load_dword v254, v4, s[8:11], s%d offen offset:128' % S_T2)
    vm.add('t', 2)


k_fft.fft_body(a, S_Q, 8, 12, 16, 20, 32, st_flags='sc1', lds=True, mid=mid, sp=sp2 if instr else None, s_lbase=S_LB, s_priv=S_PR, post_w=post_w if 'pf3' in k_p1.MODE else None)
sp2.stamp()
a('s_waitcnt vmcnt(0)')
a('s_lshl_b32 s24, s%d, 2' % S_Q)
a('v_mov_b32 v2, s%d' % S_NONCE)
a('v_mov_b32 v3, 0')
a('buffer_store_dword v2, v3, s[28:31], s24 offen sc1')
a.label('aux_done')
sp2.stamp()
sp2.rstamp(57)
if instr:
    a('s_lshl_b32 s71, s2, 3')
    a('s_add_u32 s71, s71, s%d' % S_WAVE)
    sp2.dump(66, 67, 8, 71, 1)
a.label('g2_exit')
a('s_endpgm')
a.label('code_end')
kn = NAME + '_kernel'
hdr = '''; generated by gen/gen_mega.py
; @launch %sgrid=(256,1,1) block=(512,1,1) lds=163840
.amdgcn_target "amdgcn-amd-amdhsa--gfx950"
''' % ('kernel=%s ' % kn if '--list' in sys.argv else '')
open(out, 'w').write(hdr + kernel_text(kn, a).replace('CODE_BYTES', 'code_end-%s' % kn) + tables.tab_T() + tables.tab_Tinv() + tables.tab_F(True))
```

```python
import re

_REG = re.compile(r'^(-|\|)?(abs\()?([vas])(\d+|\[(\d+):(\d+)\])\)?\|?$')


def regs_of(op):
    op = op.strip()
    if op in ('vcc', 'vcc_lo', 'vcc_hi'):
        return {('x', 'vcc')}
    if op in ('exec', 'exec_lo', 'exec_hi'):
        return {('x', 'exec')}
    if op == 'm0':
        return {('x', 'm0')}
    m = _REG.match(op)
    if not m:
        return set()
    k = m.group(3)
    if m.group(5) is not None:
        return {(k, i) for i in range(int(m.group(5)), int(m.group(6)) + 1)}
    return {(k, int(m.group(4)))}


def split_ops(s):
    out, depth, cur = [], 0, ''
    for ch in s:
        if ch in '[(':
            depth += 1
        if ch in '])':
            depth -= 1
        if ch == ',' and depth == 0:
            out.append(cur.strip())
            cur = ''
        else:
            cur += ch
    if cur.strip():
        out.append(cur.strip())
    return out


TRANS = ('v_exp_f32', 'v_log_f32', 'v_rcp_f32', 'v_rsq_f32', 'v_sqrt_f32', 'v_sin_f32', 'v_cos_f32',
         'v_rcp_iflag_f32')


class Ins:
    __slots__ = ('text', 'mn', 'kind', 'rd', 'wr', 'a', 'b', 'c', 'passes', 'label', 'target', 'states',
                 'sdata', 'dpp', 'lds', 'sgpr_rd', 'ab')

    def __init__(self, text):
        self.text = text
        self.label = None
        self.target = None
        self.rd = set()
        self.wr = set()
        self.a = self.b = self.c = set()
        self.passes = 0
        self.states = 1
        self.sdata = set()
        self.dpp = False
        self.lds = False
        self.ab = set()
        t = text.split(';')[0].strip()
        if t.endswith(':'):
            self.label = t[:-1]
            self.kind = 'label'
            self.mn = ''
            self.states = 0
            return
        if t == '' or t.startswith('.'):
            self.kind = 'dir'
            self.mn = ''
            self.states = 0
            return
        parts = t.split(None, 1)
        mn = parts[0]
        self.mn = mn
        rest = parts[1] if len(parts) > 1 else ''
        ops = split_ops(rest)
        mods = []
        if ops:
            last = ops[-1].split()
            ops[-1] = last[0]
            mods = last[1:]
        R = [regs_of(o) for o in ops]
        if mn.startswith('v_mfma'):
            self.kind = 'mfma'
            self.wr = R[0]
            self.a, self.b, self.c = R[1], R[2], R[3]
            self.rd = R[1] | R[2] | R[3]
            self.passes = 8 if '32x32x16' in mn else 4 if '16x16x32' in mn else 16
        elif mn.startswith('v_'):
            self.kind = 'valu'
            self.dpp = ('_dpp' in mn) or any(m.startswith(('row_', 'quad_perm', 'wave_')) for m in mods)
            if mn.startswith('v_cmp'):
                self.wr = R[0]
                self.rd = set().union(*R[1:])
                if mn.startswith('v_cmpx'):
                    self.wr = self.wr | {('x', 'exec')}
            elif (mn.startswith('v_permlane') and 'swap' in mn) or mn.startswith('v_swap'):
                self.wr = R[0] | R[1]
                self.rd = R[0] | R[1]
            elif '_co_' in mn or mn.startswith('v_div_scale') or mn.startswith('v_mad_u64'):
                self.wr = R[0] | R[1]
                self.rd = set().union(*R[2:])
            else:
                self.wr = R[0]
                self.rd = set().union(*R[1:]) if len(R) > 1 else set()
                if mn.startswith('v_dot'):
                    self.ab = R[1] | R[2]
                if mn.startswith(('v_fmac', 'v_dot2c', 'v_pk_fmac', 'v_writelane')) or self.dpp or 'sdwa' in mn:
                    self.rd = self.rd | R[0]
        elif mn.startswith(('buffer_', 'global_', 'flat_')):
            self.kind = 'vmem'
            self.lds = ('lds' in mods) or ('_lds_' in mn)
            if mn in ('buffer_inv', 'buffer_wbl2'):
                pass
            elif 'load' in mn:
                if self.lds:
                    self.rd = set().union(*R) | {('x', 'm0')}
                else:
                    self.wr = R[0]
                    self.rd = set().union(*R[1:])
                    if 'd16' in mn:
                        self.rd |= R[0]
            elif 'store' in mn:
                self.rd = set().union(*R)
                d = R[0] if mn.startswith('buffer_') else R[1]
                if 'x4' in mn or 'x3' in mn:
                    self.sdata = d
            else:
                self.rd = set().union(*R)
                if 'sc0' in mods:
                    self.wr = R[0]
        elif mn.startswith('ds_'):
            self.kind = 'ds'
            if mn.startswith(('ds_read', 'ds_bpermute', 'ds_permute', 'ds_swizzle')) or '_rtn' in mn:
                self.wr = R[0]
                self.rd = set().union(*R[1:])
                if 'd16' in mn:
                    self.rd |= R[0]
            else:
                self.rd = set().union(*R)
        elif mn.startswith('s_'):
            self.kind = 'salu'
            if mn == 's_nop':
                self.states = int(ops[0], 0) + 1
            elif mn.startswith(('s_branch', 's_cbranch')):
                self.target = ops[0]
            elif mn.startswith(('s_cmp', 's_waitcnt', 's_barrier', 's_endpgm', 's_setprio', 's_sleep', 's_bitcmp')):
                self.rd = set().union(*R) if R else set()
            else:
                self.wr = R[0] if R else set()
                self.rd = set().union(*R[1:]) if len(R) > 1 else set()
                if 'saveexec' in mn:
                    self.wr = self.wr | {('x', 'exec')}
        else:
            raise ValueError('unknown instruction: ' + text)


def _isv(rs):
    return {r for r in rs if r[0] in 'va'}


def _iss(rs):
    return {r for r in rs if r[0] == 's' or r == ('x', 'vcc')}


def need(p, c):
    n = 0
    if p.kind == 'valu':
        pv = _isv(p.wr)
        ps = _iss(p.wr)
        if c.kind == 'mfma' and pv & c.rd:
            n = max(n, 2)
        if c.kind == 'mfma' and ('x', 'exec') in p.wr:
            n = max(n, 4)
        if p.mn.split('_e')[0] in TRANS or p.mn in TRANS:
            if c.kind in ('valu', 'mfma', 'vmem', 'ds') and pv & c.rd:
                n = max(n, 1)
        if c.kind == 'valu':
            if c.mn.startswith(('v_readfirstlane', 'v_readlane')) and pv & c.rd:
                n = max(n, 1)
            if c.mn.startswith('v_permlane') and pv & c.rd:
                n = max(n, 2)
            if c.dpp and pv & c.rd:
                n = max(n, 2)
            if c.dpp and ('x', 'exec') in p.wr:
                n = max(n, 5)
            if ps & c.rd:
                n = max(n, 4 if c.mn.startswith(('v_readlane', 'v_writelane')) else 2)
            if ('sdwa' in p.mn or 'op_sel' in p.text) and pv & (c.rd | c.wr):
                n = max(n, 1)
            if p.mn.startswith('v_div_scale') and c.mn.startswith('v_div_fmas'):
                n = max(n, 4)
        if p.mn.startswith('v_dot') and c.kind in ('valu', 'mfma', 'vmem', 'ds') and pv & (c.rd | c.wr):
            same_acc = (c.mn == p.mn and c.wr == p.wr and not (pv & c.ab))
            if not same_acc:
                n = max(n, 3)
        if c.kind == 'vmem' and ps & c.rd:
            n = max(n, 5)
        if c.kind == 'salu' and ps & c.rd:
            n = max(n, 1)
    elif p.kind == 'mfma':
        big = {4: 8, 8: 12, 16: 20}[p.passes]
        ovl = {4: 6, 8: 10, 16: 18}[p.passes]
        war = {4: 3, 8: 7, 16: 15}[p.passes]
        if c.kind == 'mfma':
            if p.wr & (c.a | c.b):
                n = max(n, big)
            if p.wr & c.c:
                if not (p.wr == c.c and p.passes == c.passes):
                    n = max(n, ovl)
            elif p.wr & c.wr:
                n = max(n, ovl)
        elif c.kind in ('valu', 'vmem', 'ds'):
            if p.wr & (c.rd | c.wr):
                n = max(n, big)
            if c.kind == 'valu' and p.c & c.wr:
                n = max(n, war)
            if c.kind in ('vmem', 'ds') and p.c & c.wr:
                n = max(n, war)
    elif p.kind == 'salu':
        if ('x', 'm0') in p.wr and c.kind == 'vmem' and c.lds:
            n = max(n, 1)
    elif p.kind == 'vmem':
        if p.sdata and (p.sdata & c.wr):
            n = max(n, 2)
    return n


class Asm:
    def __init__(self):
        self.ins = []
        self.uid = 0

    def __call__(self, text):
        for line in text.strip('\n').split('\n'):
            line = line.strip()
            if line == '':
                continue
            self.ins.append(Ins(line))

    def label(self, name):
        self.ins.append(Ins(name + ':'))

    def newlabel(self, base='L'):
        self.uid += 1
        return '%s_%d' % (base, self.uid)

    def comment(self, s):
        self.ins.append(Ins('; ' + s))

    def fix_hazards(self, verbose=False):
        MAXD = 20
        inserted = 0
        while True:
            ins = self.ins
            n = len(ins)
            lab = {x.label: i for i, x in enumerate(ins) if x.label}
            preds = [[] for _ in range(n)]
            for i, x in enumerate(ins):
                fall = not (x.mn in ('s_branch', 's_endpgm', 's_setpc_b64'))
                if fall and i + 1 < n:
                    preds[i + 1].append(i)
                if x.target is not None and x.target in lab:
                    preds[lab[x.target]].append(i)
            fixes = []
            for i, c in enumerate(ins):
                if c.kind in ('label', 'dir'):
                    continue
                if c.kind == 'salu' and not c.rd:
                    continue
                worst = 0
                stack = [(j, 0) for j in preds[i]]
                seen = {}
                while stack:
                    j, d = stack.pop()
                    if d >= MAXD:
                        continue
                    if seen.get(j, 99) <= d:
                        continue
                    seen[j] = d
                    p = ins[j]
                    if p.kind not in ('label', 'dir'):
                        nd = need(p, c)
                        if nd > d:
                            worst = max(worst, nd - d)
                    for k in preds[j]:
                        stack.append((k, d + p.states))
                if worst:
                    fixes.append((i, worst))
            if not fixes:
                break
            last = -10 ** 9
            applied = []
            for i, w in fixes:
                if i - last > 2 * MAXD + 8:
                    applied.append((i, w))
                    last = i
            for i, w in reversed(applied):
                if verbose:
                    print('hazard: nop %d before: %s' % (w, ins[i].text))
                k = w
                new = []
                while k > 0:
                    t = min(k, 16)
                    new.append(Ins('s_nop %d' % (t - 1)))
                    k -= t
                self.ins[i:i] = new
                inserted += 1
        return inserted

    def text(self):
        out = []
        for x in self.ins:
            if x.kind == 'label':
                out.append(x.text)
            else:
                out.append('    ' + x.text)
        return '\n'.join(out) + '\n'

    def max_regs(self):
        mv = ma = ms = -1
        for x in self.ins:
            for k, r in (x.rd | x.wr):
                if k == 'v':
                    mv = max(mv, r)
                elif k == 'a':
                    ma = max(ma, r)
                elif k == 's':
                    ms = max(ms, r)
        return mv + 1, ma + 1, ms + 1


def vr(base, n=1):
    return 'v%d' % base if n == 1 else 'v[%d:%d]' % (base, base + n - 1)


def ar(base, n=1):
    return 'a%d' % base if n == 1 else 'a[%d:%d]' % (base, base + n - 1)


def sr(base, n=1):
    return 's%d' % base if n == 1 else 's[%d:%d]' % (base, base + n - 1)


def kernel_text(name, asm, wg_y=False):
    asm.fix_hazards()
    nv, na, ns = asm.max_regs()
    nv = max(nv, 1)
    acc = (nv + 3) // 4 * 4
    nfv = acc + na if na else nv
    t = '.text\n.globl %s\n.p2align 8\n.type %s,@function\n%s:\n' % (name, name, name)
    t += asm.text()
    t += '.section .rodata,"a"\n.p2align 6\n.amdhsa_kernel %s\n' % name
    t += '  .amdhsa_next_free_vgpr %d\n' % nfv
    t += '  .amdhsa_next_free_sgpr %d\n' % max(ns, 16)
    t += '  .amdhsa_accum_offset %d\n' % acc
    t += '  .amdhsa_group_segment_fixed_size 0\n'
    t += '  .amdhsa_kernarg_size 88\n'
    t += '  .amdhsa_user_sgpr_count 2\n'
    t += '  .amdhsa_user_sgpr_kernarg_segment_ptr 1\n'
    t += '  .amdhsa_system_sgpr_workgroup_id_x 1\n'
    if wg_y:
        t += '  .amdhsa_system_sgpr_workgroup_id_y 1\n'
    t += '  .amdhsa_float_denorm_mode_32 3\n'
    t += '.end_amdhsa_kernel\n'
    return t


class Cnt:
    def __init__(self, a, name, maxn):
        self.a = a
        self.name = name
        self.maxn = maxn
        self.q = []

    def add(self, tag, n=1):
        self.q += [tag] * n

    def wait(self, *tags):
        last = -1
        for i, t in enumerate(self.q):
            if t in tags:
                last = i
        if last < 0:
            return
        n = len(self.q) - 1 - last
        n = min(n, self.maxn)
        self.a('s_waitcnt %s(%d)' % (self.name, n))
        self.q = self.q[len(self.q) - n:] if n else []

    def wait_all(self):
        self.a('s_waitcnt %s(0)' % self.name)
        self.q = []


WS_SHIFT = 0


def srd(a, d, lo, hi, nbytes, add=0):
    if add and lo == 66 and add < 0x8000000:
        add += WS_SHIFT
    if add:
        a('s_add_u32 s%d, s%d, 0x%x' % (d, lo, add))
        a('s_addc_u32 s%d, s%d, 0' % (d + 1, hi))
    else:
        a('s_mov_b32 s%d, s%d' % (d, lo))
        a('s_mov_b32 s%d, s%d' % (d + 1, hi))
    a('s_and_b32 s%d, s%d, 0xffff' % (d + 1, d + 1))
    a('s_mov_b32 s%d, 0x%x' % (d + 2, nbytes))
    a('s_mov_b32 s%d, 0x20000' % (d + 3))


def interleave(main, fill, per=1, start=0):
    out = []
    fill = list(fill)
    for i, m in enumerate(main):
        out.append(m)
        if i >= start:
            for _ in range(per):
                if fill:
                    out.append(fill.pop(0))
    out += fill
    return out


class Stamps:
    def __init__(self, a, v, s_idx, st, on=True):
        self.a, self.v, self.si, self.st, self.on = a, v, s_idx, st, on

    def init(self):
        if not self.on:
            return
        self.a('s_mov_b32 s%d, 0' % self.si)
        self.a('v_mov_b32 v%d, 0' % self.v)

    LIGHT = False

    def stamp(self, real=False):
        if not self.on or (Stamps.LIGHT and not real):
            return
        a = self.a
        a('%s s[%d:%d]' % ('s_memrealtime' if real else 's_memtime', self.st, self.st + 1))
        a('s_waitcnt lgkmcnt(0)')
        a('s_mov_b32 m0, s%d' % self.si)
        a('s_nop 0')
        a('v_writelane_b32 v%d, s%d, m0' % (self.v, self.st))
        a('s_add_u32 s%d, s%d, 1' % (self.si, self.si))

    def rstamp(self, lane):
        if not self.on:
            return
        a = self.a
        a('s_memrealtime s[%d:%d]' % (self.st, self.st + 1))
        a('s_waitcnt lgkmcnt(0)')
        a('v_writelane_b32 v%d, s%d, %d' % (self.v, self.st, lane))

    DBG = None

    def dump(self, ws_lo, ws_hi, srd_base, s_slot, vtmp):
        if not self.on:
            return
        a = self.a
        if Stamps.DBG:
            for slot, lanes, pos in Stamps.DBG:
                L = a.newlabel('dbg')
                a('s_cmp_lg_u32 s%d, %d' % (s_slot, slot))
                a('s_cbranch_scc1 %s' % L)
                srd(a, srd_base, 64, 65, 256)
                a('v_readlane_b32 s%d, v%d, 0' % (self.st + 1, self.v))
                for k, ln in enumerate(lanes):
                    a('v_readlane_b32 s%d, v%d, %d' % (self.st, self.v, ln))
                    a('s_sub_u32 s%d, s%d, s%d' % (self.st, self.st, self.st + 1))
                    a('v_mov_b32 v%d, s%d' % (vtmp, self.st))
                    a('v_mov_b32 v%d, %d' % (vtmp + 1, 4 * (pos + k)))
                    a('buffer_store_dword v%d, v%d, s[%d:%d], 0 offen' % (vtmp, vtmp + 1, srd_base, srd_base + 3))
                a.label(L)
        srd(a, srd_base, ws_lo, ws_hi, 1 << 24, 0x8000000)
        a('s_lshl_b32 s%d, s%d, 8' % (self.st, s_slot))
        a('v_lshlrev_b32 v%d, 2, v0' % vtmp)
        a('buffer_store_dword v%d, v%d, s[%d:%d], s%d offen' % (self.v, vtmp, srd_base, srd_base + 3, self.st))
```

```python
import struct
from asmlib import *
from layout import *
MODE = ''
FH = 4

NH = 18
NC = 5
CSLOT = [2, 3, 0, 2, 3]
WSL = [73728, 98304, 122880, 49152]
XSL = [0, 16384, 32768, 147456]
XCHB = WSL[1]
NST = NH + NC
SLOT = 40960
NSLOT = 4
G2_LDS = 163840
SPIN_MAX = 20000
MF = 'v_mfma_f32_16x16x32_bf16'

S_H, S_W2, S_ZT, S_TI, S_PT, S_XI, S_OUT, S_B2, S_FX = 8, 12, 16, 20, 24, 28, 32, 80, 88
S_WAVE, S_MT, S_NT, S_KS, S_WM, S_WN = 36, 39, 40, 41, 37, 38
S_T1, S_T2, S_T3, S_T4, S_I, S_SLOT, S_OA, S_OB = 52, 53, 54, 56, 43, 44, 45, 46
S_LA, S_LB, S_NONCE, S_SPIN, S_GRP, S_LC = 47, 48, 57, 59, 49, 50
S_DBG = 84


def f32h(x):
    return '0x%08x' % struct.unpack('<I', struct.pack('<f', x))[0]


def decode_ids(a, s_mt, s_ks, s_u, t1, t2):
    a('s_and_b32 s%d, s2, 7' % t1)
    a('s_lshr_b32 s%d, s2, 3' % t2)
    a('s_lshr_b32 s%d, s%d, 1' % (s_ks, t1))
    a('s_and_b32 s%d, s%d, 1' % (t1, t1))
    a('s_lshl_b32 s%d, s%d, 3' % (t1, t1))
    a('s_lshr_b32 s%d, s%d, 2' % (s_mt, t2))
    a('s_add_u32 s%d, s%d, s%d' % (s_mt, s_mt, t1))
    a('s_and_b32 s%d, s%d, 3' % (s_u, t2))


def g2_setup(a):
    a('s_memrealtime s[76:77]')
    a('s_load_dwordx2 s[4:5], s[0:1], %d' % KA_X)
    a('s_load_dwordx4 s[60:63], s[0:1], %d' % KA_W2)
    a('s_load_dwordx4 s[64:67], s[0:1], %d' % KA_DBG)
    a('s_load_dwordx2 s[6:7], s[0:1], %d' % KA_OUT)
    a('v_lshrrev_b32 v1, 6, v0')
    a('v_and_b32 v0, 63, v0')
    decode_ids(a, S_MT, S_KS, S_NT, S_T1, S_T2)
    a('v_readfirstlane_b32 s%d, v1' % S_WAVE)
    a('s_waitcnt lgkmcnt(0)')
    srd(a, S_DBG, 64, 65, 256)
    Ln = a.newlabel('g2_nn')
    a('s_or_b32 s%d, s2, s%d' % (S_T1, S_WAVE))
    a('s_cmp_lg_u32 s%d, 0' % S_T1)
    a('s_cbranch_scc1 %s' % Ln)
    a('s_or_b32 s%d, s76, 1' % S_T1)
    a('v_mov_b32 v2, s%d' % S_T1)
    a('v_mov_b32 v3, 0')
    a('buffer_store_dword v2, v3, s[%d:%d], 0 offen sc1' % (S_DBG, S_DBG + 3))
    a.label(Ln)
    a('s_cmp_lt_u32 s%d, 1' % S_NT)
    a('s_cbranch_scc1 g2_exit')
    a('s_sub_u32 s%d, s%d, 1' % (S_NT, S_NT))
    a('s_mov_b32 s%d, 0' % S_NONCE)


def get_nonce(a):
    Lw = a.newlabel('g2_nw')
    Lg = a.newlabel('g2_ng')
    a('s_cmp_lg_u32 s%d, 0' % S_NONCE)
    a('s_cbranch_scc1 %s' % Lg)
    a('s_mov_b32 s%d, 0' % S_SPIN)
    a('v_mov_b32 v13, 0')
    a.label(Lw)
    a('buffer_load_dword v12, v13, s[%d:%d], 0 offen sc1' % (S_DBG, S_DBG + 3))
    a('s_waitcnt vmcnt(0)')
    a('v_readfirstlane_b32 s%d, v12' % S_NONCE)
    a('s_add_u32 s%d, s%d, 1' % (S_SPIN, S_SPIN))
    a('s_cmp_lg_u32 s%d, 0' % S_NONCE)
    a('s_cbranch_scc1 %s' % Lg)
    a('s_sleep 4')
    a('s_cmp_lt_u32 s%d, %d' % (S_SPIN, SPIN_MAX))
    a('s_cbranch_scc1 %s' % Lw)
    a.label(Lg)


def g2_body(a, instr=False, hooks=None):
    hooks = hooks or {}
    sp = Stamps(a, 255, 70, 72, instr)
    a('s_getpc_b64 s[68:69]')
    a('s_add_u32 s68, s68, tab_Tinv@rel32@lo+4')
    a('s_addc_u32 s69, s69, tab_Tinv@rel32@hi+12')
    srd(a, S_H, 66, 67, S * F * 2, WS_H)
    srd(a, S_W2, 60, 61, F * D * 2)
    srd(a, S_ZT, 66, 67, 32 * ZT_BLK, WS_ZT)
    srd(a, S_TI, 68, 69, D * D * 2)
    srd(a, S_PT, 66, 67, 48 * 16 * 24576, WS_PART)
    srd(a, S_XI, 4, 5, S * D * 2)
    srd(a, S_OUT, 6, 7, S * D * 2)
    srd(a, S_B2, 62, 63, D * 2)
    srd(a, S_FX, 66, 67, 256 * 64, WS_FLAGX)
    a('s_mul_i32 s%d, s%d, 3' % (S_GRP, S_MT))
    a('s_add_u32 s%d, s%d, s%d' % (S_GRP, S_GRP, S_NT))
    Lcomp = a.newlabel('g2_comp')
    a('s_cmp_lt_u32 s%d, 4' % S_WAVE)
    a('s_cbranch_scc1 %s' % Lcomp)

    a('s_sub_u32 s%d, s%d, 4' % (S_T4, S_WAVE))
    a('s_mul_i32 s%d, s%d, 72' % (S_T2, S_MT))
    a('s_mul_i32 s%d, s%d, %d' % (S_T3, S_KS, NH))
    a('s_add_u32 s%d, s%d, s%d' % (S_T2, S_T2, S_T3))
    a('s_lshl_b32 s%d, s%d, 14' % (S_T2, S_T2))
    a('s_lshl_b32 s%d, s%d, 12' % (S_T1, S_T4))
    a('s_add_u32 s%d, s%d, s%d' % (S_T2, S_T2, S_T1))
    a('v_lshl_add_u32 v2, v0, 4, s%d' % S_T2)
    a('v_lshrrev_b32 v12, 3, v0')
    a('v_mul_u32_u24 v12, %d, v12' % (D * 2))
    a('v_bfe_u32 v13, v0, 4, 1')
    a('v_lshlrev_b32 v13, 1, v13')
    a('v_and_b32 v14, 7, v0')
    a('v_xor_b32 v13, v13, v14')
    a('v_lshl_add_u32 v14, v13, 4, v12')
    a('v_xor_b32 v13, 4, v13')
    a('v_lshl_add_u32 v15, v13, 4, v12')
    a('s_mul_i32 s%d, s%d, 6' % (S_T1, S_T4))
    a('s_mul_i32 s%d, s%d, 384' % (S_LA, S_NT))
    for i in range(6):
        a('s_add_u32 s%d, s%d, %d' % (S_T2, S_T1, i))
        a('s_and_b32 s%d, s%d, 7' % (S_T3, S_T2))
        a('s_mul_i32 s%d, s%d, %d' % (S_T3, S_T3, 8 * D * 2))
        a('s_lshr_b32 s%d, s%d, 3' % (S_T2, S_T2))
        a('s_lshl_b32 s%d, s%d, 7' % (S_T2, S_T2))
        a('s_add_u32 s%d, s%d, s%d' % (S_T3, S_T3, S_T2))
        a('s_add_u32 s%d, s%d, s%d' % (S_T3, S_T3, S_LA))
        a('v_add_u32 v%d, s%d, v%d' % (20 + i, S_T3, 14 + (i & 1)))
    a('s_lshl_b32 s%d, s%d, 1' % (S_T2, S_MT))
    a('s_and_b32 s%d, s%d, 1' % (S_T3, S_KS))
    a('s_add_u32 s%d, s%d, s%d' % (S_T2, S_T2, S_T3))
    a('s_mul_i32 s%d, s%d, %d' % (S_T2, S_T2, ZT_BLK))
    a('s_lshl_b32 s%d, s%d, 11' % (S_I, S_T4))
    a('s_add_u32 s%d, s%d, s%d' % (S_T2, S_T2, S_I))
    a('v_lshl_add_u32 v26, v0, 4, s%d' % S_T2)
    a('s_lshl_b32 s%d, s%d, 1' % (S_T2, S_NT))
    a('s_lshr_b32 s%d, s%d, 1' % (S_T3, S_KS))
    a('s_add_u32 s%d, s%d, s%d' % (S_T2, S_T2, S_T3))
    a('s_mul_i32 s%d, s%d, %d' % (S_T2, S_T2, 576 * 192))
    a('s_mul_i32 s%d, s%d, 3072' % (S_LC, S_T4))
    a('s_add_u32 s%d, s%d, s%d' % (S_T2, S_T2, S_LC))
    a('v_lshl_add_u32 v27, v0, 4, s%d' % S_T2)
    a('s_lshl_b32 s%d, s%d, 12' % (S_LA, S_T4))
    a('s_mul_i32 s%d, s%d, 6144' % (S_LB, S_T4))
    a('s_mul_i32 s%d, s%d, %d' % (S_OB, S_KS, NH * 64 * D * 2))
    vm = Cnt(a, 'vmcnt', 63)

    def issue(st):
        if st < NH:
            a('s_mov_b32 s%d, %d' % (S_T1, 16384 * st))
            a('s_add_u32 s%d, s%d, %d' % (S_T2, S_OB, 64 * D * 2 * st))
            for i in range(6):
                a('s_add_u32 m0, s%d, %d' % (S_LB, WSL[st % 4] + 1024 * i))
                a('buffer_load_dwordx4 v%d, s[%d:%d], s%d offen lds' % (20 + i, S_W2, S_W2 + 3, S_T2))
                vm.add(st)
            a('s_add_u32 m0, s%d, %d' % (S_LA, XSL[st % 4]))
            for i in range(4):
                a('buffer_load_dwordx4 v2, s[%d:%d], s%d offen offset:%d lds' % (S_H, S_H + 3, S_T1, 1024 * i))
                vm.add(st)
        else:
            c = st - NH
            for hv in range(2 if c < 4 else 1):
                a('s_mov_b32 s%d, %d' % (S_T2, 12288 * (2 * c + hv)))
                a('s_add_u32 m0, s%d, %d' % (S_LC, WSL[CSLOT[c]] + 12288 * hv))
                for i in range(3):
                    a('buffer_load_dwordx4 v27, s[%d:%d], s%d offen offset:%d lds' % (S_TI, S_TI + 3, S_T2, 1024 * i))
                    vm.add(st)
            if c >= 3:
                issue_z(c)

    def issue_z(c):
        for hv in range(2 if c < 4 else 1):
            a('s_mov_b32 s%d, %d' % (S_T1, 8192 * (2 * c + hv)))
            a('s_add_u32 m0, s%d, %d' % (S_I, XSL[CSLOT[c]] + 8192 * hv))
            for i in range(2):
                a('buffer_load_dwordx4 v26, s[%d:%d], s%d offen offset:%d lds' % (S_ZT, S_ZT + 3, S_T1, 1024 * i))
                vm.add(NH + c)

    mega = 'mega' in hooks
    S_RDY = S_SLOT
    S_PG, S_FZ = 96, 92

    def poll_issue(v, z, fl='sc1'):
        if z:
            a('buffer_load_dwordx4 v[40:43], v31, s[%d:%d], 0 offen %s' % (S_FZ, S_FZ + 3, fl))
            a('buffer_load_dword v44, v38, s[%d:%d], 0 offen %s' % (S_FZ, S_FZ + 3, fl))
        else:
            a('buffer_load_dword v%d, v30, s[%d:%d], s%d offen %s' % (v, S_PG, S_PG + 3, S_OA, fl))

    def poll_eval(v):
        a('v_subrev_u32 v%d, s%d, v%d' % (v, S_NONCE, v))
        a('v_cmp_gt_u32 vcc, 16, v%d' % v)
        a('v_cndmask_b32 v%d, 0, v%d, vcc' % (v, v))
        a('v_lshl_add_u32 v%d, v%d, 2, v29' % (v, v))
        a('v_min_u32_dpp v%d, v%d, v%d quad_perm:[1,0,3,2] row_mask:0xf bank_mask:0xf' % (v, v, v))
        a('v_min_u32_dpp v%d, v%d, v%d quad_perm:[2,3,0,1] row_mask:0xf bank_mask:0xf' % (v, v, v))
        a('v_readfirstlane_b32 s%d, v%d' % (S_T1, v))
        a('s_max_u32 s%d, s%d, s%d' % (S_RDY, S_RDY, S_T1))

    def need_h(st):
        Lok = a.newlabel('g2_hok')
        Lre = a.newlabel('g2_hre')
        a('s_add_u32 s%d, s%d, %d' % (S_T3, S_T4, st))
        a('s_cmp_lt_u32 s%d, s%d' % (S_T3, S_RDY))
        a('s_cbranch_scc1 %s' % Lok)
        a('s_mov_b32 s%d, 0' % S_SPIN)
        a.label(Lre)
        poll_issue(36, False)
        a('s_waitcnt vmcnt(0)')
        poll_eval(36)
        a('s_add_u32 s%d, s%d, 1' % (S_SPIN, S_SPIN))
        a('s_cmp_lt_u32 s%d, s%d' % (S_T3, S_RDY))
        a('s_cbranch_scc1 %s' % Lok)
        a('s_sleep 2')
        a('s_cmp_lt_u32 s%d, %d' % (S_SPIN, SPIN_MAX))
        a('s_cbranch_scc1 %s' % Lre)
        a.label(Lok)

    def need_z(v):
        Lok = a.newlabel('g2_zok')
        Lre = a.newlabel('g2_zre')
        a('s_mov_b32 s%d, 0' % S_SPIN)
        a.label(Lre)
        for r in range(40, 45):
            a('v_xor_b32 v%d, s%d, v%d' % (r, S_NONCE, r))
        a('v_or3_b32 v40, v40, v41, v42')
        a('v_or3_b32 v40, v40, v43, v44')
        a('v_cmp_ne_u32 vcc, 0, v40')
        a('s_add_u32 s%d, s%d, 1' % (S_SPIN, S_SPIN))
        a('s_nop 3')
        a('s_cbranch_vccz %s' % Lok)
        a('s_sleep 8')
        poll_issue(v, True)
        a('s_waitcnt vmcnt(0)')
        a('s_cmp_lt_u32 s%d, %d' % (S_SPIN, SPIN_MAX))
        a('s_cbranch_scc1 %s' % Lre)
        a.label(Lok)

    if mega:
        srd(a, S_FZ, 66, 67, 2048, WS_FLAGZ)
        a('v_min_u32 v38, 32, v0')
        a('v_lshlrev_b32 v38, 2, v38')
        a('v_add_u32 v38, 1024, v38')
        a('v_and_b32 v29, 3, v0')
        a('v_lshlrev_b32 v30, 2, v29')
        a('v_lshlrev_b32 v31, 4, v0')
        a('s_lshl_b32 s%d, s%d, 2' % (S_OA, S_MT))
        a('s_add_u32 s%d, s%d, s%d' % (S_OA, S_OA, S_KS))
        a('s_lshl_b32 s%d, s%d, 6' % (S_OA, S_OA))
        a('s_lshl_b32 s%d, s%d, 2' % (S_T1, S_MT))
        a('s_add_u32 s%d, s%d, s%d' % (S_T1, S_T1, S_T4))
        a('s_mul_i32 s%d, s%d, %d' % (S_T2, S_T1, D * 2))
        a('s_mul_i32 s%d, s%d, 384' % (S_T3, S_NT))
        a('s_add_u32 s%d, s%d, s%d' % (S_T2, S_T2, S_T3))
        a('s_add_u32 s%d, s%d, s%d' % (S_T2, S_T2, S_OB))
        a('s_add_u32 s%d, s%d, %d' % (S_T2, S_T2, 5 * 64 * D * 2))
        a('s_add_u32 s100, s60, s%d' % S_T2)
        a('s_addc_u32 s101, s61, 0')
        a('s_min_u32 s%d, s%d, 60' % (S_T1, S_T1))
        a('s_mul_i32 s%d, s%d, %d' % (S_T1, S_T1, 14 * 128))
        a('s_lshl_b32 s%d, s%d, 1' % (S_T2, S_NT))
        a('s_lshr_b32 s%d, s%d, 1' % (S_T3, S_KS))
        a('s_add_u32 s%d, s%d, s%d' % (S_T2, S_T2, S_T3))
        a('s_mul_i32 s%d, s%d, %d' % (S_T2, S_T2, 576 * 192))
        a('s_add_u32 s%d, s%d, s%d' % (S_T2, S_T2, S_T1))
        a('s_add_u32 s74, s68, s%d' % S_T2)
        a('s_addc_u32 s75, s69, 0')
        a('s_cmp_eq_u32 s%d, 0' % S_KS)
        a('s_cselect_b32 s%d, 3, 2' % S_T4)
        a('s_mov_b32 s%d, s3' % S_RDY)
        sp.rstamp(56)

    POLLS = (5, 12)
    TA = 5

    def issue2(st):
        if mega:
            if st < NH:
                need_h(st)
        issue(st)
        if mega and st in POLLS:
            poll_issue(32, False)
            vm.add(st)
        if mega and 'tg' in MODE:
            for ts in ([5, 6, 7, 8] if st == 3 else [st + TA]):
              if 5 <= ts < NH:
                for k in range(6):
                    a('s_load_dword s%d, s[100:101], 0x%x' % (58, 64 * D * 2 * (ts - 5) + 64 * k))
              elif NH <= ts < NH + 5:
                for k in range(6):
                    a('s_load_dword s%d, s[74:75], 0x%x' % (58, 64 * (6 * (ts - NH) + k)))
        if mega and st == NH - 1:
            poll_issue(37, True, '')
            vm.add(st, 2)

    M = 48
    PV, BV, BF, T, E = 72, 108, 116, 128, 132
    for i in range(NH + 4):
        if i == NH + 3:
            vm.wait(i, i + 1)
        elif i == 1:
            a('s_waitcnt vmcnt(10)')
        else:
            vm.wait(i)
        if mega and i == NH - 1:
            Lz = a.newlabel('g2_zs')
            a('s_cmp_lg_u32 s%d, 4' % S_WAVE)
            a('s_cbranch_scc1 %s' % Lz)
            sp.rstamp(58)
            need_z(37)
            sp.rstamp(59)
            a.label(Lz)
        a('s_barrier')
        sp.stamp()
        if mega and i in POLLS:
            poll_eval(32)
        if i == NH - 1:
            for c in range(3):
                issue_z(c)
        if i <= NH - 1:
            issue2(i - 1 + NSLOT)
        elif i in (NH + 1, NH + 2):
            issue2(i + 2)
        if i == NH + 1:
            a('s_sub_u32 s%d, s%d, 4' % (S_T4, S_WAVE))
            a('s_mul_i32 s%d, s%d, 6144' % (S_T1, S_T4))
            a('s_add_u32 s%d, s%d, %d' % (S_T1, S_T1, XCHB))
            a('v_lshl_add_u32 v45, v0, 4, s%d' % S_T1)
            for k in range(6):
                a('ds_read_b128 %s, v45 offset:%d' % (vr(M + 4 * k, 4), 1024 * k))
            a('s_lshl_b32 s%d, s%d, 1' % (S_T2, S_NT))
            a('s_lshr_b32 s%d, s%d, 1' % (S_T3, S_KS))
            a('s_add_u32 s%d, s%d, s%d' % (S_T2, S_T2, S_T3))
            a('s_mul_i32 s%d, s%d, 192' % (S_T2, S_T2))
            a('s_lshr_b32 s%d, s%d, 1' % (S_T3, S_T4))
            a('s_mul_i32 s%d, s%d, 96' % (S_T3, S_T3))
            a('s_add_u32 s%d, s%d, s%d' % (S_T2, S_T2, S_T3))
            a('v_lshrrev_b32 v46, 4, v0')
            a('v_lshl_add_u32 v46, v46, 3, s%d' % S_T2)
            for n3 in range(3):
                a('buffer_load_dwordx2 %s, v46, s[%d:%d], 0 offen offset:%d' % (vr(BV + 2 * n3, 2), S_B2, S_B2 + 3, 32 * n3))
                vm.add('b2')
    get_nonce(a)
    a('s_lshl_b32 s%d, s%d, 2' % (S_T1, S_GRP))
    a('s_add_u32 s%d, s%d, s%d' % (S_T1, S_T1, S_KS))
    a('s_lshl_b32 s%d, s%d, 4' % (S_LB, S_T1))
    a('v_and_b32 v14, 3, v0')
    a('v_lshlrev_b32 v14, 2, v14')
    a('s_mul_i32 s%d, s%d, %d' % (S_T1, S_T1, 4 * 12288))
    a('s_lshr_b32 s%d, s%d, 1' % (S_T2, S_T4))
    a('s_mul_i32 s%d, s%d, 3072' % (S_T2, S_T2))
    a('s_add_u32 s%d, s%d, s%d' % (S_T1, S_T1, S_T2))
    a('s_and_b32 s%d, s%d, 1' % (S_T2, S_T4))
    a('s_mul_i32 s%d, s%d, 6144' % (S_T2, S_T2))
    a('s_add_u32 s%d, s%d, s%d' % (S_LA, S_T1, S_T2))
    a('v_lshlrev_b32 v47, 4, v0')
    for n3 in range(3):
        for d in range(2):
            a('v_lshlrev_b32 v%d, 16, v%d' % (BF + 4 * n3 + 2 * d, BV + 2 * n3 + d))
            a('v_and_b32 v%d, 0xffff0000, v%d' % (BF + 4 * n3 + 2 * d + 1, BV + 2 * n3 + d))
    a('s_waitcnt lgkmcnt(0)')
    for k in range(24):
        a('v_add_f32 v%d, v%d, v%d' % (M + k, M + k, BF + (k % 12)))
    Lok = a.newlabel('g2_fok')
    Lre = a.newlabel('g2_fre')
    a('s_mov_b32 s%d, 0' % S_SPIN)
    a.label(Lre)
    a('buffer_load_dword v13, v14, s[%d:%d], s%d offen sc1' % (S_FX, S_FX + 3, S_LB))
    a('s_waitcnt vmcnt(0)')
    a('v_cmp_ne_u32 vcc, s%d, v13' % S_NONCE)
    a('s_add_u32 s%d, s%d, 1' % (S_SPIN, S_SPIN))
    a('s_nop 3')
    a('s_cbranch_vccz %s' % Lok)
    a('s_sleep 2')
    a('s_cmp_lt_u32 s%d, %d' % (S_SPIN, SPIN_MAX))
    a('s_cbranch_scc1 %s' % Lre)
    a.label(Lok)
    sp.stamp()
    for n3 in range(3):
        for z in range(3):
            a('s_add_u32 s%d, s%d, %d' % (S_T2, S_KS, z + 1))
            a('s_and_b32 s%d, s%d, 3' % (S_T2, S_T2))
            a('s_mul_i32 s%d, s%d, 12288' % (S_T2, S_T2))
            a('s_add_u32 s%d, s%d, s%d' % (S_T2, S_T2, S_LA))
            a('buffer_load_dwordx4 %s, v47, s[%d:%d], s%d offen offset:%d sc1' % (
                vr(PV + 12 * z + 4 * n3, 4), S_PT, S_PT + 3, S_T2, 1024 * n3))
    nl2e = f32h(-1.4426950408889634)
    for n3 in range(3):
        a('s_waitcnt vmcnt(%d)' % (3 * (2 - n3)))
        for rt2 in range(2):
            m = [M + 12 * rt2 + 4 * n3 + r for r in range(4)]
            e = [E + r for r in range(4)]
            for z in range(3):
                for d in range(2):
                    p = PV + 12 * z + 4 * n3 + 2 * rt2 + d
                    a('v_lshlrev_b32 v%d, 16, v%d' % (e[2 * d], p))
                    a('v_and_b32 v%d, 0xffff0000, v%d' % (e[2 * d + 1], p))
                for r in range(4):
                    a('v_add_f32 v%d, v%d, v%d' % (m[r], m[r], e[r]))
            for d in range(2):
                a('v_cvt_pk_bf16_f32 v%d, v%d, v%d' % (T + d, m[2 * d], m[2 * d + 1]))
            for d in range(2):
                a('v_lshlrev_b32 v%d, 16, v%d' % (m[2 * d], T + d))
                a('v_and_b32 v%d, 0xffff0000, v%d' % (m[2 * d + 1], T + d))
            for r in range(4):
                a('v_mul_f32 v%d, %s, v%d' % (e[r], nl2e, m[r]))
            for r in range(4):
                a('v_exp_f32 v%d, v%d' % (e[r], e[r]))
            for r in range(4):
                a('v_add_f32 v%d, 1.0, v%d' % (e[r], e[r]))
            for r in range(4):
                a('v_rcp_f32 v%d, v%d' % (e[r], e[r]))
            for r in range(4):
                a('v_mul_f32 v%d, v%d, v%d' % (m[r], m[r], e[r]))
            for d in range(2):
                a('v_cvt_pk_bf16_f32 v%d, v%d, v%d' % (136 + 2 * rt2 + d, m[2 * d], m[2 * d + 1]))
        a('ds_write_b128 v45, v[136:139] offset:%d' % (1024 * n3))
    a('s_waitcnt lgkmcnt(0)')
    sp.stamp()
    a('s_barrier')
    if instr:
        a('s_lshl_b32 s71, s2, 3')
        a('s_add_u32 s71, s71, s%d' % S_WAVE)
        sp.dump(66, 67, S_H, 71, 1)
    a('s_endpgm')

    a.label(Lcomp)
    if instr and 'nostampinit' not in hooks:
        sp.init()
        a('v_writelane_b32 v255, s76, 62')
    sp.stamp()
    a('s_and_b32 s%d, s%d, 1' % (S_WM, S_WAVE))
    a('s_lshr_b32 s%d, s%d, 1' % (S_WN, S_WAVE))
    VI, VQ = 30, 31
    a('v_and_b32 v%d, 15, v0' % VI)
    a('v_lshrrev_b32 v%d, 4, v0' % VQ)
    a('v_lshrrev_b32 v12, 2, v%d' % VI)
    a('v_and_b32 v12, 2, v12')
    a('v_xor_b32 v12, v12, v%d' % VQ)
    a('s_lshl_b32 s%d, s%d, 12' % (S_T1, S_WM))
    a('v_lshlrev_b32 v13, 6, v%d' % VI)
    a('v_add_u32 v13, s%d, v13' % S_T1)
    a('v_lshl_add_u32 v2, v12, 4, v13')
    a('v_add_u32 v3, 8192, v2')
    a('v_bfe_u32 v12, v0, 2, 2')
    a('v_and_b32 v13, 3, v0')
    a('v_lshl_add_u32 v14, v%d, 3, v12' % VQ)
    a('v_lshrrev_b32 v16, 1, v13')
    a('v_and_b32 v29, 1, v13')
    a('v_and_b32 v17, 1, v%d' % VQ)
    a('v_lshlrev_b32 v17, 1, v17')
    a('v_mul_u32_u24 v15, 192, v14')
    a('v_lshl_add_u32 v15, v29, 3, v15')
    a('s_mul_i32 s%d, s%d, 6' % (S_T1, S_WN))
    for n3 in range(3):
        a('v_add3_u32 v1, v16, s%d, %d' % (S_T1, 2 * n3))
        a('v_xor_b32 v1, v1, v17')
        a('v_lshl_add_u32 v%d, v1, 4, v15' % (18 + n3))
    a('v_lshrrev_b32 v1, 1, v12')
    a('v_add_u32 v17, v17, v1')
    a('v_lshlrev_b32 v17, 1, v17')
    a('v_lshlrev_b32 v15, 7, v14')
    a('v_lshl_add_u32 v15, v29, 3, v15')
    a('s_mul_i32 s%d, s%d, 6' % (S_T1, S_WN))
    for n6 in range(6):
        a('s_add_u32 s%d, s%d, %d' % (S_T2, S_T1, n6))
        a('s_and_b32 s%d, s%d, 3' % (S_T3, S_T2))
        a('s_lshl_b32 s%d, s%d, 1' % (S_T3, S_T3))
        a('s_lshr_b32 s%d, s%d, 2' % (S_T2, S_T2))
        a('s_lshl_b32 s%d, s%d, 13' % (S_T2, S_T2))
        a('v_add_u32 v1, s%d, v16' % S_T3)
        a('v_xor_b32 v1, v1, v17')
        a('v_lshl_add_u32 v1, v1, 4, v15')
        a('v_add_u32 v%d, s%d, v1' % (4 + n6, S_T2))
    a('v_lshlrev_b32 v15, 7, v14')
    a('v_lshl_add_u32 v15, v29, 3, v15')
    a('s_lshl_b32 s%d, s%d, 2' % (S_T1, S_WM))
    for rt2 in range(2):
        a('v_add3_u32 v1, v16, s%d, %d' % (S_T1, 2 * rt2))
        a('v_xor_b32 v1, v1, v17')
        a('v_lshl_add_u32 v%d, v1, 4, v15' % (10 + rt2))
    XA, WA = 21, 23
    FB = [32, 72]
    ACC = 112
    SAC = 208

    def set_addr(cstage):
        o = []
        for j in range(2):
            o.append('v_add_u32 v%d, s%d, v%d' % (XA + j, S_LA, (10 if cstage else 2) + j))
        for n in range(3 if cstage else 6):
            o.append('v_add_u32 v%d, s%d, v%d' % (WA + n, S_LB, (18 if cstage else 4) + n))
        o.append('s_add_u32 s%d, s%d, 1\ns_and_b32 s%d, s%d, 3\ns_lshl_b32 s%d, s%d, 14\ns_add_u32 s%d, s%d, 24576\n'
                 's_cmp_eq_u32 s%d, 3\ns_cselect_b32 s%d, %d, s%d\ns_cselect_b32 s%d, %d, s%d' % (
                     S_SLOT, S_SLOT, S_SLOT, S_SLOT, S_LA, S_SLOT, S_LB, S_LB,
                     S_SLOT, S_LA, XSL[3], S_LA, S_LB, WSL[3], S_LB))
        return o

    def reads(j, cstage):
        fb = FB[j]
        out = []
        for n in range(3 if cstage else 6):
            for e2 in range(2):
                out.append('ds_read_b64_tr_b16 %s, v%d offset:%d' % (
                    vr(fb + 16 + 4 * n + 2 * e2, 2), WA + n, (32 * j + 4 * e2) * (192 if cstage else 128)))
        xs = []
        if cstage:
            for rt2 in range(2):
                for e2 in range(2):
                    xs.append('ds_read_b64_tr_b16 %s, v%d offset:%d' % (
                        vr(fb + 4 * rt2 + 2 * e2, 2), XA + rt2, (32 * j + 4 * e2) * 128))
            return xs + out
        for rt4 in range(4):
            xs.append('ds_read_b128 %s, v%d offset:%d' % (vr(fb + 4 * rt4, 4), XA + j, 1024 * rt4))
        return [xs[0]] + out + xs[1:]

    def mfmas(j, cstage, zero):
        fb = FB[j]
        out = []
        for rt in range(2 if cstage else 4):
            for n in range(3 if cstage else 6):
                acc = vr(SAC + 12 * rt + 4 * n if cstage else ACC + 24 * rt + 4 * n, 4)
                out.append('%s %s, %s, %s, %s' % (MF, acc, vr(fb + 16 + 4 * n, 4), vr(fb + 4 * rt, 4),
                                                   '0' if zero else acc))
        return out

    def stage(cstage, zero, next_c, last=False, pre=None):
        a('s_waitcnt lgkmcnt(0)')
        for t in interleave(mfmas(0, cstage, zero), reads(1, cstage), 2 if cstage else 1):
            a(t)
        a('s_waitcnt lgkmcnt(0)')
        mf = mfmas(1, cstage, False)
        if last:
            for t in mf:
                a(t)
            return
        sa = set_addr(next_c)
        a(mf[0])
        for t in sa[:4]:
            a(t)
        a(mf[1])
        for t in sa[4:]:
            a(t)
        if pre:
            pre()
        a('s_barrier')
        for t in interleave(mf[2:], reads(0, next_c), 3 if cstage else 1):
            a(t)

    a('s_mov_b32 s%d, 0' % S_SLOT)
    a('s_mov_b32 s%d, %d' % (S_LA, XSL[0]))
    a('s_mov_b32 s%d, %d' % (S_LB, WSL[0]))
    for t in set_addr(False):
        a(t)
    if 'c_start' in hooks:
        hooks['c_start'](a)
    a('s_barrier')
    if 'c_start2' in hooks:
        hooks['c_start2'](a)
    sp.rstamp(61)
    XV, Z0 = 232, 250
    a('s_lshl_b32 s%d, s%d, 2' % (S_T1, S_MT))
    a('s_and_b32 s%d, s%d, 1' % (S_T2, S_KS))
    a('s_lshl_b32 s%d, s%d, 1' % (S_T2, S_T2))
    a('s_add_u32 s%d, s%d, s%d' % (S_T1, S_T1, S_T2))
    a('s_add_u32 s%d, s%d, s%d' % (S_T1, S_T1, S_WM))
    a('s_lshl_b32 s%d, s%d, 1' % (S_T2, S_NT))
    a('s_lshr_b32 s%d, s%d, 1' % (S_T3, S_KS))
    a('s_add_u32 s%d, s%d, s%d' % (S_T2, S_T2, S_T3))
    a('s_mul_i32 s%d, s%d, 192' % (S_T2, S_T2))
    a('s_mul_i32 s%d, s%d, 96' % (S_T3, S_WN))
    a('s_add_u32 s%d, s%d, s%d' % (S_T2, S_T2, S_T3))
    a('v_lshlrev_b32 v16, 7, v%d' % VI)
    a('v_add_u32 v16, s%d, v16' % S_T1)
    a('v_mul_u32_u24 v16, %d, v16' % (D * 2))
    a('v_lshl_add_u32 v17, v%d, 3, s%d' % (VQ, S_T2))
    a('v_add_u32 v16, v16, v17')
    a('s_mov_b32 s%d, %d' % (S_OA, 64 * D * 2))
    for rt2 in range(2):
        for n3 in range(3):
            a('buffer_load_dwordx2 %s, v16, s[%d:%d], %s offen offset:%d' % (
                vr(XV + 6 * rt2 + 2 * n3, 2), S_XI, S_XI + 3, 's%d' % S_OA if rt2 else '0', 32 * n3))
    a('s_lshr_b32 s%d, s%d, 1' % (S_T1, S_T1))
    a('s_mul_i32 s%d, s%d, %d' % (S_T1, S_T1, ZT_BLK))
    a('s_lshl_b32 s%d, s%d, 6' % (S_T2, S_WM))
    a('s_add_u32 s%d, s%d, s%d' % (S_T1, S_T1, S_T2))
    a('s_add_u32 s%d, s%d, %d' % (S_LC, S_T1, 576 * 128))
    sp.stamp()
    for t in reads(0, False):
        a(t)
    pre_h = hooks.get('pre_h')
    a('s_mov_b32 s%d, 0' % S_I)
    stage(False, True, False, pre=lambda: a('s_waitcnt vmcnt(6)'))
    hooks['pub'](a)
    a('s_mov_b32 s%d, 1' % S_I)
    Lh = a.newlabel('g2_hl')
    a.label(Lh)
    stage(False, False, False, pre=(lambda: pre_h(a)) if pre_h else None)
    a('s_add_u32 s%d, s%d, 1' % (S_I, S_I))
    a('s_cmp_lt_u32 s%d, %d' % (S_I, NH - 1))
    a('s_cbranch_scc1 %s' % Lh)
    stage(False, False, True)
    sp.stamp()
    sp.rstamp(60)
    XCH = lambda w: XCHB + 6144 * w
    Lown = a.newlabel('g2_own')
    Lj = a.newlabel('g2_j')
    a('v_lshlrev_b32 v29, 4, v0')
    a('s_lshl_b32 s%d, s%d, 2' % (S_T1, S_GRP))
    a('s_add_u32 s%d, s%d, s%d' % (S_T1, S_T1, S_WAVE))
    a('s_lshl_b32 s%d, s%d, 2' % (S_T1, S_T1))
    a('s_add_u32 s%d, s%d, s%d' % (S_OB, S_T1, S_KS))
    a('s_cmp_eq_u32 s%d, s%d' % (S_WAVE, S_KS))
    a('s_cbranch_scc1 %s' % Lown)
    a('s_mul_i32 s%d, s%d, 12288' % (S_T1, S_OB))
    for wm2 in range(2):
        for n6 in range(6):
            t0 = ACC + 24 * (2 * wm2) + 4 * n6
            t1 = t0 + 24
            a('v_cvt_pk_bf16_f32 v%d, v%d, v%d' % (t0, t0, t0 + 1))
            a('v_cvt_pk_bf16_f32 v%d, v%d, v%d' % (t0 + 1, t0 + 2, t0 + 3))
            a('v_cvt_pk_bf16_f32 v%d, v%d, v%d' % (t0 + 2, t1, t1 + 1))
            a('v_cvt_pk_bf16_f32 v%d, v%d, v%d' % (t0 + 3, t1 + 2, t1 + 3))
            k = 6 * wm2 + n6
            if k % 4 == 0:
                a('s_add_u32 s%d, s%d, %d' % (S_T2, S_T1, 1024 * k))
            a('buffer_store_dwordx4 %s, v29, s[%d:%d], s%d offen offset:%d sc1' % (
                vr(t0, 4), S_PT, S_PT + 3, S_T2, 1024 * (k % 4)))
    a('s_branch %s' % Lj)
    a.label(Lown)
    a('v_add_u32 v1, %d, v29' % XCH(0))
    for w in range(4):
        for rt2 in range(2):
            for n3 in range(3):
                a('ds_write_b128 v1, %s offset:%d' % (
                    vr(ACC + 24 * (2 * (w & 1) + rt2) + 4 * (3 * (w >> 1) + n3), 4),
                    XCH(w) - XCH(0) + 1024 * (3 * rt2 + n3)))
    a.label(Lj)
    def caddr(h):
        o = []
        for j in range(2):
            o.append('v_add_u32 v%d, %d, v%d' % (XA + j, XSL[CSLOT[h >> 1]] + 8192 * (h & 1), 10 + j))
        for n in range(3):
            o.append('v_add_u32 v%d, %d, v%d' % (WA + n, WSL[CSLOT[h >> 1]] + 12288 * (h & 1), 18 + n))
        return o

    def chalf(h):
        a('s_waitcnt lgkmcnt(0)')
        for t in interleave(mfmas(0, True, h == 0), reads(1, True), 2):
            a(t)
        a('s_waitcnt lgkmcnt(0)')
        mf = mfmas(1, True, False)
        if h == 8:
            for t in mf:
                a(t)
            return
        a(mf[0])
        for t in caddr(h + 1):
            a(t)
        if (h & 1) and (h >> 1) < 3:
            a('s_barrier')
        for t in interleave(mf[1:], reads(0, True), 2):
            a(t)

    for h in range(FH):
        chalf(h)
    a('s_waitcnt vmcnt(0)')
    get_nonce(a)
    a('s_lshl_b32 s%d, s%d, 2' % (S_T1, S_OB))
    a('v_mov_b32 v12, s%d' % S_NONCE)
    a('v_mov_b32 v13, 0')
    a('buffer_store_dword v12, v13, s[%d:%d], s%d offen sc1' % (S_FX, S_FX + 3, S_T1))
    a('v_lshlrev_b32 v15, 1, v%d' % VI)
    for rt2 in range(2):
        a('buffer_load_ushort v%d, v15, s[%d:%d], s%d offen offset:%d' % (Z0 + rt2, S_ZT, S_ZT + 3, S_LC, 32 * rt2))
    for h in range(FH, 9):
        chalf(h)
    sp.stamp()
    T = 32
    a('s_waitcnt vmcnt(0)')
    for rt2 in range(2):
        a('v_lshlrev_b32 v%d, 16, v%d' % (Z0 + rt2, Z0 + rt2))
    for rt2 in range(2):
        for k in range(12):
            s_ = SAC + 12 * rt2 + k
            a('v_add_f32 v%d, v%d, v%d' % (s_, s_, Z0 + rt2))
    for k in range(0, 24, 2):
        a('v_cvt_pk_bf16_f32 v%d, v%d, v%d' % (T, SAC + k, SAC + k + 1))
        a('v_lshlrev_b32 v%d, 16, v%d' % (SAC + k, T))
        a('v_and_b32 v%d, 0xffff0000, v%d' % (SAC + k + 1, T))
    XU = ACC
    for k in range(12):
        a('v_lshlrev_b32 v%d, 16, v%d' % (XU + 2 * k, XV + k))
        a('v_and_b32 v%d, 0xffff0000, v%d' % (XU + 2 * k + 1, XV + k))
    a('s_mul_i32 s%d, s%d, 6144' % (S_T1, S_WAVE))
    a('s_add_u32 s%d, s%d, %d' % (S_T1, S_T1, XCHB))
    a('v_add_u32 v1, s%d, v29' % S_T1)
    a('s_barrier')
    sp.stamp()
    G = 40
    for n3 in range(3):
        a('ds_read_b128 %s, v1 offset:%d' % (vr(G + 4 * n3, 4), 1024 * n3))
    for n3 in range(3):
        a('s_waitcnt lgkmcnt(%d)' % (2 - n3))
        for rt2 in range(2):
            k0 = 12 * rt2 + 4 * n3
            e = [56 + r for r in range(4)]
            for d in range(2):
                a('v_lshlrev_b32 v%d, 16, v%d' % (e[2 * d], G + 4 * n3 + 2 * rt2 + d))
                a('v_and_b32 v%d, 0xffff0000, v%d' % (e[2 * d + 1], G + 4 * n3 + 2 * rt2 + d))
            for r in range(4):
                a('v_fma_f32 v%d, v%d, v%d, v%d' % (e[r], e[r], SAC + k0 + r, XU + k0 + r))
            xv = XV + 6 * rt2 + 2 * n3
            for d in range(2):
                a('v_cvt_pk_bf16_f32 v%d, v%d, v%d' % (xv + d, e[2 * d], e[2 * d + 1]))
            a('buffer_store_dwordx2 %s, v16, s[%d:%d], %s offen offset:%d %s' % (
                vr(xv, 2), S_OUT, S_OUT + 3, 's%d' % S_OA if rt2 else '0', 32 * n3, 'nt' if 'outnt' in MODE else ''))
    if instr:
        sp.stamp()
        a('s_waitcnt vmcnt(0)')
        sp.stamp()
        a('s_mov_b32 s70, 63')
        sp.stamp(real=True)
        a('s_lshl_b32 s71, s2, 3')
        a('s_add_u32 s71, s71, s%d' % S_WAVE)
        sp.dump(66, 67, S_H, 71, 1)
    a('s_endpgm')
```

```python
import struct
from asmlib import *
from layout import *
from k_g2 import decode_ids
MODE = ''
MEGA = True
HOOK = {}
WTJ = 14
S_GPR = 101
S_FTR = 78

P1_STG = 24576
P1_RING = 6 * P1_STG
P1_XB = 3 * P1_STG
P1_CBL = P1_XB + 5 * 16384
P1_CSX = P1_CBL + 2048
P1_STX = P1_CSX + 512
P1_LDS = 163840

XF = 112
ACCS = (96, 80)
WB = 56
V_RC = 2
V_DKJ = 6
V_DO = 9
V_CSA = 12
V_CXA = 14
V_ST = 16
V_CXW = 20
V_ONE = 22
V_DUM = 26
V_BF = 28
V_CS = 36
V_O = 44
V_HA = 52
V_RTA = 53
V_TT = 54
V_T0 = 1
V_CSP = 76
V_XO = 80
V_XR = 82


def WBUF(buf, nt):
    return WB + 4 * ((2 * buf + nt) % 5)


S_X, S_W1, S_T, S_LD, S_H, S_RT, S_B1 = 8, 12, 16, 20, 24, 28, 32
S_R0, S_R1, S_N0, S_N1 = 80, 81, 82, 83
S_WAVE, S_G, S_WR, S_MT, S_U, S_KS = 36, 37, 38, 39, 40, 41
S_CNT, S_P, S_RB, S_WBASE, S_PITCH, S_LOFF = 42, 43, 44, 45, 46, 47
S_CUR, S_PREV, S_NT_, S_TB, S_T1, S_T2, S_T3 = 48, 49, 50, 51, 52, 53, 54
S_DW, S_T4, S_NONCE, S_N2, S_SPIN = 55, 56, 57, 58, 59
S_DBG = 84
S_PG = 96
S_PGO = 79
SPIN_MAX = 20000


def f32h(x):
    return '0x%08x' % struct.unpack('<I', struct.pack('<f', x))[0]


def panel_id(a, dst, ridx):
    a('s_lshl_b32 s%d, s%d, 2' % (S_T1, ridx))
    a('s_add_u32 s%d, s%d, s%d' % (S_T1, S_T1, S_U))
    a('s_add_u32 s%d, s%d, s%d' % (S_T2, S_T1, S_TB))
    a('s_mul_i32 s%d, s%d, 18' % (S_T3, S_KS))
    a('s_add_u32 s%d, s%d, s%d' % (S_T3, S_T3, S_T1))
    a('s_sub_u32 s%d, s%d, s%d' % (S_T3, S_T3, S_NT_))
    a('s_cmp_lt_u32 s%d, s%d' % (S_T1, S_NT_))
    a('s_cselect_b32 s%d, s%d, s%d' % (dst, S_T2, S_T3))


def set_load_panel(a, ridx, g2pre=False):
    panel_id(a, S_T1, ridx)
    a('s_cmp_lt_u32 s%d, 72' % S_T1)
    a('s_cselect_b32 s%d, s%d, s%d' % (S_LD, S_W1, S_T))
    a('s_cselect_b32 s%d, s%d, s%d' % (S_LD + 1, S_W1 + 1, S_T + 1))
    a('s_cselect_b32 s%d, s%d, s%d' % (S_LD + 2, S_W1 + 2, S_T + 2))
    a('s_cselect_b32 s%d, 8, 1' % S_PITCH)
    a('s_cselect_b32 s%d, 0, 72' % S_T2)
    a('s_mul_i32 s%d, s%d, %d' % (S_PITCH, S_PITCH, D * 2))
    a('s_sub_u32 s%d, s%d, s%d' % (S_T1, S_T1, S_T2))
    a('s_lshl_b32 s%d, s%d, 7' % (S_LOFF, S_T1))
    a('s_cmp_lt_u32 s%d, s%d' % (ridx, S_CNT))
    a('s_cselect_b32 s%d, s%d, 0' % (S_LD + 2, S_LD + 2))
    a('s_cmp_eq_u32 s%d, s%d' % (ridx, S_FTR))
    a('s_cselect_b32 s%d, s%d, s%d' % (S_LD, S_T, S_LD))
    a('s_cselect_b32 s%d, s%d, s%d' % (S_LD + 1, S_T + 1, S_LD + 1))
    a('s_cselect_b32 s%d, %d, s%d' % (S_LD + 2, 2 * D * D * 2 + 61440, S_LD + 2))
    a('s_cselect_b32 s%d, 128, s%d' % (S_PITCH, S_PITCH))
    a('s_cselect_b32 s%d, %d, s%d' % (S_LOFF, 2 * D * D * 2, S_LOFF))
    for i in range(3):
        a('v_and_b32 v%d, 0xffff, v%d' % (V_TT, V_DKJ + i))
        a('v_lshrrev_b32 v%d, 16, v%d' % (V_TT + 1, V_DKJ + i))
        a('v_mad_u32_u24 v%d, v%d, s%d, v%d' % (V_DO + i, V_TT, S_PITCH, V_TT + 1))
    if g2pre:
        L = a.newlabel('p1_g2p')
        a('s_cmp_lg_u32 s%d, s%d' % (ridx, S_GPR))
        a('s_cbranch_scc1 %s' % L)
        srd(a, S_LD, 92, 93, F * D * 2)
        a('s_mov_b32 s%d, 384' % S_PITCH)
        a('s_mul_i32 s%d, s%d, %d' % (S_LOFF, S_KS, 1152 * D * 2))
        a('s_mul_i32 s%d, s%d, 384' % (S_T1, S_U))
        a('s_add_u32 s%d, s%d, s%d' % (S_LOFF, S_LOFF, S_T1))
        a('s_sub_u32 s%d, s%d, 384' % (S_LOFF, S_LOFF))
        for i in range(3):
            a('v_and_b32 v%d, 63, v%d' % (V_TT, V_DKJ + i))
            a('v_lshrrev_b32 v%d, 16, v%d' % (V_TT + 1, V_DKJ + i))
            a('v_mul_u32_u24 v%d, %d, v%d' % (V_TT, D * 2, V_TT))
            a('v_add_u32 v%d, v%d, v%d' % (V_TT, V_TT, V_TT + 1))
            a('v_bfe_u32 v%d, v%d, 6, 2' % (V_TT + 1, V_DKJ + i))
            a('v_lshl_add_u32 v%d, v%d, 7, v%d' % (V_DO + i, V_TT + 1, V_TT))
        a.label(L)


def dma_one(a, st, i):
    a('s_mul_i32 s%d, s%d, %d' % (S_T1, S_PITCH, 192 * st))
    a('s_add_u32 s%d, s%d, s%d' % (S_T2, S_WBASE, S_DW))
    a('s_add_u32 m0, s%d, %d' % (S_T2, 1024 * i))
    a('s_add_u32 s%d, s%d, s%d' % (S_T1, S_T1, S_LOFF))
    a('buffer_load_dwordx4 v%d, s[%d:%d], s%d offen %slds' % (V_DO + i, S_LD, S_LD + 3, S_T1, 'nt ' if 'ldnt' in MODE else ''))


def dma_x(a, vm, piece, slot):
    a('s_lshl_b32 s%d, s%d, 11' % (S_T2, S_WAVE))
    for i in range(2):
        a('s_add_u32 m0, s%d, %d' % (S_T2, P1_XB + 16384 * slot + 1024 * i - 128 * piece))
        a('buffer_load_dwordx4 v%d, s[%d:%d], 0 offen offset:%d lds' % (V_XO + i, S_X, S_X + 3, 128 * piece))
        vm.add('x%d' % piece)


def xreads(a, lg, piece, slot):
    for j in range(2):
        for rt in range(2):
            a('ds_read_b128 %s, v%d offset:%d' % (
                vr(XF + 72 * rt + 4 * (2 * piece + j), 4), V_XR + 2 * rt + j + (4 if slot == 4 else 0),
                16384 * (slot % 4)))
            lg.add('xr%d' % piece)


def adv(a, s):
    a('s_add_u32 s%d, s%d, %d' % (s, s, P1_STG))
    a('s_cmp_ge_u32 s%d, %d' % (s, P1_RING))
    a('s_cselect_b32 s%d, 0, s%d' % (s, s))


def epi_loads(a, lg, stats):
    for nt in range(2):
        a('ds_read_b128 %s, v%d' % (vr(V_CS + 4 * nt, 4), V_CXA + nt))
        a('ds_read_b128 %s, v%d offset:256' % (vr(V_O + 4 * nt, 4), V_CXA + nt))
        a('ds_read_b128 %s, v%d' % (vr(V_BF + 4 * nt, 4), V_CSA + nt))
        lg.add('el', 3)
        a('v_add_u32 v%d, 256, v%d' % (V_CSA + nt, V_CSA + nt))
    if stats:
        a('v_and_b32 v%d, 15, v0' % V_TT)
        a('s_lshl_b32 s%d, s%d, 8' % (S_T1, S_WR))
        a('s_add_u32 s%d, s%d, %d' % (S_T1, S_T1, P1_STX))
        a('v_lshl_add_u32 v%d, v%d, 3, s%d' % (V_TT, V_TT, S_T1))
        for rt in range(2):
            a('s_lshr_b32 s%d, s%d, 4' % (S_T1, S_R0 + rt))
            a('v_add_u32 v%d, s%d, v%d' % (V_TT + 1, S_T1, V_TT))
            a('ds_read_b64 %s, v%d' % (vr(V_ST + 2 * rt, 2), V_TT + 1))
            lg.add('el')


def epi_ops(acc, isT, st_flags):
    o = []
    for i in range(8):
        o.append('v_add_f32 v%d, v%d, v%d' % (V_CS + i, V_CS + i, V_O + i))
    for rt in range(2):
        for nt in range(2):
            for r2 in range(2):
                t = acc + 8 * rt + 4 * nt + 2 * r2
                for e in range(2):
                    o.append('v_fma_f32 v%d, -v%d, v%d, v%d' % (
                        t + e, V_ST + 2 * rt + 1, V_CS + 4 * nt + 2 * r2 + e, t + e))
                if isT:
                    for e in range(2):
                        o.append('v_mul_f32 v%d, v%d, v%d' % (t + e, V_ST + 2 * rt, t + e))
                    o.append('v_cvt_pk_bf16_f32 v%d, v%d, v%d' % (V_O + 4 * nt + 2 * r2 + rt, t, t + 1))
                else:
                    for e in range(2):
                        o.append('v_fma_f32 v%d, v%d, v%d, v%d' % (
                            t + e, V_ST + 2 * rt, t + e, V_BF + 4 * nt + 2 * r2 + e))
                    for e in range(2):
                        o.append('v_max_f32 v%d, 0, v%d' % (t + e, t + e))
                    for e in range(2):
                        o.append('v_mul_f32 v%d, v%d, v%d' % (t + e, t + e, t + e))
                    o.append('v_cvt_pk_bf16_f32 v%d, v%d, v%d' % (V_O + 4 * rt + 2 * nt + r2, t, t + 1))
        if not isT:
            o.append('s_lshl_b32 s%d, s%d, 15\ns_add_u32 s%d, s%d, s%d\ns_lshr_b32 s%d, s%d, 1' % (S_T4, S_PREV, S_T4, S_T4, S_R0 + rt, S_T4, S_T4))
            for d in range(2):
                o.append('v_permlane16_swap_b32 v%d, v%d' % (V_O + 4 * rt + d, V_O + 4 * rt + 2 + d))
            o.append('buffer_store_dwordx4 %s, v%d, s[%d:%d], s%d offen %s' % (
                vr(V_O + 4 * rt, 4), V_HA, S_H, S_H + 3, S_T4, st_flags))
    if isT:
        o.append('SWAP_RT')
        for nt in range(2):
            for pp in range(2):
                o.append('s_sub_u32 s%d, s%d, 72\ns_lshl_b32 s%d, s%d, 18\ns_add_u32 s%d, s%d, s%d\ns_add_u32 s%d, s%d, %d\n' % (
                    S_T4, S_PREV, S_T4, S_T4, S_T4, S_T4, S_N0 + nt, S_T4, S_T4, pp * 8192) +
                    'buffer_store_dwordx2 %s, v%d, s[%d:%d], s%d offen %s' % (
                    vr(V_O + 4 * nt + 2 * pp, 2), V_RTA, S_RT, S_RT + 3, S_T4, st_flags))
    return o


def emit_epi(a, vm, t):
    if t == 'SWAP_RT':
        L = a.newlabel('p1_sw')
        a('s_cmp_eq_u32 s%d, 0' % S_G)
        a('s_cbranch_scc1 %s' % L)
        for k in range(4):
            a('v_swap_b32 v%d, v%d' % (V_O + 2 * k, V_O + 2 * k + 1))
        a.label(L)
        return
    a(t)
    if 'buffer_store' in t:
        vm.add('es')


def wread1(a, lg, js, k):
    jj = js % 6
    nt, e2 = k >> 1, k & 1
    a('ds_read_b64_tr_b16 %s, v%d offset:%d' % (
        vr(WBUF(js % 5, nt) + 2 * e2, 2), V_RC + 2 * (js & 1) + nt, (32 * jj + 4 * e2) * 128))
    lg.add('w%d_%d' % (js, nt))


def read_switch(a):
    a('s_add_u32 s%d, s%d, %d' % (S_RB, S_RB, P1_STG))
    a('s_cmp_ge_u32 s%d, %d' % (S_RB, P1_RING))
    a('s_cselect_b32 s%d, 0, s%d' % (S_RB, S_RB))
    a('s_mov_b32 s%d, %d' % (S_T1, P1_STG - P1_RING))
    a('s_cselect_b32 s%d, s%d, %d' % (S_T1, S_T1, P1_STG))
    for i in range(4):
        a('v_add_u32 v%d, s%d, v%d' % (V_RC + i, S_T1, V_RC + i))


def stats_finish(a, lg):
    RS, GR, T = V_CS, V_CS + 4, V_O
    a('v_and_b32 v%d, 3, v0' % T)
    a('v_cmp_eq_u32 vcc, 1, v%d' % T)
    a('v_cndmask_b32 v%d, v%d, v%d, vcc' % (GR, GR, GR + 1))
    a('v_cmp_eq_u32 vcc, 2, v%d' % T)
    a('v_cndmask_b32 v%d, v%d, v%d, vcc' % (GR, GR, GR + 2))
    a('v_cmp_eq_u32 vcc, 3, v%d' % T)
    a('v_cndmask_b32 v%d, v%d, v%d, vcc' % (GR, GR, GR + 3))
    a('v_mul_f32 v%d, %s, v%d' % (RS, f32h(1.0 / D), RS))
    a('v_mul_f32 v%d, %s, v%d' % (GR, f32h(1.0 / D), GR))
    a('v_fma_f32 v%d, -v%d, v%d, v%d' % (GR, RS, RS, GR))
    a('v_max_f32 v%d, 0, v%d' % (GR, GR))
    bf16_round(a, RS)
    bf16_round(a, GR)
    a('v_add_f32 v%d, %s, v%d' % (GR, f32h(1e-5), GR))
    bf16_round(a, GR)
    a('v_sqrt_f32 v%d, v%d' % (GR, GR))
    bf16_round(a, GR)
    a('v_rcp_f32 v%d, v%d' % (T + 2, GR))
    a('v_mov_b32 v%d, v%d' % (T + 3, RS))
    a('v_and_b32 v%d, 15, v0' % T)
    a('v_lshrrev_b32 v%d, 2, v%d' % (T + 1, T))
    a('v_lshrrev_b32 v%d, 4, v0' % (T + 4))
    a('v_cmp_eq_u32 vcc, v%d, v%d' % (T + 1, T + 4))
    a('s_lshl_b32 s%d, s%d, 8' % (S_T1, S_WR))
    a('s_lshl_b32 s%d, s%d, 7' % (S_T2, S_G))
    a('s_add_u32 s%d, s%d, s%d' % (S_T1, S_T1, S_T2))
    a('s_add_u32 s%d, s%d, %d' % (S_T1, S_T1, P1_STX))
    a('v_lshl_add_u32 v%d, v%d, 3, s%d' % (T, T, S_T1))
    a('v_mov_b32 v%d, %d' % (T + 1, P1_STX + 1024))
    a('v_cndmask_b32 v%d, v%d, v%d, vcc' % (T, T + 1, T))
    a('ds_write_b64 v%d, %s' % (T, vr(T + 2, 2)))
    lg.add('cw')


def publish(a, delta):
    L = a.newlabel('p1_pub')
    a('s_cmp_lg_u32 s%d, 0' % S_WAVE)
    a('s_cbranch_scc1 %s' % L)
    a('s_add_u32 s%d, s%d, s%d' % (S_T1, S_NONCE, S_P))
    a('s_add_i32 s%d, s%d, %d' % (S_T1, S_T1, delta))
    a('v_mov_b32 v%d, s%d' % (V_T0, S_T1))
    a('v_mov_b32 v%d, 0' % V_TT)
    a('buffer_store_dword v%d, v%d, s[%d:%d], s%d offen sc1' % (V_T0, V_TT, S_PG, S_PG + 3, S_PGO))
    a.label(L)


def prefetch2(a, Lp):
    La = a.newlabel('pf_aux')
    Lg = a.newlabel('pf_go')
    a('s_cmp_gt_u32 s%d, 2' % S_P)
    a('s_cbranch_scc1 %s' % Lp)
    a('s_cmp_eq_u32 s%d, 0' % S_U)
    a('s_cbranch_scc1 %s' % Lp)
    a('s_bfe_u32 s%d, s2, 0x10005' % S_T1)
    a('s_add_u32 s%d, s%d, 1' % (S_T1, S_T1))
    a('s_cmp_lg_u32 s%d, s%d' % (S_T1, S_P))
    a('s_cbranch_scc1 %s' % Lp)
    a('s_lshr_b32 s%d, s2, 5' % S_T1)
    a('s_lshl_b32 s%d, s%d, 3' % (S_T1, S_T1))
    a('s_sub_u32 s%d, s2, s%d' % (S_T1, S_T1))
    a('s_sub_u32 s%d, s%d, 8' % (S_T1, S_T1))
    a('s_lshl_b32 s%d, s%d, 1' % (S_T1, S_T1))
    a('s_add_u32 s%d, s%d, s%d' % (S_T1, S_T1, S_WAVE))
    a('s_sub_u32 s%d, s%d, 4' % (S_T1, S_T1))
    a.label(Lg)
    a('s_getpc_b64 s[94:95]')
    a('s_add_u32 s94, s94, tab_Tinv@rel32@lo+4')
    a('s_addc_u32 s95, s95, tab_Tinv@rel32@hi+12')
    a('s_lshl_b32 s%d, s%d, 14' % (S_T2, S_T1))
    a('s_sub_u32 s%d, s%d, %d' % (S_T3, S_T2, 324 * 16384))
    a('v_lshlrev_b32 v%d, 8, v0' % V_T0)
    a('s_cmp_lt_u32 s%d, 324' % S_T1)
    a('s_cselect_b32 s%d, s92, s94' % S_B1)
    a('s_cselect_b32 s%d, s93, s95' % (S_B1 + 1))
    a('s_cselect_b32 s%d, s%d, s%d' % (S_T2, S_T2, S_T3))
    a('s_mov_b32 s%d, %d' % (S_T3, D * D * 2 + 61440))
    a('s_cselect_b32 s%d, %d, s%d' % (S_B1 + 2, F * D * 2, S_T3))
    a('s_and_b32 s%d, s%d, 0xffff' % (S_B1 + 1, S_B1 + 1))
    a('buffer_load_dwordx2 v[%d:%d], v%d, s[%d:%d], s%d offen offset:124' % (V_DUM, V_DUM + 1, V_T0, S_B1, S_B1 + 3, S_T2))


def prefetch(a):
    a('s_getpc_b64 s[94:95]')
    a('s_add_u32 s94, s94, tab_F@rel32@lo+4')
    a('s_addc_u32 s95, s95, tab_F@rel32@hi+12')
    a('s_lshl_b32 s%d, s%d, 2' % (S_T2, S_MT))
    a('s_add_u32 s%d, s%d, s%d' % (S_T2, S_T2, S_KS))
    a('s_mul_i32 s%d, s%d, 3' % (S_T1, S_T2))
    a('s_add_u32 s%d, s%d, s%d' % (S_T1, S_T1, S_P))
    a('s_sub_u32 s%d, s%d, 1' % (S_T1, S_T1))
    a('s_mul_i32 s%d, s%d, 1457' % (S_T2, S_T1))
    a('s_lshr_b32 s%d, s%d, 16' % (S_T2, S_T2))
    a('s_mul_i32 s%d, s%d, %d' % (S_T2, S_T2, 1152 * 1152 - 45 * 16384))
    a('s_lshl_b32 s%d, s%d, 14' % (S_T3, S_T1))
    a('s_add_u32 s%d, s%d, s%d' % (S_T2, S_T2, S_T3))
    a('s_sub_u32 s%d, s%d, %d' % (S_T3, S_T3, 180 * 16384))
    a('v_lshlrev_b32 v%d, 8, v0' % V_T0)
    a('s_cmp_lt_u32 s%d, 180' % S_T1)
    a('s_cselect_b32 s%d, s92, s94' % S_B1)
    a('s_cselect_b32 s%d, s93, s95' % (S_B1 + 1))
    a('s_cselect_b32 s%d, s%d, s%d' % (S_T2, S_T2, S_T3))
    a('s_mov_b32 s%d, %d' % (S_T3, 61440))
    a('s_cselect_b32 s%d, %d, s%d' % (S_B1 + 2, F * D * 2, S_T3))
    a('s_and_b32 s%d, s%d, 0xffff' % (S_B1 + 1, S_B1 + 1))
    a('buffer_load_dwordx2 v[%d:%d], v%d, s[%d:%d], s%d offen offset:124' % (V_DUM, V_DUM + 1, V_T0, S_B1, S_B1 + 3, S_T2))


def touch_w(a, ahead):
    L = a.newlabel('p1_tw')
    a('s_cmp_lt_u32 s%d, 6' % S_WAVE)
    a('s_cbranch_scc1 %s' % L)
    a('s_add_u32 s%d, s%d, %d' % (S_T4, S_P, ahead))
    a('s_cmp_ge_u32 s%d, s%d' % (S_T4, S_CNT))
    a('s_cbranch_scc1 %s' % L)
    panel_id(a, S_T4, S_T4)
    a('s_lshl_b32 s%d, s%d, 7' % (S_T4, S_T4))
    a('s_and_b32 s%d, s%d, 7' % (S_T1, S_MT))
    a('s_lshl_b32 s%d, s%d, 1' % (S_T1, S_T1))
    a('s_add_u32 s%d, s%d, s%d' % (S_T1, S_T1, S_WAVE))
    a('s_sub_u32 s%d, s%d, 6' % (S_T1, S_T1))
    a('s_mul_i32 s%d, s%d, %d' % (S_T1, S_T1, 36 * F * 2))
    a('s_add_u32 s%d, s%d, s%d' % (S_T4, S_T4, S_T1))
    a('v_min_u32 v%d, 35, v0' % V_T0)
    a('v_mul_u32_u24 v%d, %d, v%d' % (V_T0, F * 2, V_T0))
    a('buffer_load_dword v%d, v%d, s[%d:%d], s%d offen' % (V_DUM, V_T0, S_W1, S_W1 + 3, S_T4))
    a.label(L)


def body(a, vm, lg, kind, par, st_flags, sp=None):
    first = kind == 'first'
    ACC = ACCS[par]
    PACC = ACCS[1 - par]
    fill = [] if first else epi_ops(PACC, kind == 'T1', st_flags)
    if 'novalu' in MODE:
        fill = [t for t in fill if not t.startswith('v_')]
    if 'plainst' in MODE:
        fill = [t.replace(' sc1', '') for t in fill]
    if 'oobst' in MODE:
        fill = [t.replace('s_lshl_b32 s%d, s%d, 14' % (S_T4, S_PREV), 's_mov_b32 s%d, 0x7f000000' % S_T4) for t in fill]
    E0, E1 = 6, 14
    slots = (E1 - E0 + 1) * 4
    emitted = 0

    for js in range(18):
        if sp and (js % 6 == 0 or ('fine' in MODE and (first or kind.endswith('1')))):
            sp.stamp()
        nx1 = (js + 1) % 18
        nx2 = (js + 2) % 18

        def mf(rt, nt):
            acc = vr(ACC + 8 * rt + 4 * nt, 4)
            a('v_mfma_f32_16x16x32_bf16 %s, %s, %s, %s' % (
                acc, vr(WB3(js, nt), 4), vr(XF + 72 * rt + 4 * js, 4), '0' if js == 0 else acc))

        def filler(k):
            nonlocal emitted
            if fill and E0 <= js <= E1:
                if js == E0 and k == 0:
                    lg.wait('el')
                want = ((js - E0) * 4 + k + 1) * len(fill) // slots
                while emitted < want:
                    emit_epi(a, vm, fill[emitted])
                    emitted += 1

        lg.wait('w%d_0' % js)
        if first and js == 10:
            lg.wait('xr8')
        mf(0, 0)
        if first and js == 8:
            vm.wait('x5', 'x6', 'x7', 'x8')
            a('s_barrier')
        if first and js in (8, 9):
            xreads(a, lg, 5 + 2 * (js - 8), 2 * (js - 8))
        if (js + 2) % 6 == 0:
            st = ((js + 2) // 6) % 3
            pub = kind == 'W' and js == 4
            if pub:
                vm.wait('d%d' % st, 'es')
            else:
                vm.wait('d%d' % st)
            if js == 4:
                lg.wait('cw')
            if first and js == 16:
                vm.wait('nn')
                get_nonce(a)
            a('s_barrier')
            if pub:
                publish(a, -1)
            if first and js == 16:
                a('v_mov_b32 v%d, %d' % (V_T0, P1_LDS - 4))
                a('ds_read_b32 v%d, v%d' % (V_NN, V_T0))
                lg.add('nn')
        rd3(a, lg, nx1, 1)
        filler(0)
        mf(1, 0)
        if js % 2 == 0 and not ('nocsm' in MODE and js > 0):
            acc = vr(V_CSP, 4)
            a('v_mfma_f32_16x16x32_bf16 %s, %s, %s, %s' % (acc, vr(WB3(js, 0), 4), vr(V_ONE, 4), '0' if js == 0 else acc))
        rd3(a, lg, nx2, 0)
        if js == 16:
            a('s_add_u32 s%d, s%d, 2' % (S_T4, S_P))
            set_load_panel(a, S_T4, kind == 'W')
        if js == 5 and not first:
            epi_loads(a, lg, kind.endswith('1'))
        if js == 5 and 'nopf' not in MODE and not first:
            Lp = a.newlabel('p1_pf')
            a('s_sub_u32 s%d, s%d, 4' % (S_T1, S_WAVE))
            a('s_cmp_gt_u32 s%d, 1' % S_T1)
            a('s_cbranch_scc1 %s' % Lp)
            prefetch2(a, Lp)
            a.label(Lp)
        if js == 5 and 'notouch' not in MODE:
            touch_w(a, 2)
        if first and js == 7 and 'tlb' in MODE:
            Lt = a.newlabel('p1_tlb')
            a('s_cmp_lg_u32 s%d, 3' % S_WAVE)
            a('s_cbranch_scc1 %s' % Lt)
            a('s_load_dwordx2 s[6:7], s[0:1], %d' % KA_OUT)
            srd(a, S_B1, 66, 67, 48 << 20)
            a('v_lshlrev_b32 v%d, %d, v0' % (V_T0, 20 if 'tlb1' in MODE else 21))
            a('buffer_load_dword v%d, v%d, s[%d:%d], 0 offen sc1' % (V_DUM, V_T0, S_B1, S_B1 + 3))
            a('s_waitcnt lgkmcnt(0)')
            srd(a, S_B1, 6, 7, S * D * 2)
            a('buffer_load_dword v%d, v%d, s[%d:%d], 0 offen sc1' % (V_DUM, V_T0, S_B1, S_B1 + 3))
            a.label(Lt)
        if first and js == 9:
            vm.wait('b1')
            a('v_lshlrev_b32 v93, 16, v93')
            a('s_lshl_b32 s%d, s%d, 8' % (S_T1, S_WAVE))
            a('s_add_u32 s%d, s%d, %d' % (S_T1, S_T1, P1_CBL))
            a('v_lshl_add_u32 v92, v0, 2, s%d' % S_T1)
            a('ds_write_b32 v92, v93')
            lg.add('bw')
        if first and js in (2, 3, 5, 6) and 'nowt' not in MODE:
            k = {2: 0, 3: 1, 5: 2, 6: 3}[js]
            wt_issue(a, vm, k >> 1, S_H, S_RT, (2 * (k & 1), 2 * (k & 1) + 1))
        if first and js == WTJ:
            if 'nowt' not in MODE:
                wt_stores(a, vm, S_H)
            srd(a, S_H, 66, 67, S * F * 2, WS_H)
            srd(a, S_RT, 66, 67, 288 * 8192, WS_RT)
            a('s_load_dwordx2 s[92:93], s[0:1], %d' % KA_W2)
            a('s_waitcnt lgkmcnt(0)')
        filler(1)
        lg.wait('w%d_1' % js)
        mf(0, 1)
        if first and not ('nostat' in MODE and js > 0):
            x0 = vr(XF + 4 * js, 4)
            a('v_mfma_f32_16x16x32_bf16 %s, %s, %s, %s' % (vr(V_CS, 4), vr(V_ONE, 4), x0, '0' if js == 0 else vr(V_CS, 4)))
        if first and js < 16:
            if js < 2:
                dma_x(a, vm, 5 + 2 * js, 2 * js)
                dma_x(a, vm, 6 + 2 * js, 2 * js + 1)
            if js >= 10:
                todo = {10: [0, 1], 11: [2, 3], 12: [4, 5], 13: [6], 14: [7], 15: [8]}[js]
                for n in todo:
                    dma_one(a, n // 3, n % 3)
                    vm.add('d%d' % (n // 3))
                    if n % 3 == 2:
                        adv(a, S_WBASE)
        elif js % 2 == 0:
            n = ((js + 2) % 18) // 2
            if js == 16 and kind == 'W':
                a('s_add_u32 s%d, s%d, 1' % (S_T1, S_P))
                a('s_cmp_ge_u32 s%d, s%d' % (S_T1, S_CNT))
                a('s_cselect_b32 s%d, 0x30000, s%d' % (S_WBASE, S_WBASE))
            dma_one(a, n // 3, n % 3)
            vm.add('d%d' % (n // 3))
            if n % 3 == 2:
                adv(a, S_WBASE)
        filler(2)
        if first and js in (8, 9):
            xreads(a, lg, 6 + 2 * (js - 8), 1 + 2 * (js - 8))
        mf(1, 1)
        if first and not ('nostat' in MODE and js > 0):
            x0 = vr(XF + 4 * js, 4)
            a('v_mfma_f32_16x16x32_bf16 %s, %s, %s, %s' % (vr(V_CS + 4, 4), x0, x0, '0' if js == 0 else vr(V_CS + 4, 4)))
        if kind == 'W' and js in (15, 17) and 'fft' in HOOK:
            L = a.newlabel('p1_ax')
            a('s_add_u32 s%d, s%d, 1' % (S_T1, S_P))
            a('s_cmp_lg_u32 s%d, s%d' % (S_T1, S_FTR))
            a('s_cbranch_scc1 %s' % L)
            HOOK['fft'](a, js)
            a.label(L)
            L = a.newlabel('p1_gx')
            a('s_add_u32 s%d, s%d, 1' % (S_T1, S_P))
            a('s_cmp_lg_u32 s%d, s%d' % (S_T1, S_GPR))
            a('s_cbranch_scc1 %s' % L)
            HOOK['g2'](a, js)
            a.label(L)
        if js == 17:
            a('ds_write_b128 v%d, %s' % (V_CXW, vr(V_CSP, 4)))
            lg.add('cw')
        filler(3)
    assert emitted == len(fill)
    if first:
        stats_finish(a, lg)
        lg.wait('nn')
        a('v_readfirstlane_b32 s%d, v%d' % (S_NONCE, V_NN))
    a('s_mov_b32 s%d, s%d' % (S_PREV, S_CUR))
    a('s_add_u32 s%d, s%d, 1' % (S_P, S_P))
    panel_id(a, S_CUR, S_P)


def WB3(js, nt):
    return WB + 4 * (js % 3) if nt == 0 else WB + 12 + 4 * (js % 2)


def rd3(a, lg, js, nt):
    jj = js % 6
    if jj in (0, 1):
        a('v_add_u32 v%d, s%d, v%d' % (V_RC + 2 * (js & 1) + nt, S_RBD + nt, V_RC + 2 * (js & 1) + nt))
    for e2 in range(2):
        a('ds_read_b64_tr_b16 %s, v%d offset:%d' % (
            vr(WB3(js, nt) + 2 * e2, 2), V_RC + 2 * (js & 1) + nt, (32 * jj + 4 * e2) * 128))
        lg.add('w%d_%d' % (js, nt))
    if jj == 1:
        a('s_add_u32 s%d, s%d, %d' % (S_RB + 0 if nt == 0 else S_RB1, S_RB if nt == 0 else S_RB1, P1_STG))
        r = S_RB if nt == 0 else S_RB1
        a('s_cmp_ge_u32 s%d, %d' % (r, P1_RING))
        a('s_cselect_b32 s%d, 0, s%d' % (r, r))
        a('s_mov_b32 s%d, %d' % (S_RBD + nt, P1_STG - P1_RING))
        a('s_cselect_b32 s%d, s%d, %d' % (S_RBD + nt, S_RBD + nt, P1_STG))


def get_nonce(a):
    Lw = a.newlabel('p1_nw')
    Lg = a.newlabel('p1_ng')
    Lb = a.newlabel('p1_nb')
    a('s_cmp_lg_u32 s%d, 0' % S_WAVE)
    a('s_cbranch_scc1 %s' % Lb)
    a('s_mov_b32 s%d, 0' % S_SPIN)
    a('v_mov_b32 v%d, 0' % V_TT)
    a.label(Lw)
    a('v_readfirstlane_b32 s%d, v%d' % (S_NONCE, V_NN))
    a('s_add_u32 s%d, s%d, 1' % (S_SPIN, S_SPIN))
    a('s_cmp_lg_u32 s%d, 0' % S_NONCE)
    a('s_cbranch_scc1 %s' % Lg)
    a('s_sleep 4')
    a('buffer_load_dword v%d, v%d, s[%d:%d], 0 offen sc1' % (V_NN, V_TT, S_DBG, S_DBG + 3))
    a('s_waitcnt vmcnt(0)')
    a('s_cmp_lt_u32 s%d, %d' % (S_SPIN, SPIN_MAX))
    a('s_cbranch_scc1 %s' % Lw)
    a.label(Lg)
    a('v_mov_b32 v%d, %d' % (V_TT, P1_LDS - 4))
    a('ds_write_b32 v%d, v%d' % (V_TT, V_NN))
    a('s_waitcnt lgkmcnt(0)')
    a.label(Lb)


def wave_allreduce(a, v, t):
    for r in (1, 2, 4, 8):
        a('v_add_f32_dpp v%d, v%d, v%d row_ror:%d row_mask:0xf bank_mask:0xf' % (v, v, v, r))
    a('v_mov_b32 v%d, v%d' % (t, v))
    a('v_permlane16_swap_b32 v%d, v%d' % (v, t))
    a('v_add_f32 v%d, v%d, v%d' % (v, v, t))
    a('v_mov_b32 v%d, v%d' % (t, v))
    a('v_permlane32_swap_b32 v%d, v%d' % (v, t))
    a('v_add_f32 v%d, v%d, v%d' % (v, v, t))


def bf16_round(a, v):
    a('v_cvt_pk_bf16_f32 v%d, v%d, v%d' % (v, v, v))
    a('v_lshlrev_b32 v%d, 16, v%d' % (v, v))


WT_RE = 44
WT_IM = 28
WT_AS = (90, 91)
WT_LA = (94, 95)
V_NN = 27
S_RB1, S_RBD = 88, 89


def wt_loads(a, vm, rnd, SR, SI):
    L, Q = V_TT, V_TT + 1
    a('s_lshr_b32 s%d, s2, 2' % S_T1)
    a('s_and_b32 s%d, s2, 3' % S_T3)
    if rnd == 0:
        a('s_lshl_b32 s%d, s%d, 3' % (S_T3, S_T3))
        a('s_add_u32 s%d, s%d, s%d' % (S_T3, S_T3, S_WAVE))
    else:
        a('s_lshl_b32 s%d, s%d, 2' % (S_T2, S_WAVE))
        a('s_add_u32 s%d, s%d, s%d' % (S_T3, S_T3, S_T2))
        a('s_add_u32 s%d, s%d, 32' % (S_T3, S_T3))
    a('s_lshl_b32 s%d, s%d, 3' % (S_T3, S_T3))
    a('v_lshrrev_b32 v%d, 3, v0' % L)
    a('v_add_u32 v%d, s%d, v%d' % (L, S_T3, L))
    if rnd == 0:
        a('v_cmp_eq_u32 vcc, 0, v%d' % L)
        a('v_mov_b32 v%d, 288' % Q)
        a('v_cndmask_b32 v%d, v%d, v%d, vcc' % (Q, L, Q))
    else:
        a('v_mov_b32 v%d, 288' % Q)
        a('v_cmp_eq_u32 vcc, v%d, v%d' % (Q, L))
        a('v_cndmask_b32 v%d, v%d, 0, vcc' % (Q, L))
    a('v_lshlrev_b32 v%d, 13, v%d' % (Q, Q))
    a('v_and_b32 v%d, 7, v0' % V_T0)
    a('v_lshl_add_u32 v%d, v%d, 4, v%d' % (Q, V_T0, Q))
    a('s_lshl_b32 s%d, s%d, 7' % (S_T2, S_T1))
    a('v_add_u32 v%d, s%d, v%d' % (WT_AS[rnd], S_T2, Q))
    a('s_and_b32 s%d, s%d, 3' % (S_T2, S_T1))
    a('s_lshl_b32 s%d, s%d, 3' % (S_T2, S_T2))
    a('s_lshr_b32 s%d, s%d, 2' % (S_T1, S_T1))
    a('s_lshl_b32 s%d, s%d, 7' % (S_T1, S_T1))
    a('s_add_u32 s%d, s%d, s%d' % (S_T2, S_T2, S_T1))
    a('s_mul_i32 s%d, s%d, %d' % (S_T2, S_T2, DF * 2))
    if rnd == 1:
        a('v_cmp_gt_u32 vcc, 0x121, v%d' % L)
        a('v_mov_b32 v%d, 0x7fffffff' % Q)
        a('v_cndmask_b32 v%d, v%d, v%d, vcc' % (WT_AS[1], Q, WT_AS[1]))
    a('v_add_u32 v%d, s%d, v%d' % (L, S_T3, V_T0))
    a('v_lshrrev_b32 v%d, 3, v0' % V_T0)
    if rnd == 1:
        a('v_cmp_gt_u32 vcc, 0x121, v%d' % L)
    a('v_mul_u32_u24 v%d, %d, v%d' % (V_T0, DF * 2, V_T0))
    a('v_lshl_add_u32 v%d, v%d, 1, v%d' % (L, L, V_T0))
    if rnd == 1:
        a('v_cndmask_b32 v%d, v%d, v%d, vcc' % (L, Q, L))
    a('v_add_u32 v%d, s%d, v%d' % (WT_LA[rnd], S_T2, L))


def wt_issue(a, vm, rnd, SR, SI, es):
    for e in es:
        a('s_mov_b32 s%d, %d' % (S_T3, 32 * e * DF * 2))
        a('buffer_load_ushort v%d, v%d, s[%d:%d], s%d offen' % (WT_RE + 4 * rnd + e, WT_LA[rnd], SR, SR + 3, S_T3))
        a('buffer_load_ushort v%d, v%d, s[%d:%d], s%d offen' % (WT_IM + 4 * rnd + e, WT_LA[rnd], SI, SI + 3, S_T3))
        vm.add('wt', 2)


def wt_stores(a, vm, SW):
    vm.wait('wt')
    srd(a, SW, 66, 67, 289 * 8192, WS_WT)
    for i in range(8):
        a('v_lshl_or_b32 v%d, v%d, 16, v%d' % (WT_IM + i, WT_IM + i, WT_RE + i))
    a('v_and_b32 v%d, 7, v0' % V_TT)
    a('v_lshrrev_b32 v%d, 3, v0' % (V_TT + 1))
    a('v_lshl_add_u32 v%d, v%d, 3, v%d' % (V_TT, V_TT, V_TT + 1))
    a('v_lshlrev_b32 v%d, 2, v%d' % (V_TT, V_TT))
    for i in range(8):
        a('ds_bpermute_b32 v%d, v%d, v%d' % (WT_RE + i, V_TT, WT_IM + i))
    a('s_waitcnt lgkmcnt(0)')
    for rnd in range(2):
        a('buffer_store_dwordx4 %s, v%d, s[%d:%d], 0 offen sc1' % (vr(WT_RE + 4 * rnd, 4), WT_AS[rnd], SW, SW + 3))
        vm.add('wts')


def p1_body(a, st_flags='', instr=False, mega=True):
    vm = Cnt(a, 'vmcnt', 63)
    lg = Cnt(a, 'lgkmcnt', 15)
    sp = Stamps(a, 21, 70, 72, instr)
    if instr:
        a('s_memtime s[74:75]')
    a('s_memrealtime s[76:77]')
    a('s_load_dwordx2 s[4:5], s[0:1], %d' % KA_X)
    a('s_load_dwordx4 s[92:95], s[0:1], %d' % KA_WR)
    a('s_load_dwordx4 s[60:63], s[0:1], %d' % KA_W1)
    a('s_load_dwordx4 s[64:67], s[0:1], %d' % KA_DBG)
    a('s_getpc_b64 s[68:69]')
    a('s_add_u32 s68, s68, tab_T@rel32@lo+4')
    a('s_addc_u32 s69, s69, tab_T@rel32@hi+12')
    a('v_lshrrev_b32 v1, 6, v0')
    a('v_and_b32 v0, 63, v0')
    decode_ids(a, S_MT, S_KS, S_U, S_T1, S_T2)
    a('v_readfirstlane_b32 s%d, v1' % S_WAVE)
    if 'nocode' not in MODE:
        Lc = a.newlabel('p1_ct')
        a('s_cmp_lg_u32 s%d, 7' % S_WAVE)
        a('s_cbranch_scc1 %s' % Lc)
        a('s_getpc_b64 s[%d:%d]' % (S_H, S_H + 1))
        a.label('code_here')
        a('s_and_b32 s%d, s%d, 0xffff' % (S_H + 1, S_H + 1))
        a('s_mov_b32 s%d, code_end-code_here' % (S_H + 2))
        a('s_mov_b32 s%d, 0x20000' % (S_H + 3))
        a('s_lshr_b32 s%d, s2, 3' % S_T1)
        a('s_lshl_b32 s%d, s%d, 13' % (S_T1, S_T1))
        a('v_lshlrev_b32 v%d, 7, v0' % V_T0)
        a('buffer_load_dword v%d, v%d, s[%d:%d], s%d offen' % (V_DUM, V_T0, S_H, S_H + 3, S_T1))
        a.label(Lc)
    a('s_lshr_b32 s%d, s%d, 2' % (S_G, S_WAVE))
    a('s_and_b32 s%d, s%d, 3' % (S_WR, S_WAVE))
    a('s_cmp_eq_u32 s%d, 0' % S_KS)
    a('s_cselect_b32 s%d, 3, 2' % S_NT_)
    a('s_cselect_b32 s%d, 0, 1' % S_TB)
    a('s_lshl_b32 s%d, s%d, 1' % (S_T1, S_KS))
    a('s_add_u32 s%d, s%d, s%d' % (S_TB, S_TB, S_T1))
    a('s_add_u32 s%d, s%d, 72' % (S_TB, S_TB))
    a('s_or_b32 s%d, s%d, s%d' % (S_T1, S_KS, S_U))
    a('s_cmp_eq_u32 s%d, 0' % S_T1)
    a('s_cselect_b32 s%d, 6, 5' % S_CNT)
    a('s_mul_i32 s%d, s%d, 3072' % (S_DW, S_WAVE))
    a('s_cmp_eq_u32 s%d, 0' % S_U)
    a('s_cselect_b32 s%d, s%d, 99' % (S_FTR, S_CNT))
    a('s_cselect_b32 s%d, 99, s%d' % (S_GPR, S_CNT))
    a('v_lshrrev_b32 v108, 3, v0')
    a('v_and_b32 v109, 7, v0')
    a('v_bfe_u32 v104, v0, 4, 1')
    a('s_mul_i32 s%d, s%d, 3' % (S_T1, S_WAVE))
    for i in range(3):
        a('s_add_u32 s%d, s%d, %d' % (S_T2, S_T1, i))
        a('s_lshl_b32 s%d, s%d, 3' % (S_T3, S_T2))
        a('v_add_u32 v106, s%d, v108' % S_T3)
        a('s_and_b32 s%d, s%d, 1' % (S_T2, S_T2))
        a('s_lshl_b32 s%d, s%d, 1' % (S_T2, S_T2))
        a('v_add_u32 v105, s%d, v104' % S_T2)
        a('v_lshlrev_b32 v105, 1, v105')
        a('v_xor_b32 v105, v105, v109')
        a('v_lshl_or_b32 v%d, v105, 20, v106' % (V_DKJ + i))
    a('s_lshl_b32 s%d, s%d, 2' % (S_N2, S_MT))
    a('s_lshr_b32 s%d, s%d, 1' % (S_T1, S_WAVE))
    a('s_add_u32 s%d, s%d, s%d' % (S_T1, S_T1, S_N2))
    a('s_and_b32 s%d, s%d, 1' % (S_T2, S_WAVE))
    a('s_lshl_b32 s%d, s%d, 6' % (S_T2, S_T2))
    a('s_add_u32 s%d, s%d, s%d' % (S_T1, S_T1, S_T2))
    a('s_add_u32 s%d, s%d, s%d' % (S_N2, S_N2, S_WR))
    for i in range(2):
        a('v_add_u32 v104, %d, v108' % (8 * i))
        a('v_lshrrev_b32 v105, 1, v104')
        a('v_xor_b32 v105, v105, v109')
        a('v_lshlrev_b32 v104, 7, v104')
        a('v_add_u32 v104, s%d, v104' % S_T1)
        a('v_mul_u32_u24 v104, %d, v104' % (D * 2))
        a('v_lshl_add_u32 v%d, v105, 4, v104' % (V_XO + i))
    a('s_mov_b32 s%d, 0' % S_P)
    a('s_mov_b32 s%d, 0' % S_WBASE)
    a('s_mov_b32 s%d, 0x20000' % (S_LD + 3))
    a('s_waitcnt lgkmcnt(0)')
    srd(a, S_X, 4, 5, S * D * 2)
    srd(a, S_W1, 60, 61, D * F * 2)
    srd(a, S_T, 68, 69, D * D * 2)
    set_load_panel(a, S_P)
    if 'not0' not in MODE:
        a('v_mul_u32_u24 v100, 57, v0')
        a('v_lshrrev_b32 v100, 9, v100')
        a('v_mul_u32_u24 v101, 9, v100')
        a('v_sub_u32 v101, v0, v101')
        a('s_lshl_b32 s%d, s%d, 2' % (S_T1, S_WAVE))
        a('v_add_u32 v102, s%d, v100' % S_T1)
        a('v_and_b32 v103, 15, v102')
        a('v_lshrrev_b32 v102, 4, v102')
        a('v_lshl_add_u32 v102, v103, 1, v102')
        a('s_lshl_b32 s%d, s%d, 2' % (S_T1, S_MT))
        a('s_add_u32 s%d, s%d, s%d' % (S_T1, S_T1, S_U))
        a('v_lshl_add_u32 v102, v102, 6, s%d' % S_T1)
        a('v_mul_u32_u24 v102, %d, v102' % (D * 2))
        a('v_lshl_add_u32 v102, v101, 7, v102')
        a('v_cmp_gt_u32 vcc, 36, v0')
        a('v_mov_b32 v103, 0x7fffffff')
        a('v_cndmask_b32 v102, v103, v102, vcc')
        a('buffer_load_dword v%d, v102, s[%d:%d], 0 offen' % (V_DUM, S_X, S_X + 3))
        a('s_and_b32 s%d, s%d, 7' % (S_T1, S_MT))
        a('s_lshl_b32 s%d, s%d, 3' % (S_T1, S_T1))
        a('s_add_u32 s%d, s%d, s%d' % (S_T1, S_T1, S_WAVE))
        a('s_mul_i32 s%d, s%d, 9' % (S_T1, S_T1))
        a('v_min_u32 v101, 8, v0')
        a('v_add_u32 v101, s%d, v101' % S_T1)
        a('v_mul_lo_u32 v101, v101, s%d' % S_PITCH)
        a('buffer_load_dword v%d, v101, s[%d:%d], s%d offen' % (V_DUM, S_LD, S_LD + 3, S_LOFF))
        vm.add('tch', 2)
    dma_x(a, vm, 0, 0)
    dma_x(a, vm, 1, 1)

    def wst(st):
        for i in range(3):
            dma_one(a, st, i)
            vm.add('d%d' % st)
        adv(a, S_WBASE)
    wst(0)
    for pc in range(2, 5):
        dma_x(a, vm, pc, pc)
    srd(a, S_DBG, 64, 65, 256)
    Ln = a.newlabel('p1_nn')
    a('s_or_b32 s%d, s2, s%d' % (S_T1, S_WAVE))
    a('s_cmp_lg_u32 s%d, 0' % S_T1)
    a('s_cbranch_scc1 %s' % Ln)
    a('s_or_b32 s%d, s76, 1' % S_T1)
    a('v_mov_b32 v104, s%d' % S_T1)
    a('v_mov_b32 v105, 0')
    a('buffer_store_dword v104, v105, s[%d:%d], 0 offen sc1' % (S_DBG, S_DBG + 3))
    a.label(Ln)
    if instr:
        sp.init()
        a('v_writelane_b32 v21, s74, 0')
        a('v_writelane_b32 v21, s76, 62')
        a('s_mov_b32 s70, 48')
        sp.stamp()
    srd(a, S_PG, 66, 67, 64 * 64, WS_PROG)
    a('s_lshl_b32 s%d, s%d, 2' % (S_PGO, S_MT))
    a('s_add_u32 s%d, s%d, s%d' % (S_PGO, S_PGO, S_KS))
    a('s_lshl_b32 s%d, s%d, 4' % (S_PGO, S_PGO))
    a('s_add_u32 s%d, s%d, s%d' % (S_PGO, S_PGO, S_U))
    a('s_lshl_b32 s%d, s%d, 2' % (S_PGO, S_PGO))
    MK, MN = S_SPIN, S_PREV
    a('s_and_b32 s%d, s%d, 1' % (MK, S_WR))
    a('s_lshr_b32 s%d, s%d, 1' % (MN, S_WR))
    a('s_lshl_b32 s%d, s%d, 11' % (S_R0, S_G))
    a('s_xor_b32 s%d, s%d, 2048' % (S_R1, S_R0))
    a('s_lshl_b32 s%d, s%d, 16' % (S_N0, MN))
    a('s_xor_b32 s%d, s%d, 0x10000' % (S_N1, S_N0))
    a('v_and_b32 v110, 15, v0')
    a('v_lshrrev_b32 v111, 4, v0')
    a('v_and_b32 v105, 1, v111')
    a('v_xor_b32 v105, s%d, v105' % MN)
    a('v_lshrrev_b32 v106, 1, v111')
    a('v_lshl_add_u32 v105, v105, 1, v106')
    a('v_lshrrev_b32 v106, 2, v110')
    a('v_and_b32 v106, 2, v106')
    a('v_xor_b32 v105, v105, v106')
    a('v_lshlrev_b32 v104, 6, v110')
    a('v_lshl_add_u32 v104, v105, 4, v104')
    a('s_mul_i32 s%d, s%d, %d' % (S_T3, S_MT, 72 * 16384))
    a('s_lshl_b32 s%d, s%d, 11' % (S_T2, S_WR))
    a('s_add_u32 s%d, s%d, s%d' % (S_T3, S_T3, S_T2))
    a('s_lshl_b32 s%d, s%d, 13' % (S_T2, S_G))
    a('s_add_u32 s%d, s%d, s%d' % (S_T3, S_T3, S_T2))
    a('v_add_u32 v%d, s%d, v104' % (V_HA, S_T3))
    a('v_lshlrev_b32 v104, 14, v111')
    a('v_lshl_add_u32 v104, v110, 3, v104')
    a('s_lshl_b32 s%d, s%d, 17' % (S_T3, S_G))
    a('s_lshl_b32 s%d, s%d, 7' % (S_T2, S_N2))
    a('s_add_u32 s%d, s%d, s%d' % (S_T3, S_T3, S_T2))
    a('v_add_u32 v%d, s%d, v104' % (V_RTA, S_T3))
    a('s_lshl_b32 s%d, s%d, 7' % (S_T3, S_G))
    a('s_lshl_b32 s%d, s%d, 6' % (S_T2, MN))
    a('s_add_u32 s%d, s%d, s%d' % (S_T3, S_T3, S_T2))
    a('v_lshl_add_u32 v104, v111, 4, s%d' % S_T3)
    a('v_xor_b32 v105, 64, v104')
    a('v_add_u32 v%d, %d, v104' % (V_CSA, P1_CBL))
    a('v_add_u32 v%d, %d, v105' % (V_CSA + 1, P1_CBL))
    a('v_add_u32 v%d, %d, v104' % (V_CXA, P1_CSX))
    a('v_add_u32 v%d, %d, v105' % (V_CXA + 1, P1_CSX))
    a('s_lshl_b32 s%d, s%d, 8' % (S_T2, MK))
    a('v_add_u32 v%d, s%d, v%d' % (V_CXW, S_T2, V_CXA))
    a('s_lshl_b32 s%d, s%d, 12' % (S_T3, S_WR))
    a('s_add_u32 s%d, s%d, %d' % (S_T3, S_T3, P1_XB))
    a('v_lshrrev_b32 v104, 1, v110')
    a('v_xor_b32 v104, v104, v111')
    a('s_lshl_b32 s%d, s%d, 2' % (S_T2, MK))
    a('v_xor_b32 v104, s%d, v104' % S_T2)
    a('v_lshlrev_b32 v105, 7, v110')
    a('v_add_u32 v105, s%d, v105' % S_T3)
    a('v_lshl_add_u32 v106, v104, 4, v105')
    a('v_xor_b32 v104, 4, v104')
    a('v_lshl_add_u32 v107, v104, 4, v105')
    for rt in range(2):
        for j in range(2):
            a('v_add_u32 v%d, s%d, v%d' % (V_XR + 2 * rt + j, S_R0 + rt, 106 + j))
            a('v_add_u32 v%d, 0x10000, v%d' % (V_XR + 4 + 2 * rt + j, V_XR + 2 * rt + j))
    a('v_bfe_u32 v104, v0, 2, 2')
    a('v_and_b32 v105, 3, v0')
    a('v_lshl_add_u32 v106, v111, 3, v104')
    a('v_lshlrev_b32 v106, 7, v106')
    a('v_and_b32 v107, 1, v105')
    a('v_lshl_add_u32 v106, v107, 3, v106')
    a('v_lshrrev_b32 v107, 1, v104')
    a('v_and_b32 v108, 1, v111')
    a('v_lshl_add_u32 v107, v108, 1, v107')
    a('v_lshlrev_b32 v107, 1, v107')
    a('v_lshrrev_b32 v108, 1, v105')
    a('s_lshl_b32 s%d, s%d, 2' % (S_T3, S_G))
    a('s_lshl_b32 s%d, s%d, 1' % (S_T2, MN))
    a('s_add_u32 s%d, s%d, s%d' % (S_T3, S_T3, S_T2))
    a('s_lshl_b32 s%d, s%d, 12' % (S_T2, MK))
    a('v_add_u32 v109, s%d, v108' % S_T3)
    a('v_xor_b32 v109, v109, v107')
    for nt in range(2):
        if nt:
            a('v_xor_b32 v109, 2, v109')
        a('v_lshl_add_u32 v104, v109, 4, v106')
        a('v_add_u32 v%d, s%d, v104' % (V_RC + nt, S_T2))
        a('v_subrev_u32 v%d, s%d, v104' % (V_RC + 2 + nt, S_T2))
    for i in range(4):
        a('v_mov_b32 v%d, 0x3f803f80' % (V_ONE + i))
    a('s_mov_b32 s%d, 0' % S_RB)
    a('s_mov_b32 s%d, 0' % S_RB1)
    a('s_mov_b32 s%d, 0' % S_RBD)
    a('s_mov_b32 s%d, 0' % (S_RBD + 1))
    panel_id(a, S_CUR, S_P)
    wt_loads(a, vm, 0, S_H, S_RT)
    wt_loads(a, vm, 1, S_H, S_RT)
    if instr:
        a('s_mov_b32 s70, 1')
    vm.wait('x4')
    sp.stamp()
    a('s_barrier')
    rd3(a, lg, 0, 0)
    rd3(a, lg, 0, 1)
    rd3(a, lg, 1, 0)
    for pc in range(2):
        xreads(a, lg, pc, pc)
    wst(1)
    srd(a, S_H, 92, 93, S * DF * 2)
    srd(a, S_RT, 94, 95, S * DF * 2)
    wst(2)
    if 'notouch' not in MODE:
        touch_w(a, 1)
    if 'tx' in MODE:
        Lx = a.newlabel('p1_tx')
        a('s_sub_u32 s%d, s%d, 4' % (S_T1, S_WAVE))
        a('s_cmp_gt_u32 s%d, 1' % S_T1)
        a('s_cbranch_scc1 %s' % Lx)
        a('s_lshl_b32 s%d, s%d, 6' % (S_T1, S_T1))
        a('s_lshl_b32 s%d, s%d, 2' % (S_T2, S_MT))
        a('s_add_u32 s%d, s%d, s%d' % (S_T1, S_T1, S_T2))
        a('s_add_u32 s%d, s%d, s%d' % (S_T1, S_T1, S_U))
        a('s_mul_i32 s%d, s%d, %d' % (S_T1, S_T1, D * 2))
        a('v_lshrrev_b32 v104, 2, v0')
        a('v_mul_u32_u24 v104, %d, v104' % (128 * D * 2))
        a('v_and_b32 v105, 3, v0')
        a('v_lshl_add_u32 v104, v105, 7, v104')
        a('buffer_load_dword v%d, v104, s[%d:%d], s%d offen offset:640' % (V_DUM, S_X, S_X + 3, S_T1))
        a.label(Lx)
    for pc in range(2, 5):
        xreads(a, lg, pc, pc)
    srd(a, S_B1, 62, 63, F * 2)
    panel_id(a, S_T4, S_WAVE)
    a('s_lshl_b32 s%d, s%d, 7' % (S_T4, S_T4))
    a('v_lshlrev_b32 v92, 1, v0')
    a('buffer_load_ushort v93, v92, s[%d:%d], s%d offen' % (S_B1, S_B1 + 3, S_T4))
    vm.add('b1')
    a('s_mov_b32 s%d, 1' % S_T4)
    set_load_panel(a, S_T4)
    a('s_cmp_eq_u32 s%d, 0' % S_WAVE)
    a('s_cselect_b32 s%d, 0, 0x7fffffff' % S_T1)
    a('v_mov_b32 v%d, 0' % V_TT)
    a('buffer_load_dword v%d, v%d, s[%d:%d], s%d offen' % (V_NN, V_TT, S_DBG, S_DBG + 3, S_T1))
    vm.add('nn')
    lg.wait_all()
    a('s_barrier')
    S_ = sp if instr else None
    sp.rstamp(54)
    body(a, vm, lg, 'first', 0, st_flags, S_)
    q_lg = ['w0_0'] * 2 + ['w0_1'] * 2 + ['w1_0'] * 2 + ['cw']
    q_first = list(vm.q)

    def run(kind, par, q_in):
        lg.q = list(q_lg)
        vm.q = list(q_in)
        body(a, vm, lg, kind, par, st_flags, S_)
        assert lg.q == q_lg, (lg.q, q_lg)
        return list(vm.q)

    LT = a.newlabel('p1_bT')
    L0 = a.newlabel('p1_b0')
    LE0 = a.newlabel('p1_e0')
    LE1 = a.newlabel('p1_e1')
    LX = a.newlabel('p1_x')
    sp.rstamp(55)
    a('s_cmp_ge_u32 s%d, 72' % S_PREV)
    a('s_cbranch_scc1 %s' % LT)
    run('W1', 1, q_first)
    a('s_branch %s' % L0)
    a.label(LT)
    run('T1', 1, q_first)
    qM = ['d1', 'd2', 'es', 'd0']
    a.label(L0)
    q2 = run('W', 0, qM)
    assert q2[-1] == 'd0' and 'es' in q2, q2
    a('s_cmp_ge_u32 s%d, s%d' % (S_P, S_CNT))
    a('s_cbranch_scc1 %s' % LE0)
    run('W', 1, qM)
    a('s_cmp_lt_u32 s%d, s%d' % (S_P, S_CNT))
    a('s_cbranch_scc1 %s' % L0)
    for par, L in ((1, LE1), (0, LE0)):
        a.label(L)
        sp.stamp()
        a('s_waitcnt lgkmcnt(0)')
        a('s_barrier')
        lg.q = []
        epi_loads(a, lg, False)
        lg.wait('el')
        for t in epi_ops(ACCS[par], False, st_flags):
            emit_epi(a, vm, t)
        if par == 1:
            a('s_branch %s' % LX)
    a.label(LX)
    return sp
```

```python
import sys
sys.path.insert(0, 'gen')
from asmlib import *
from layout import *
import k_p1, k_g2, k_fft, tables
from k_p1 import S_WAVE, S_MT, S_U, S_KS, S_NONCE, S_T1, S_T2, S_T3, S_T4, S_SPIN, S_PG, S_PGO, S_P, SPIN_MAX
instr = '--instr' in sys.argv
out = [z for z in sys.argv[1:] if z.endswith('.s')]
out = out[0] if out else 'cdna_kernels/%s.s' % NAME
if '--dbg' in sys.argv:
    Stamps.DBG = [(128, [1, 2, 5, 8, 17, 19, 20, 21, 22, 24], 1), (16, [18, 19, 20, 26], 11)]
k_p1.MEGA = True
import asmlib
if '--wshigh' in sys.argv:
    asmlib.WS_SHIFT = 0xC000000
Stamps.LIGHT = '--light' in sys.argv
for z in sys.argv:
    if z.startswith('--mode='):
        k_p1.MODE = k_g2.MODE = z[7:]
S_Q, S_LB, S_PR = 91, 3, 100


def fft_hook(a, js):
    V = k_p1.V_CS
    if js == 15:
        a('v_lshlrev_b32 v%d, 6, v0' % (V + 4))
        a('buffer_load_dwordx4 %s, v%d, s[%d:%d], 0 offen' % (vr(V, 4), V + 4, S_PG, S_PG + 3))
        a('s_mul_i32 s%d, s%d, 3' % (S_Q, S_MT))
        a('s_add_u32 s%d, s%d, s%d' % (S_Q, S_Q, S_KS))
        a('s_sub_u32 s%d, s%d, 1' % (S_Q, S_Q))
        a('s_mul_i32 s%d, s%d, 48' % (S_T1, S_WAVE))
        a('s_add_u32 s%d, s%d, s%d' % (S_Q, S_Q, S_T1))
        c6 = 'c5' not in k_p1.MODE
        a('s_cmp_lt_u32 s%d, %d' % (S_WAVE, 6 if c6 else 5))
        a('s_cselect_b32 s%d, s%d, 999' % (S_Q, S_Q))
        a('s_lshl_b32 s%d, s%d, 4' % (S_T1, S_WAVE))
        a('s_add_u32 s%d, s%d, s%d' % (S_T1, S_T1, S_MT))
        a('s_add_u32 s%d, s%d, %d' % (S_T1, S_T1, 288 if c6 else 240))
        a('s_cmp_eq_u32 s%d, 0' % S_KS)
        a('s_cselect_b32 s%d, s%d, s%d' % (S_Q, S_T1, S_Q))
        a('s_and_b32 s%d, s%d, 1' % (S_PR, S_P))
        a('s_mul_i32 s%d, s%d, %d' % (S_PR, S_PR, 3 * k_p1.P1_STG))
        a('s_sub_u32 s%d, %d, s%d' % (S_LB, 3 * k_p1.P1_STG, S_PR))
        a('s_lshl_b32 s%d, s%d, 13' % (S_T1, S_WAVE))
        a('s_add_u32 s%d, s%d, s%d' % (S_PR, S_PR, S_T1))
        return
    Lrw = a.newlabel('aux_rw')
    Lgo = a.newlabel('aux_go')
    Lsk = a.newlabel('aux_sk')
    a('s_waitcnt vmcnt(1)')
    a('s_cmp_gt_u32 s%d, 288' % S_Q)
    a('s_cbranch_scc1 %s' % Lsk)
    a('s_mov_b32 s%d, 0' % S_SPIN)
    a.label(Lrw)
    for r in range(4):
        a('v_subrev_u32 v%d, s%d, v%d' % (V + r, S_NONCE, V + r))
        a('v_subrev_u32 v%d, 1, v%d' % (V + r, V + r))
    a('v_max3_u32 v%d, v%d, v%d, v%d' % (V, V, V + 1, V + 2))
    a('v_max_u32 v%d, v%d, v%d' % (V, V, V + 3))
    a('v_cmp_lt_u32 vcc, 15, v%d' % V)
    a('s_add_u32 s%d, s%d, 1' % (S_SPIN, S_SPIN))
    a('s_nop 3')
    a('s_cbranch_vccz %s' % Lgo)
    a('s_sleep 8')
    a('buffer_load_dwordx4 %s, v%d, s[%d:%d], 0 offen sc1' % (vr(V, 4), V + 4, S_PG, S_PG + 3))
    a('s_waitcnt vmcnt(0)')
    a('s_cmp_lt_u32 s%d, %d' % (S_SPIN, SPIN_MAX))
    a('s_cbranch_scc1 %s' % Lrw)
    a.label(Lgo)
    k_fft.rt_dma(a, S_Q, k_p1.S_RT, S_PR, S_T1, S_T2, V)
    a.label(Lsk)


def g2_hook(a, js):
    V = k_p1.V_CS
    if js == 15:
        a('v_and_b32 v%d, 3, v0' % (V + 1))
        a('v_lshlrev_b32 v%d, 2, v%d' % (V + 2, V + 1))
        a('s_and_b32 s%d, s%d, 0xffffffc0' % (S_T1, S_PGO))
        a('buffer_load_dword v%d, v%d, s[%d:%d], s%d offen' % (V, V + 2, S_PG, S_PG + 3, S_T1))
        return
    Lre = a.newlabel('g2h_re')
    Lok = a.newlabel('g2h_ok')
    a('s_mov_b32 s%d, 0' % S_SPIN)
    a('s_waitcnt vmcnt(1)')
    a.label(Lre)
    a('v_subrev_u32 v%d, s%d, v%d' % (V, S_NONCE, V))
    a('v_cmp_gt_u32 vcc, 16, v%d' % V)
    a('v_cndmask_b32 v%d, 0, v%d, vcc' % (V, V))
    a('v_lshl_add_u32 v%d, v%d, 2, v%d' % (V, V, V + 1))
    a('v_min_u32_dpp v%d, v%d, v%d quad_perm:[1,0,3,2] row_mask:0xf bank_mask:0xf' % (V, V, V))
    a('v_min_u32_dpp v%d, v%d, v%d quad_perm:[2,3,0,1] row_mask:0xf bank_mask:0xf' % (V, V, V))
    a('v_readfirstlane_b32 s3, v%d' % V)
    a('s_add_u32 s%d, s%d, 1' % (S_SPIN, S_SPIN))
    a('s_cmp_ge_u32 s3, 6')
    a('s_cbranch_scc1 %s' % Lok)
    a('s_sleep 4')
    a('s_and_b32 s%d, s%d, 0xffffffc0' % (S_T1, S_PGO))
    a('buffer_load_dword v%d, v%d, s[%d:%d], s%d offen sc1' % (V, V + 2, S_PG, S_PG + 3, S_T1))
    a('s_waitcnt vmcnt(0)')
    a('s_cmp_lt_u32 s%d, %d' % (S_SPIN, SPIN_MAX))
    a('s_cbranch_scc1 %s' % Lre)
    a.label(Lok)
    a('s_mul_i32 s%d, s%d, 72' % (S_T2, S_MT))
    a('s_mul_i32 s%d, s%d, 18' % (S_T3, S_KS))
    a('s_add_u32 s%d, s%d, s%d' % (S_T2, S_T2, S_T3))
    a('s_lshl_b32 s%d, s%d, 14' % (S_T2, S_T2))
    a('s_mul_i32 s%d, s%d, 6144' % (S_T1, S_WAVE))
    a('s_add_u32 s%d, s%d, s%d' % (S_T2, S_T2, S_T1))
    a('v_lshlrev_b32 v%d, 4, v0' % V)
    for hf in range(2):
        a('s_add_u32 m0, s%d, %d' % (S_T1, 3072 * hf))
        a('s_add_u32 s%d, s%d, %d' % (S_T3, S_T2, 3072 * hf))
        for i in range(3):
            a('buffer_load_dwordx4 v%d, s[%d:%d], s%d offen offset:%d lds' % (V, k_p1.S_H, k_p1.S_H + 3, S_T3, 1024 * i))


k_p1.HOOK['fft'] = fft_hook
k_p1.HOOK['g2'] = g2_hook
a = Asm()
a('s_cmp_ge_u32 s2, 256')
a('s_cbranch_scc1 g2_exit')
if 'ticket' in k_p1.MODE:
    a('s_load_dwordx2 s[4:5], s[0:1], %d' % KA_DBG)
    a('s_getreg_b32 s3, hwreg(HW_REG_XCC_ID)')
    a('s_and_b32 s3, s3, 7')
    a('v_readfirstlane_b32 s6, v0')
    a('s_cmp_ge_u32 s6, 64')
    a('s_cbranch_scc1 tk_wait')
    a('s_waitcnt lgkmcnt(0)')
    srd(a, 8, 4, 5, 256)
    a('s_mov_b32 s7, 0')
    a.label('tk_try')
    a('s_lshl_b32 s12, s3, 4')
    a('s_add_u32 s12, s12, 64')
    a('v_mov_b32 v2, s12')
    a('v_mov_b32 v1, 1')
    a('s_mov_b64 exec, 1')
    a('buffer_atomic_add v1, v2, s[8:11], 0 offen sc0')
    a('s_waitcnt vmcnt(0)')
    a('s_mov_b64 exec, -1')
    a('v_readfirstlane_b32 s12, v1')
    a('s_cmp_lt_u32 s12, 32')
    a('s_cbranch_scc1 tk_got')
    a('s_add_u32 s3, s3, 1')
    a('s_and_b32 s3, s3, 7')
    a('s_add_u32 s7, s7, 1')
    a('s_cmp_lt_u32 s7, 8')
    a('s_cbranch_scc1 tk_try')
    a.label('tk_got')
    a('s_lshl_b32 s12, s12, 3')
    a('s_or_b32 s12, s12, s3')
    a('v_mov_b32 v1, s12')
    a('v_mov_b32 v2, 0')
    a('ds_write_b32 v2, v1')
    a('s_waitcnt lgkmcnt(0)')
    a.label('tk_wait')
    a('s_barrier')
    a('v_mov_b32 v2, 0')
    a('ds_read_b32 v1, v2')
    a('s_waitcnt lgkmcnt(0)')
    a('v_readfirstlane_b32 s2, v1')
    a('s_and_b32 s2, s2, 255')
    a('s_barrier')
if 'perm' in k_p1.MODE:
    a('s_lshr_b32 s3, s2, 5')
    a('s_and_b32 s2, s2, 31')
    a('s_lshl_b32 s2, s2, 3')
    a('s_or_b32 s2, s2, s3')
STF = 'sc1 nt' if 'stnt' in k_p1.MODE else 'sc0 sc1' if 'st01' in k_p1.MODE else 'sc1'
sp = k_p1.p1_body(a, st_flags=STF, instr=instr, mega=True)
a('s_waitcnt vmcnt(2) lgkmcnt(0)')
if instr:
    a('v_mov_b32 v255, v21')
a('s_cmp_eq_u32 s%d, 0' % S_U)
a('s_cbranch_scc1 aux_part')
a('s_load_dwordx4 s[60:63], s[0:1], %d' % KA_W2)
a('s_load_dwordx2 s[6:7], s[0:1], %d' % KA_OUT)
a('s_sub_u32 s%d, s%d, 1' % (S_U, S_U))
a('s_mov_b32 s78, s%d' % S_P)
a('s_waitcnt lgkmcnt(0)')


def c_start(a):
    pass


def c_start2(a):
    pass


def pub_final(a):
    L = a.newlabel('mg_pub')
    a('s_cmp_lg_u32 s%d, 0' % S_WAVE)
    a('s_cbranch_scc1 %s' % L)
    a('s_add_u32 s%d, s%d, s78' % (S_T1, S_NONCE))
    a('v_mov_b32 v12, s%d' % S_T1)
    a('v_mov_b32 v13, 0')
    a('buffer_store_dword v12, v13, s[%d:%d], s%d offen sc1' % (S_PG, S_PG + 3, S_PGO))
    a.label(L)


k_g2.g2_body(a, instr=instr, hooks={'mega': 1, 'c_start': c_start, 'c_start2': c_start2, 'pub': pub_final, 'nostampinit': 1})
a.label('aux_part')
sp2 = Stamps(a, 255, 70, 72, instr)
sp2.stamp()
sp2.rstamp(56)
srd(a, 16, 66, 67, 289 * 8192, WS_WT)
srd(a, 20, 66, 67, 32 * ZT_BLK, WS_ZT)
srd(a, 28, 66, 67, 2048, WS_FLAGZ)
a('s_barrier')
a('s_cmp_gt_u32 s%d, 288' % S_Q)
a('s_cbranch_scc0 aux_work')
a('s_waitcnt vmcnt(0)')
a('s_barrier')
k_p1.publish(a, 0)
a('s_branch aux_done')
a.label('aux_work')
sp2.stamp()


def mid(vm):
    a('s_waitcnt vmcnt(0)')
    a('s_barrier')
    L = a.newlabel('aux_pub')
    a('s_cmp_lg_u32 s%d, 0' % S_WAVE)
    a('s_cbranch_scc1 %s' % L)
    a('s_add_u32 s%d, s%d, s%d' % (S_T1, S_NONCE, S_P))
    a('v_mov_b32 v250, s%d' % S_T1)
    a('v_mov_b32 v251, 0')
    a('buffer_store_dword v250, v251, s[%d:%d], s%d offen sc1' % (S_PG, S_PG + 3, S_PGO))
    a.label(L)


def post_w(vm):
    a('s_getpc_b64 s[94:95]')
    a('s_add_u32 s94, s94, tab_Tinv@rel32@lo+4')
    a('s_addc_u32 s95, s95, tab_Tinv@rel32@hi+12')
    a('s_mul_i32 s%d, s%d, 1821' % (S_T2, S_Q))
    a('s_lshr_b32 s%d, s%d, 16' % (S_T2, S_T2))
    a('s_add_u32 s%d, s%d, 1' % (S_T2, S_T2))
    a('s_mul_i32 s%d, s%d, %d' % (S_T2, S_T2, 45 * 16384))
    a('s_lshl_b32 s%d, s%d, 14' % (S_T3, S_Q))
    a('s_add_u32 s%d, s%d, s%d' % (S_T2, S_T2, S_T3))
    a('s_sub_u32 s%d, s%d, %d' % (S_T3, S_T3, 144 * 16384))
    a('v_lshlrev_b32 v4, 8, v0')
    a('s_cmp_lt_u32 s%d, 144' % S_Q)
    a('s_cselect_b32 s8, s92, s94')
    a('s_cselect_b32 s9, s93, s95')
    a('s_cselect_b32 s%d, s%d, s%d' % (S_T2, S_T2, S_T3))
    a('s_mov_b32 s%d, %d' % (S_T3, D * D * 2))
    a('s_cselect_b32 s10, %d, s%d' % (F * D * 2, S_T3))
    a('s_and_b32 s9, s9, 0xffff')
    a('s_mov_b32 s11, 0x20000')
    a('buffer_load_dword v254, v4, s[8:11], s%d offen' % S_T2)
    a('buffer_load_dword v254, v4, s[8:11], s%d offen offset:128' % S_T2)
    vm.add('t', 2)


k_fft.fft_body(a, S_Q, 8, 12, 16, 20, 32, st_flags='sc1', lds=True, mid=mid, sp=sp2 if instr else None, s_lbase=S_LB, s_priv=S_PR, post_w=post_w if 'pf3' in k_p1.MODE else None)
sp2.stamp()
a('s_waitcnt vmcnt(0)')
a('s_lshl_b32 s24, s%d, 2' % S_Q)
a('v_mov_b32 v2, s%d' % S_NONCE)
a('v_mov_b32 v3, 0')
a('buffer_store_dword v2, v3, s[28:31], s24 offen sc1')
a.label('aux_done')
sp2.stamp()
sp2.rstamp(57)
if instr:
    a('s_lshl_b32 s71, s2, 3')
    a('s_add_u32 s71, s71, s%d' % S_WAVE)
    sp2.dump(66, 67, 8, 71, 1)
a.label('g2_exit')
a('s_endpgm')
a.label('code_end')
kn = NAME + '_kernel'
hdr = '''; generated by gen/gen_mega.py
; @launch %sgrid=(256,1,1) block=(512,1,1) lds=163840
.amdgcn_target "amdgcn-amd-amdhsa--gfx950"
''' % ('kernel=%s ' % kn if '--list' in sys.argv else '')
open(out, 'w').write(hdr + kernel_text(kn, a).replace('CODE_BYTES', 'code_end-%s' % kn) + tables.tab_T() + tables.tab_Tinv() + tables.tab_F(True))
```

```python
import struct
from asmlib import *
from layout import *
MODE = ''
FH = 4

NH = 18
NC = 5
CSLOT = [2, 3, 0, 2, 3]
WSL = [73728, 98304, 122880, 49152]
XSL = [0, 16384, 32768, 147456]
XCHB = WSL[1]
NST = NH + NC
SLOT = 40960
NSLOT = 4
G2_LDS = 163840
SPIN_MAX = 20000
MF = 'v_mfma_f32_16x16x32_bf16'

S_H, S_W2, S_ZT, S_TI, S_PT, S_XI, S_OUT, S_B2, S_FX = 8, 12, 16, 20, 24, 28, 32, 80, 88
S_WAVE, S_MT, S_NT, S_KS, S_WM, S_WN = 36, 39, 40, 41, 37, 38
S_T1, S_T2, S_T3, S_T4, S_I, S_SLOT, S_OA, S_OB = 52, 53, 54, 56, 43, 44, 45, 46
S_LA, S_LB, S_NONCE, S_SPIN, S_GRP, S_LC = 47, 48, 57, 59, 49, 50
S_DBG = 84


def f32h(x):
    return '0x%08x' % struct.unpack('<I', struct.pack('<f', x))[0]


def decode_ids(a, s_mt, s_ks, s_u, t1, t2):
    a('s_and_b32 s%d, s2, 7' % t1)
    a('s_lshr_b32 s%d, s2, 3' % t2)
    a('s_lshr_b32 s%d, s%d, 1' % (s_ks, t1))
    a('s_and_b32 s%d, s%d, 1' % (t1, t1))
    a('s_lshl_b32 s%d, s%d, 3' % (t1, t1))
    a('s_lshr_b32 s%d, s%d, 2' % (s_mt, t2))
    a('s_add_u32 s%d, s%d, s%d' % (s_mt, s_mt, t1))
    a('s_and_b32 s%d, s%d, 3' % (s_u, t2))


def g2_setup(a):
    a('s_memrealtime s[76:77]')
    a('s_load_dwordx2 s[4:5], s[0:1], %d' % KA_X)
    a('s_load_dwordx4 s[60:63], s[0:1], %d' % KA_W2)
    a('s_load_dwordx4 s[64:67], s[0:1], %d' % KA_DBG)
    a('s_load_dwordx2 s[6:7], s[0:1], %d' % KA_OUT)
    a('v_lshrrev_b32 v1, 6, v0')
    a('v_and_b32 v0, 63, v0')
    decode_ids(a, S_MT, S_KS, S_NT, S_T1, S_T2)
    a('v_readfirstlane_b32 s%d, v1' % S_WAVE)
    a('s_waitcnt lgkmcnt(0)')
    srd(a, S_DBG, 64, 65, 256)
    Ln = a.newlabel('g2_nn')
    a('s_or_b32 s%d, s2, s%d' % (S_T1, S_WAVE))
    a('s_cmp_lg_u32 s%d, 0' % S_T1)
    a('s_cbranch_scc1 %s' % Ln)
    a('s_or_b32 s%d, s76, 1' % S_T1)
    a('v_mov_b32 v2, s%d' % S_T1)
    a('v_mov_b32 v3, 0')
    a('buffer_store_dword v2, v3, s[%d:%d], 0 offen sc1' % (S_DBG, S_DBG + 3))
    a.label(Ln)
    a('s_cmp_lt_u32 s%d, 1' % S_NT)
    a('s_cbranch_scc1 g2_exit')
    a('s_sub_u32 s%d, s%d, 1' % (S_NT, S_NT))
    a('s_mov_b32 s%d, 0' % S_NONCE)


def get_nonce(a):
    Lw = a.newlabel('g2_nw')
    Lg = a.newlabel('g2_ng')
    a('s_cmp_lg_u32 s%d, 0' % S_NONCE)
    a('s_cbranch_scc1 %s' % Lg)
    a('s_mov_b32 s%d, 0' % S_SPIN)
    a('v_mov_b32 v13, 0')
    a.label(Lw)
    a('buffer_load_dword v12, v13, s[%d:%d], 0 offen sc1' % (S_DBG, S_DBG + 3))
    a('s_waitcnt vmcnt(0)')
    a('v_readfirstlane_b32 s%d, v12' % S_NONCE)
    a('s_add_u32 s%d, s%d, 1' % (S_SPIN, S_SPIN))
    a('s_cmp_lg_u32 s%d, 0' % S_NONCE)
    a('s_cbranch_scc1 %s' % Lg)
    a('s_sleep 4')
    a('s_cmp_lt_u32 s%d, %d' % (S_SPIN, SPIN_MAX))
    a('s_cbranch_scc1 %s' % Lw)
    a.label(Lg)


def g2_body(a, instr=False, hooks=None):
    hooks = hooks or {}
    sp = Stamps(a, 255, 70, 72, instr)
    a('s_getpc_b64 s[68:69]')
    a('s_add_u32 s68, s68, tab_Tinv@rel32@lo+4')
    a('s_addc_u32 s69, s69, tab_Tinv@rel32@hi+12')
    srd(a, S_H, 66, 67, S * F * 2, WS_H)
    srd(a, S_W2, 60, 61, F * D * 2)
    srd(a, S_ZT, 66, 67, 32 * ZT_BLK, WS_ZT)
    srd(a, S_TI, 68, 69, D * D * 2)
    srd(a, S_PT, 66, 67, 48 * 16 * 24576, WS_PART)
    srd(a, S_XI, 4, 5, S * D * 2)
    srd(a, S_OUT, 6, 7, S * D * 2)
    srd(a, S_B2, 62, 63, D * 2)
    srd(a, S_FX, 66, 67, 256 * 64, WS_FLAGX)
    a('s_mul_i32 s%d, s%d, 3' % (S_GRP, S_MT))
    a('s_add_u32 s%d, s%d, s%d' % (S_GRP, S_GRP, S_NT))
    Lcomp = a.newlabel('g2_comp')
    a('s_cmp_lt_u32 s%d, 4' % S_WAVE)
    a('s_cbranch_scc1 %s' % Lcomp)

    a('s_setprio %d' % (3 if 'lpr' in MODE else 0))
    a('s_sub_u32 s%d, s%d, 4' % (S_T4, S_WAVE))
    a('s_mul_i32 s%d, s%d, 72' % (S_T2, S_MT))
    a('s_mul_i32 s%d, s%d, %d' % (S_T3, S_KS, NH))
    a('s_add_u32 s%d, s%d, s%d' % (S_T2, S_T2, S_T3))
    a('s_lshl_b32 s%d, s%d, 14' % (S_T2, S_T2))
    a('s_lshl_b32 s%d, s%d, 12' % (S_T1, S_T4))
    a('s_add_u32 s%d, s%d, s%d' % (S_T2, S_T2, S_T1))
    a('v_lshl_add_u32 v2, v0, 4, s%d' % S_T2)
    a('v_lshrrev_b32 v12, 3, v0')
    a('v_mul_u32_u24 v12, %d, v12' % (D * 2))
    a('v_bfe_u32 v13, v0, 4, 1')
    a('v_lshlrev_b32 v13, 1, v13')
    a('v_and_b32 v14, 7, v0')
    a('v_xor_b32 v13, v13, v14')
    a('v_lshl_add_u32 v14, v13, 4, v12')
    a('v_xor_b32 v13, 4, v13')
    a('v_lshl_add_u32 v15, v13, 4, v12')
    a('s_mul_i32 s%d, s%d, 6' % (S_T1, S_T4))
    a('s_mul_i32 s%d, s%d, 384' % (S_LA, S_NT))
    for i in range(6):
        a('s_add_u32 s%d, s%d, %d' % (S_T2, S_T1, i))
        a('s_and_b32 s%d, s%d, 7' % (S_T3, S_T2))
        a('s_mul_i32 s%d, s%d, %d' % (S_T3, S_T3, 8 * D * 2))
        a('s_lshr_b32 s%d, s%d, 3' % (S_T2, S_T2))
        a('s_lshl_b32 s%d, s%d, 7' % (S_T2, S_T2))
        a('s_add_u32 s%d, s%d, s%d' % (S_T3, S_T3, S_T2))
        a('s_add_u32 s%d, s%d, s%d' % (S_T3, S_T3, S_LA))
        a('v_add_u32 v%d, s%d, v%d' % (20 + i, S_T3, 14 + (i & 1)))
    a('s_lshl_b32 s%d, s%d, 1' % (S_T2, S_MT))
    a('s_and_b32 s%d, s%d, 1' % (S_T3, S_KS))
    a('s_add_u32 s%d, s%d, s%d' % (S_T2, S_T2, S_T3))
    a('s_mul_i32 s%d, s%d, %d' % (S_T2, S_T2, ZT_BLK))
    a('s_lshl_b32 s%d, s%d, 11' % (S_I, S_T4))
    a('s_add_u32 s%d, s%d, s%d' % (S_T2, S_T2, S_I))
    a('v_lshl_add_u32 v26, v0, 4, s%d' % S_T2)
    a('s_lshl_b32 s%d, s%d, 1' % (S_T2, S_NT))
    a('s_lshr_b32 s%d, s%d, 1' % (S_T3, S_KS))
    a('s_add_u32 s%d, s%d, s%d' % (S_T2, S_T2, S_T3))
    a('s_mul_i32 s%d, s%d, %d' % (S_T2, S_T2, 576 * 192))
    a('s_mul_i32 s%d, s%d, 3072' % (S_LC, S_T4))
    a('s_add_u32 s%d, s%d, s%d' % (S_T2, S_T2, S_LC))
    a('v_lshl_add_u32 v27, v0, 4, s%d' % S_T2)
    a('s_lshl_b32 s%d, s%d, 12' % (S_LA, S_T4))
    a('s_mul_i32 s%d, s%d, 6144' % (S_LB, S_T4))
    a('s_mul_i32 s%d, s%d, %d' % (S_OB, S_KS, NH * 64 * D * 2))
    vm = Cnt(a, 'vmcnt', 63)

    def issue(st):
        if st < NH:
            a('s_mov_b32 s%d, %d' % (S_T1, 16384 * st))
            a('s_add_u32 s%d, s%d, %d' % (S_T2, S_OB, 64 * D * 2 * st))
            for i in range(6):
                a('s_add_u32 m0, s%d, %d' % (S_LB, WSL[st % 4] + 1024 * i))
                a('buffer_load_dwordx4 v%d, s[%d:%d], s%d offen lds' % (20 + i, S_W2, S_W2 + 3, S_T2))
                vm.add(st)
            a('s_add_u32 m0, s%d, %d' % (S_LA, XSL[st % 4]))
            for i in range(4):
                a('buffer_load_dwordx4 v2, s[%d:%d], s%d offen offset:%d lds' % (S_H, S_H + 3, S_T1, 1024 * i))
                vm.add(st)
        else:
            c = st - NH
            for hv in range(2 if c < 4 else 1):
                a('s_mov_b32 s%d, %d' % (S_T2, 12288 * (2 * c + hv)))
                a('s_add_u32 m0, s%d, %d' % (S_LC, WSL[CSLOT[c]] + 12288 * hv))
                for i in range(3):
                    a('buffer_load_dwordx4 v27, s[%d:%d], s%d offen offset:%d lds' % (S_TI, S_TI + 3, S_T2, 1024 * i))
                    vm.add(st)
            if c >= 3:
                issue_z(c)

    def issue_z(c):
        for hv in range(2 if c < 4 else 1):
            a('s_mov_b32 s%d, %d' % (S_T1, 8192 * (2 * c + hv)))
            a('s_add_u32 m0, s%d, %d' % (S_I, XSL[CSLOT[c]] + 8192 * hv))
            for i in range(2):
                a('buffer_load_dwordx4 v26, s[%d:%d], s%d offen offset:%d lds' % (S_ZT, S_ZT + 3, S_T1, 1024 * i))
                vm.add(NH + c)

    mega = 'mega' in hooks
    S_RDY = S_SLOT
    S_PG, S_FZ = 96, 92

    def poll_issue(v, z, fl='sc1'):
        if z:
            a('buffer_load_dwordx4 v[40:43], v31, s[%d:%d], 0 offen %s' % (S_FZ, S_FZ + 3, fl))
            a('buffer_load_dword v44, v38, s[%d:%d], 0 offen %s' % (S_FZ, S_FZ + 3, fl))
        else:
            a('buffer_load_dword v%d, v30, s[%d:%d], s%d offen %s' % (v, S_PG, S_PG + 3, S_OA, fl))

    def poll_eval(v):
        a('v_subrev_u32 v%d, s%d, v%d' % (v, S_NONCE, v))
        a('v_cmp_gt_u32 vcc, 16, v%d' % v)
        a('v_cndmask_b32 v%d, 0, v%d, vcc' % (v, v))
        a('v_lshl_add_u32 v%d, v%d, 2, v29' % (v, v))
        a('v_min_u32_dpp v%d, v%d, v%d quad_perm:[1,0,3,2] row_mask:0xf bank_mask:0xf' % (v, v, v))
        a('v_min_u32_dpp v%d, v%d, v%d quad_perm:[2,3,0,1] row_mask:0xf bank_mask:0xf' % (v, v, v))
        a('v_readfirstlane_b32 s%d, v%d' % (S_T1, v))
        a('s_max_u32 s%d, s%d, s%d' % (S_RDY, S_RDY, S_T1))

    def need_h(st):
        Lok = a.newlabel('g2_hok')
        Lre = a.newlabel('g2_hre')
        a('s_add_u32 s%d, s%d, %d' % (S_T3, S_T4, st))
        a('s_cmp_lt_u32 s%d, s%d' % (S_T3, S_RDY))
        a('s_cbranch_scc1 %s' % Lok)
        a('s_mov_b32 s%d, 0' % S_SPIN)
        a.label(Lre)
        poll_issue(36, False)
        a('s_waitcnt vmcnt(0)')
        poll_eval(36)
        a('s_add_u32 s%d, s%d, 1' % (S_SPIN, S_SPIN))
        a('s_cmp_lt_u32 s%d, s%d' % (S_T3, S_RDY))
        a('s_cbranch_scc1 %s' % Lok)
        a('s_sleep 2')
        a('s_cmp_lt_u32 s%d, %d' % (S_SPIN, SPIN_MAX))
        a('s_cbranch_scc1 %s' % Lre)
        a.label(Lok)

    def need_z(v):
        Lok = a.newlabel('g2_zok')
        Lre = a.newlabel('g2_zre')
        a('s_mov_b32 s%d, 0' % S_SPIN)
        a.label(Lre)
        for r in range(40, 45):
            a('v_xor_b32 v%d, s%d, v%d' % (r, S_NONCE, r))
        a('v_or3_b32 v40, v40, v41, v42')
        a('v_or3_b32 v40, v40, v43, v44')
        a('v_cmp_ne_u32 vcc, 0, v40')
        a('s_add_u32 s%d, s%d, 1' % (S_SPIN, S_SPIN))
        a('s_nop 3')
        a('s_cbranch_vccz %s' % Lok)
        a('s_sleep 8')
        poll_issue(v, True)
        a('s_waitcnt vmcnt(0)')
        a('s_cmp_lt_u32 s%d, %d' % (S_SPIN, SPIN_MAX))
        a('s_cbranch_scc1 %s' % Lre)
        a.label(Lok)

    if mega:
        srd(a, S_FZ, 66, 67, 2048, WS_FLAGZ)
        a('v_min_u32 v38, 32, v0')
        a('v_lshlrev_b32 v38, 2, v38')
        a('v_add_u32 v38, 1024, v38')
        a('v_and_b32 v29, 3, v0')
        a('v_lshlrev_b32 v30, 2, v29')
        a('v_lshlrev_b32 v31, 4, v0')
        a('s_lshl_b32 s%d, s%d, 2' % (S_OA, S_MT))
        a('s_add_u32 s%d, s%d, s%d' % (S_OA, S_OA, S_KS))
        a('s_lshl_b32 s%d, s%d, 6' % (S_OA, S_OA))
        a('s_lshl_b32 s%d, s%d, 2' % (S_T1, S_MT))
        a('s_add_u32 s%d, s%d, s%d' % (S_T1, S_T1, S_T4))
        a('s_mul_i32 s%d, s%d, %d' % (S_T2, S_T1, D * 2))
        a('s_mul_i32 s%d, s%d, 384' % (S_T3, S_NT))
        a('s_add_u32 s%d, s%d, s%d' % (S_T2, S_T2, S_T3))
        a('s_add_u32 s%d, s%d, s%d' % (S_T2, S_T2, S_OB))
        a('s_add_u32 s%d, s%d, %d' % (S_T2, S_T2, 5 * 64 * D * 2))
        a('s_add_u32 s100, s60, s%d' % S_T2)
        a('s_addc_u32 s101, s61, 0')
        a('s_min_u32 s%d, s%d, 60' % (S_T1, S_T1))
        a('s_mul_i32 s%d, s%d, %d' % (S_T1, S_T1, 14 * 128))
        a('s_lshl_b32 s%d, s%d, 1' % (S_T2, S_NT))
        a('s_lshr_b32 s%d, s%d, 1' % (S_T3, S_KS))
        a('s_add_u32 s%d, s%d, s%d' % (S_T2, S_T2, S_T3))
        a('s_mul_i32 s%d, s%d, %d' % (S_T2, S_T2, 576 * 192))
        a('s_add_u32 s%d, s%d, s%d' % (S_T2, S_T2, S_T1))
        a('s_add_u32 s74, s68, s%d' % S_T2)
        a('s_addc_u32 s75, s69, 0')
        a('s_cmp_eq_u32 s%d, 0' % S_KS)
        a('s_cselect_b32 s%d, 3, 2' % S_T4)
        a('s_mov_b32 s%d, s3' % S_RDY)
        sp.rstamp(56)

    POLLS = (5, 12)
    TA = 5

    def issue2(st):
        if mega:
            if st < NH:
                need_h(st)
        issue(st)
        if mega and st in POLLS:
            poll_issue(32, False)
            vm.add(st)
        if mega and 'tg' in MODE:
            for ts in ([5, 6, 7, 8] if st == 3 else [st + TA]):
              if 5 <= ts < NH:
                for k in range(6):
                    a('s_load_dword s%d, s[100:101], 0x%x' % (58, 64 * D * 2 * (ts - 5) + 64 * k))
              elif NH <= ts < NH + 5:
                for k in range(6):
                    a('s_load_dword s%d, s[74:75], 0x%x' % (58, 64 * (6 * (ts - NH) + k)))
        if mega and st == NH - 1:
            poll_issue(37, True, '')
            vm.add(st, 2)

    PG = 144

    def pl_issue():
        for z in range(3):
            a('s_add_u32 s%d, s%d, %d' % (S_T2, S_KS, z + 1))
            a('s_and_b32 s%d, s%d, 3' % (S_T2, S_T2))
            a('s_lshl_b32 s%d, s%d, 14' % (S_T2, S_T2))
            a('s_add_u32 s%d, s%d, s%d' % (S_T2, S_T2, S_LA))
            for gq in range(4):
                a('buffer_load_dwordx4 %s, v47, s[%d:%d], s%d offen offset:%d sc1' % (
                    vr(PG + 16 * z + 4 * gq, 4), S_PT, S_PT + 3, S_T2, 1024 * gq))

    M = 48
    PV, BV, BF, T, E = 72, 108, 116, 128, 132
    for i in range(NH + 4):
        if i == NH + 3:
            vm.wait(i, i + 1)
        elif i == 1:
            a('s_waitcnt vmcnt(10)')
        else:
            vm.wait(i)
        if mega and i == NH - 1:
            Lz = a.newlabel('g2_zs')
            a('s_cmp_lg_u32 s%d, 4' % S_WAVE)
            a('s_cbranch_scc1 %s' % Lz)
            sp.rstamp(58)
            need_z(37)
            sp.rstamp(59)
            a.label(Lz)
        a('s_barrier')
        sp.stamp()
        if mega and i in POLLS:
            poll_eval(32)
        if i == NH - 1:
            for c in range(3):
                issue_z(c)
        if i <= NH - 1:
            issue2(i - 1 + NSLOT)
        elif i in (NH + 1, NH + 2):
            issue2(i + 2)
        if i == NH + 1:
            a('s_sub_u32 s%d, s%d, 4' % (S_T4, S_WAVE))
            a('s_mul_i32 s%d, s%d, 6144' % (S_T1, S_T4))
            a('s_add_u32 s%d, s%d, %d' % (S_T1, S_T1, XCHB))
            a('v_lshl_add_u32 v45, v0, 4, s%d' % S_T1)
            for k in range(6):
                a('ds_read_b128 %s, v45 offset:%d' % (vr(M + 4 * k, 4), 1024 * k))
            a('s_lshl_b32 s%d, s%d, 1' % (S_T2, S_NT))
            a('s_lshr_b32 s%d, s%d, 1' % (S_T3, S_KS))
            a('s_add_u32 s%d, s%d, s%d' % (S_T2, S_T2, S_T3))
            a('s_mul_i32 s%d, s%d, 192' % (S_T2, S_T2))
            a('s_lshr_b32 s%d, s%d, 1' % (S_T3, S_T4))
            a('s_mul_i32 s%d, s%d, 96' % (S_T3, S_T3))
            a('s_add_u32 s%d, s%d, s%d' % (S_T2, S_T2, S_T3))
            a('v_lshrrev_b32 v46, 4, v0')
            a('v_lshl_add_u32 v46, v46, 3, s%d' % S_T2)
            for n3 in range(3):
                a('buffer_load_dwordx2 %s, v46, s[%d:%d], 0 offen offset:%d' % (vr(BV + 2 * n3, 2), S_B2, S_B2 + 3, 32 * n3))
                vm.add('b2')
            a('s_lshl_b32 s%d, s%d, 2' % (S_T1, S_GRP))
            a('s_add_u32 s%d, s%d, s%d' % (S_T1, S_T1, S_KS))
            a('s_lshl_b32 s%d, s%d, 16' % (S_T1, S_T1))
            a('s_lshl_b32 s%d, s%d, 12' % (S_T2, S_T4))
            a('s_add_u32 s%d, s%d, s%d' % (S_LA, S_T1, S_T2))
            a('v_lshlrev_b32 v47, 4, v0')
        if i == NH + 3:
            pl_issue()
            vm.add('pl', 12)
    for n3 in range(3):
        for d in range(2):
            a('v_lshlrev_b32 v%d, 16, v%d' % (BF + 4 * n3 + 2 * d, BV + 2 * n3 + d))
            a('v_and_b32 v%d, 0xffff0000, v%d' % (BF + 4 * n3 + 2 * d + 1, BV + 2 * n3 + d))
    a('s_waitcnt lgkmcnt(0)')
    for k in range(24):
        a('v_add_f32 v%d, v%d, v%d' % (M + k, M + k, BF + (k % 12)))
    Lok = a.newlabel('g2_fok')
    Lre = a.newlabel('g2_fre')
    a('s_mov_b32 s%d, 0' % S_SPIN)
    a.label(Lre)
    a('s_waitcnt vmcnt(0)')
    a('v_xor_b32 v13, s%d, v%d' % (S_NONCE, PG + 3))
    for k in range(1, 12):
        a('v_xor_b32 v14, s%d, v%d' % (S_NONCE, PG + 4 * k + 3))
        a('v_or_b32 v13, v13, v14')
    a('v_cmp_ne_u32 vcc, 0, v13')
    a('s_add_u32 s%d, s%d, 1' % (S_SPIN, S_SPIN))
    a('s_nop 3')
    a('s_cbranch_vccz %s' % Lok)
    a('s_sleep 4')
    pl_issue()
    a('s_cmp_lt_u32 s%d, %d' % (S_SPIN, SPIN_MAX))
    a('s_cbranch_scc1 %s' % Lre)
    a.label(Lok)
    sp.stamp()
    nl2e = f32h(-1.4426950408889634)
    for n3 in range(3):
        for rt2 in range(2):
            m = [M + 12 * rt2 + 4 * n3 + r for r in range(4)]
            e = [E + r for r in range(4)]
            for z in range(3):
                for d in range(2):
                    k = 2 * (3 * rt2 + n3) + d
                    p = PG + 16 * z + 4 * (k // 3) + k % 3
                    a('v_lshlrev_b32 v%d, 16, v%d' % (e[2 * d], p))
                    a('v_and_b32 v%d, 0xffff0000, v%d' % (e[2 * d + 1], p))
                for r in range(4):
                    a('v_add_f32 v%d, v%d, v%d' % (m[r], m[r], e[r]))
            for d in range(2):
                a('v_cvt_pk_bf16_f32 v%d, v%d, v%d' % (T + d, m[2 * d], m[2 * d + 1]))
            for d in range(2):
                a('v_lshlrev_b32 v%d, 16, v%d' % (m[2 * d], T + d))
                a('v_and_b32 v%d, 0xffff0000, v%d' % (m[2 * d + 1], T + d))
            for r in range(4):
                a('v_mul_f32 v%d, %s, v%d' % (e[r], nl2e, m[r]))
            for r in range(4):
                a('v_exp_f32 v%d, v%d' % (e[r], e[r]))
            for r in range(4):
                a('v_add_f32 v%d, 1.0, v%d' % (e[r], e[r]))
            for r in range(4):
                a('v_rcp_f32 v%d, v%d' % (e[r], e[r]))
            for r in range(4):
                a('v_mul_f32 v%d, v%d, v%d' % (m[r], m[r], e[r]))
            for d in range(2):
                a('v_cvt_pk_bf16_f32 v%d, v%d, v%d' % (136 + 2 * rt2 + d, m[2 * d], m[2 * d + 1]))
        a('ds_write_b128 v45, v[136:139] offset:%d' % (1024 * n3))
    a('s_waitcnt lgkmcnt(0)')
    sp.stamp()
    a('s_barrier')
    if instr:
        a('s_lshl_b32 s71, s2, 3')
        a('s_add_u32 s71, s71, s%d' % S_WAVE)
        sp.dump(66, 67, S_H, 71, 1)
    a('s_endpgm')

    a.label(Lcomp)
    if 'cpr' in MODE:
        a('s_setprio 2')
    if instr and 'nostampinit' not in hooks:
        sp.init()
        a('v_writelane_b32 v255, s76, 62')
    sp.stamp()
    a('s_and_b32 s%d, s%d, 1' % (S_WM, S_WAVE))
    a('s_lshr_b32 s%d, s%d, 1' % (S_WN, S_WAVE))
    VI, VQ = 30, 31
    a('v_and_b32 v%d, 15, v0' % VI)
    a('v_lshrrev_b32 v%d, 4, v0' % VQ)
    a('v_lshrrev_b32 v12, 2, v%d' % VI)
    a('v_and_b32 v12, 2, v12')
    a('v_xor_b32 v12, v12, v%d' % VQ)
    a('s_lshl_b32 s%d, s%d, 12' % (S_T1, S_WM))
    a('v_lshlrev_b32 v13, 6, v%d' % VI)
    a('v_add_u32 v13, s%d, v13' % S_T1)
    a('v_lshl_add_u32 v2, v12, 4, v13')
    a('v_add_u32 v3, 8192, v2')
    a('v_bfe_u32 v12, v0, 2, 2')
    a('v_and_b32 v13, 3, v0')
    a('v_lshl_add_u32 v14, v%d, 3, v12' % VQ)
    a('v_lshrrev_b32 v16, 1, v13')
    a('v_and_b32 v29, 1, v13')
    a('v_and_b32 v17, 1, v%d' % VQ)
    a('v_lshlrev_b32 v17, 1, v17')
    a('v_mul_u32_u24 v15, 192, v14')
    a('v_lshl_add_u32 v15, v29, 3, v15')
    a('s_mul_i32 s%d, s%d, 6' % (S_T1, S_WN))
    for n3 in range(3):
        a('v_add3_u32 v1, v16, s%d, %d' % (S_T1, 2 * n3))
        a('v_xor_b32 v1, v1, v17')
        a('v_lshl_add_u32 v%d, v1, 4, v15' % (18 + n3))
    a('v_lshrrev_b32 v1, 1, v12')
    a('v_add_u32 v17, v17, v1')
    a('v_lshlrev_b32 v17, 1, v17')
    a('v_lshlrev_b32 v15, 7, v14')
    a('v_lshl_add_u32 v15, v29, 3, v15')
    a('s_mul_i32 s%d, s%d, 6' % (S_T1, S_WN))
    for n6 in range(6):
        a('s_add_u32 s%d, s%d, %d' % (S_T2, S_T1, n6))
        a('s_and_b32 s%d, s%d, 3' % (S_T3, S_T2))
        a('s_lshl_b32 s%d, s%d, 1' % (S_T3, S_T3))
        a('s_lshr_b32 s%d, s%d, 2' % (S_T2, S_T2))
        a('s_lshl_b32 s%d, s%d, 13' % (S_T2, S_T2))
        a('v_add_u32 v1, s%d, v16' % S_T3)
        a('v_xor_b32 v1, v1, v17')
        a('v_lshl_add_u32 v1, v1, 4, v15')
        a('v_add_u32 v%d, s%d, v1' % (4 + n6, S_T2))
    a('v_lshlrev_b32 v15, 7, v14')
    a('v_lshl_add_u32 v15, v29, 3, v15')
    a('s_lshl_b32 s%d, s%d, 2' % (S_T1, S_WM))
    for rt2 in range(2):
        a('v_add3_u32 v1, v16, s%d, %d' % (S_T1, 2 * rt2))
        a('v_xor_b32 v1, v1, v17')
        a('v_lshl_add_u32 v%d, v1, 4, v15' % (10 + rt2))
    XA, WA = 21, 23
    FB = [32, 72]
    ACC = 112
    SAC = 208

    def set_addr(cstage):
        o = []
        for j in range(2):
            o.append('v_add_u32 v%d, s%d, v%d' % (XA + j, S_LA, (10 if cstage else 2) + j))
        for n in range(3 if cstage else 6):
            o.append('v_add_u32 v%d, s%d, v%d' % (WA + n, S_LB, (18 if cstage else 4) + n))
        o.append('s_add_u32 s%d, s%d, 1\ns_and_b32 s%d, s%d, 3\ns_lshl_b32 s%d, s%d, 14\ns_add_u32 s%d, s%d, 24576\n'
                 's_cmp_eq_u32 s%d, 3\ns_cselect_b32 s%d, %d, s%d\ns_cselect_b32 s%d, %d, s%d' % (
                     S_SLOT, S_SLOT, S_SLOT, S_SLOT, S_LA, S_SLOT, S_LB, S_LB,
                     S_SLOT, S_LA, XSL[3], S_LA, S_LB, WSL[3], S_LB))
        return o

    def reads(j, cstage):
        fb = FB[j]
        out = []
        for n in range(3 if cstage else 6):
            for e2 in range(2):
                out.append('ds_read_b64_tr_b16 %s, v%d offset:%d' % (
                    vr(fb + 16 + 4 * n + 2 * e2, 2), WA + n, (32 * j + 4 * e2) * (192 if cstage else 128)))
        xs = []
        if cstage:
            for rt2 in range(2):
                for e2 in range(2):
                    xs.append('ds_read_b64_tr_b16 %s, v%d offset:%d' % (
                        vr(fb + 4 * rt2 + 2 * e2, 2), XA + rt2, (32 * j + 4 * e2) * 128))
            return xs + out
        for rt4 in range(4):
            xs.append('ds_read_b128 %s, v%d offset:%d' % (vr(fb + 4 * rt4, 4), XA + j, 1024 * rt4))
        return [xs[0]] + out + xs[1:]

    def mfmas(j, cstage, zero):
        fb = FB[j]
        out = []
        for rt in range(2 if cstage else 4):
            for n in range(3 if cstage else 6):
                acc = vr(SAC + 12 * rt + 4 * n if cstage else ACC + 24 * rt + 4 * n, 4)
                out.append('%s %s, %s, %s, %s' % (MF, acc, vr(fb + 16 + 4 * n, 4), vr(fb + 4 * rt, 4),
                                                   '0' if zero else acc))
        return out

    def stage(cstage, zero, next_c, last=False, pre=None):
        a('s_waitcnt lgkmcnt(0)')
        for t in interleave(mfmas(0, cstage, zero), reads(1, cstage), 2 if cstage else 1):
            a(t)
        a('s_waitcnt lgkmcnt(0)')
        mf = mfmas(1, cstage, False)
        if last:
            for t in mf:
                a(t)
            return
        sa = set_addr(next_c)
        a(mf[0])
        for t in sa[:4]:
            a(t)
        a(mf[1])
        for t in sa[4:]:
            a(t)
        if pre:
            pre()
        a('s_barrier')
        for t in interleave(mf[2:], reads(0, next_c), 3 if cstage else 1):
            a(t)

    a('s_mov_b32 s%d, 0' % S_SLOT)
    a('s_mov_b32 s%d, %d' % (S_LA, XSL[0]))
    a('s_mov_b32 s%d, %d' % (S_LB, WSL[0]))
    for t in set_addr(False):
        a(t)
    if 'c_start' in hooks:
        hooks['c_start'](a)
    a('s_barrier')
    if 'c_start2' in hooks:
        hooks['c_start2'](a)
    sp.rstamp(61)
    XV, Z0 = 232, 250
    a('s_lshl_b32 s%d, s%d, 2' % (S_T1, S_MT))
    a('s_and_b32 s%d, s%d, 1' % (S_T2, S_KS))
    a('s_lshl_b32 s%d, s%d, 1' % (S_T2, S_T2))
    a('s_add_u32 s%d, s%d, s%d' % (S_T1, S_T1, S_T2))
    a('s_add_u32 s%d, s%d, s%d' % (S_T1, S_T1, S_WM))
    a('s_lshl_b32 s%d, s%d, 1' % (S_T2, S_NT))
    a('s_lshr_b32 s%d, s%d, 1' % (S_T3, S_KS))
    a('s_add_u32 s%d, s%d, s%d' % (S_T2, S_T2, S_T3))
    a('s_mul_i32 s%d, s%d, 192' % (S_T2, S_T2))
    a('s_mul_i32 s%d, s%d, 96' % (S_T3, S_WN))
    a('s_add_u32 s%d, s%d, s%d' % (S_T2, S_T2, S_T3))
    a('v_lshlrev_b32 v16, 7, v%d' % VI)
    a('v_add_u32 v16, s%d, v16' % S_T1)
    a('v_mul_u32_u24 v16, %d, v16' % (D * 2))
    a('v_lshl_add_u32 v17, v%d, 3, s%d' % (VQ, S_T2))
    a('v_add_u32 v16, v16, v17')
    a('s_mov_b32 s%d, %d' % (S_OA, 64 * D * 2))
    for rt2 in range(2):
        for n3 in range(3):
            a('buffer_load_dwordx2 %s, v16, s[%d:%d], %s offen offset:%d' % (
                vr(XV + 6 * rt2 + 2 * n3, 2), S_XI, S_XI + 3, 's%d' % S_OA if rt2 else '0', 32 * n3))
    a('s_lshr_b32 s%d, s%d, 1' % (S_T1, S_T1))
    a('s_mul_i32 s%d, s%d, %d' % (S_T1, S_T1, ZT_BLK))
    a('s_lshl_b32 s%d, s%d, 6' % (S_T2, S_WM))
    a('s_add_u32 s%d, s%d, s%d' % (S_T1, S_T1, S_T2))
    a('s_add_u32 s%d, s%d, %d' % (S_LC, S_T1, 576 * 128))
    sp.stamp()
    for t in reads(0, False):
        a(t)
    pre_h = hooks.get('pre_h')
    a('s_mov_b32 s%d, 0' % S_I)
    stage(False, True, False, pre=lambda: a('s_waitcnt vmcnt(6)'))
    hooks['pub'](a)
    a('s_mov_b32 s%d, 1' % S_I)
    Lh = a.newlabel('g2_hl')
    a.label(Lh)
    stage(False, False, False, pre=(lambda: pre_h(a)) if pre_h else None)
    a('s_add_u32 s%d, s%d, 1' % (S_I, S_I))
    a('s_cmp_lt_u32 s%d, %d' % (S_I, NH - 1))
    a('s_cbranch_scc1 %s' % Lh)
    stage(False, False, True)
    sp.stamp()
    sp.rstamp(60)
    XCH = lambda w: XCHB + 6144 * w
    Lown = a.newlabel('g2_own')
    Lj = a.newlabel('g2_j')
    a('v_lshlrev_b32 v29, 4, v0')
    a('s_lshl_b32 s%d, s%d, 2' % (S_T1, S_GRP))
    a('s_add_u32 s%d, s%d, s%d' % (S_T1, S_T1, S_WAVE))
    a('s_lshl_b32 s%d, s%d, 2' % (S_T1, S_T1))
    a('s_add_u32 s%d, s%d, s%d' % (S_OB, S_T1, S_KS))
    a('s_cmp_eq_u32 s%d, s%d' % (S_WAVE, S_KS))
    a('s_cbranch_scc1 %s' % Lown)
    a('s_lshl_b32 s%d, s%d, 14' % (S_T1, S_OB))
    PK = 72
    for w in range(4):
        pk = PK + 16 * (w & 1)
        for gq in range(4):
            a('v_mov_b32 v%d, s%d' % (pk + 4 * gq + 3, S_NONCE))
        for rt2 in range(2):
            for n3 in range(3):
                t0 = ACC + 24 * (2 * (w & 1) + rt2) + 4 * (3 * (w >> 1) + n3)
                for d in range(2):
                    k = 2 * (3 * rt2 + n3) + d
                    a('v_cvt_pk_bf16_f32 v%d, v%d, v%d' % (pk + 4 * (k // 3) + k % 3, t0 + 2 * d, t0 + 2 * d + 1))
        a('s_add_u32 s%d, s%d, %d' % (S_T2, S_T1, 4096 * w))
        for gq in range(4):
            a('buffer_store_dwordx4 %s, v29, s[%d:%d], s%d offen offset:%d sc1' % (
                vr(pk + 4 * gq, 4), S_PT, S_PT + 3, S_T2, 1024 * gq))
    a('s_branch %s' % Lj)
    a.label(Lown)
    a('v_add_u32 v1, %d, v29' % XCH(0))
    for w in range(4):
        for rt2 in range(2):
            for n3 in range(3):
                a('ds_write_b128 v1, %s offset:%d' % (
                    vr(ACC + 24 * (2 * (w & 1) + rt2) + 4 * (3 * (w >> 1) + n3), 4),
                    XCH(w) - XCH(0) + 1024 * (3 * rt2 + n3)))
    a.label(Lj)
    def caddr(h):
        o = []
        for j in range(2):
            o.append('v_add_u32 v%d, %d, v%d' % (XA + j, XSL[CSLOT[h >> 1]] + 8192 * (h & 1), 10 + j))
        for n in range(3):
            o.append('v_add_u32 v%d, %d, v%d' % (WA + n, WSL[CSLOT[h >> 1]] + 12288 * (h & 1), 18 + n))
        return o

    def chalf(h):
        a('s_waitcnt lgkmcnt(0)')
        for t in interleave(mfmas(0, True, h == 0), reads(1, True), 2):
            a(t)
        a('s_waitcnt lgkmcnt(0)')
        mf = mfmas(1, True, False)
        if h == 8:
            for t in mf:
                a(t)
            return
        a(mf[0])
        for t in caddr(h + 1):
            a(t)
        if (h & 1) and (h >> 1) < 3:
            a('s_barrier')
        for t in interleave(mf[1:], reads(0, True), 2):
            a(t)

    for h in range(FH):
        chalf(h)
    a('v_lshlrev_b32 v15, 1, v%d' % VI)
    for rt2 in range(2):
        a('buffer_load_ushort v%d, v15, s[%d:%d], s%d offen offset:%d' % (Z0 + rt2, S_ZT, S_ZT + 3, S_LC, 32 * rt2))
    for h in range(FH, 9):
        chalf(h)
    sp.stamp()
    T = 32
    a('s_waitcnt vmcnt(0)')
    for rt2 in range(2):
        a('v_lshlrev_b32 v%d, 16, v%d' % (Z0 + rt2, Z0 + rt2))
    for rt2 in range(2):
        for k in range(12):
            s_ = SAC + 12 * rt2 + k
            a('v_add_f32 v%d, v%d, v%d' % (s_, s_, Z0 + rt2))
    for k in range(0, 24, 2):
        a('v_cvt_pk_bf16_f32 v%d, v%d, v%d' % (T, SAC + k, SAC + k + 1))
        a('v_lshlrev_b32 v%d, 16, v%d' % (SAC + k, T))
        a('v_and_b32 v%d, 0xffff0000, v%d' % (SAC + k + 1, T))
    XU = ACC
    for k in range(12):
        a('v_lshlrev_b32 v%d, 16, v%d' % (XU + 2 * k, XV + k))
        a('v_and_b32 v%d, 0xffff0000, v%d' % (XU + 2 * k + 1, XV + k))
    a('s_mul_i32 s%d, s%d, 6144' % (S_T1, S_WAVE))
    a('s_add_u32 s%d, s%d, %d' % (S_T1, S_T1, XCHB))
    a('v_add_u32 v1, s%d, v29' % S_T1)
    a('s_barrier')
    sp.stamp()
    G = 40
    for n3 in range(3):
        a('ds_read_b128 %s, v1 offset:%d' % (vr(G + 4 * n3, 4), 1024 * n3))
    for n3 in range(3):
        a('s_waitcnt lgkmcnt(%d)' % (2 - n3))
        for rt2 in range(2):
            k0 = 12 * rt2 + 4 * n3
            e = [56 + r for r in range(4)]
            for d in range(2):
                a('v_lshlrev_b32 v%d, 16, v%d' % (e[2 * d], G + 4 * n3 + 2 * rt2 + d))
                a('v_and_b32 v%d, 0xffff0000, v%d' % (e[2 * d + 1], G + 4 * n3 + 2 * rt2 + d))
            for r in range(4):
                a('v_fma_f32 v%d, v%d, v%d, v%d' % (e[r], e[r], SAC + k0 + r, XU + k0 + r))
            xv = XV + 6 * rt2 + 2 * n3
            for d in range(2):
                a('v_cvt_pk_bf16_f32 v%d, v%d, v%d' % (xv + d, e[2 * d], e[2 * d + 1]))
            a('buffer_store_dwordx2 %s, v16, s[%d:%d], %s offen offset:%d %s' % (
                vr(xv, 2), S_OUT, S_OUT + 3, 's%d' % S_OA if rt2 else '0', 32 * n3, 'nt' if 'outnt' in MODE else ''))
    if instr:
        sp.stamp()
        a('s_waitcnt vmcnt(0)')
        sp.stamp()
        a('s_mov_b32 s70, 63')
        sp.stamp(real=True)
        a('s_lshl_b32 s71, s2, 3')
        a('s_add_u32 s71, s71, s%d' % S_WAVE)
        sp.dump(66, 67, S_H, 71, 1)
    a('s_endpgm')
```

```python
import struct
from asmlib import *
from layout import *
from k_g2 import decode_ids
MODE = ''
MEGA = True
HOOK = {}
COLD = []
WTJ = 14
S_GPR = 101
S_FTR = 78

P1_STG = 24576
P1_RING = 6 * P1_STG
P1_XB = 3 * P1_STG
P1_CBL = P1_XB + 5 * 16384
P1_CSX = P1_CBL + 2048
P1_STX = P1_CSX + 512
P1_LDS = 163840

XF = 112
ACCS = (96, 80)
WB = 56
V_RC = 2
V_DKJ = 6
V_DO = 9
V_CSA = 12
V_CXA = 14
V_ST = 16
V_CXW = 20
V_ONE = 22
V_DUM = 26
V_BF = 28
V_CS = 36
V_O = 44
V_HA = 52
V_RTA = 53
V_TT = 54
V_T0 = 1
V_CSP = 76
V_XO = 80
V_XR = 82


def WBUF(buf, nt):
    return WB + 4 * ((2 * buf + nt) % 5)


S_X, S_W1, S_T, S_LD, S_H, S_RT, S_B1 = 8, 12, 16, 20, 24, 28, 32
S_R0, S_R1, S_N0, S_N1 = 80, 81, 82, 83
S_WAVE, S_G, S_WR, S_MT, S_U, S_KS = 36, 37, 38, 39, 40, 41
S_CNT, S_P, S_RB, S_WBASE, S_PITCH, S_LOFF = 42, 43, 44, 45, 46, 47
S_CUR, S_PREV, S_NT_, S_TB, S_T1, S_T2, S_T3 = 48, 49, 50, 51, 52, 53, 54
S_DW, S_T4, S_NONCE, S_N2, S_SPIN = 55, 56, 57, 58, 59
S_DBG = 84
S_PG = 96
S_PGO = 79
SPIN_MAX = 20000


def f32h(x):
    return '0x%08x' % struct.unpack('<I', struct.pack('<f', x))[0]


def panel_id(a, dst, ridx):
    a('s_lshl_b32 s%d, s%d, 2' % (S_T1, ridx))
    a('s_add_u32 s%d, s%d, s%d' % (S_T1, S_T1, S_U))
    a('s_add_u32 s%d, s%d, s%d' % (S_T2, S_T1, S_TB))
    a('s_mul_i32 s%d, s%d, 18' % (S_T3, S_KS))
    a('s_add_u32 s%d, s%d, s%d' % (S_T3, S_T3, S_T1))
    a('s_sub_u32 s%d, s%d, s%d' % (S_T3, S_T3, S_NT_))
    a('s_cmp_lt_u32 s%d, s%d' % (S_T1, S_NT_))
    a('s_cselect_b32 s%d, s%d, s%d' % (dst, S_T2, S_T3))


def set_load_panel(a, ridx, g2pre=False):
    panel_id(a, S_T1, ridx)
    a('s_cmp_lt_u32 s%d, 72' % S_T1)
    a('s_cselect_b32 s%d, s%d, s%d' % (S_LD, S_W1, S_T))
    a('s_cselect_b32 s%d, s%d, s%d' % (S_LD + 1, S_W1 + 1, S_T + 1))
    a('s_cselect_b32 s%d, s%d, s%d' % (S_LD + 2, S_W1 + 2, S_T + 2))
    a('s_cselect_b32 s%d, 8, 1' % S_PITCH)
    a('s_cselect_b32 s%d, 0, 72' % S_T2)
    a('s_mul_i32 s%d, s%d, %d' % (S_PITCH, S_PITCH, D * 2))
    a('s_sub_u32 s%d, s%d, s%d' % (S_T1, S_T1, S_T2))
    a('s_lshl_b32 s%d, s%d, 7' % (S_LOFF, S_T1))
    a('s_cmp_lt_u32 s%d, s%d' % (ridx, S_CNT))
    a('s_cselect_b32 s%d, s%d, 0' % (S_LD + 2, S_LD + 2))
    a('s_cmp_eq_u32 s%d, s%d' % (ridx, S_FTR))
    a('s_cselect_b32 s%d, s%d, s%d' % (S_LD, S_T, S_LD))
    a('s_cselect_b32 s%d, s%d, s%d' % (S_LD + 1, S_T + 1, S_LD + 1))
    a('s_cselect_b32 s%d, %d, s%d' % (S_LD + 2, 2 * D * D * 2 + 61440, S_LD + 2))
    a('s_cselect_b32 s%d, 128, s%d' % (S_PITCH, S_PITCH))
    a('s_cselect_b32 s%d, %d, s%d' % (S_LOFF, 2 * D * D * 2, S_LOFF))
    for i in range(3):
        a('v_and_b32 v%d, 0xffff, v%d' % (V_TT, V_DKJ + i))
        a('v_lshrrev_b32 v%d, 16, v%d' % (V_TT + 1, V_DKJ + i))
        a('v_mad_u32_u24 v%d, v%d, s%d, v%d' % (V_DO + i, V_TT, S_PITCH, V_TT + 1))
    if g2pre:
        L = a.newlabel('p1_g2p')
        a('s_cmp_lg_u32 s%d, s%d' % (ridx, S_GPR))
        a('s_cbranch_scc1 %s' % L)
        srd(a, S_LD, 92, 93, F * D * 2)
        a('s_mov_b32 s%d, 384' % S_PITCH)
        a('s_mul_i32 s%d, s%d, %d' % (S_LOFF, S_KS, 1152 * D * 2))
        a('s_mul_i32 s%d, s%d, 384' % (S_T1, S_U))
        a('s_add_u32 s%d, s%d, s%d' % (S_LOFF, S_LOFF, S_T1))
        a('s_sub_u32 s%d, s%d, 384' % (S_LOFF, S_LOFF))
        for i in range(3):
            a('v_and_b32 v%d, 63, v%d' % (V_TT, V_DKJ + i))
            a('v_lshrrev_b32 v%d, 16, v%d' % (V_TT + 1, V_DKJ + i))
            a('v_mul_u32_u24 v%d, %d, v%d' % (V_TT, D * 2, V_TT))
            a('v_add_u32 v%d, v%d, v%d' % (V_TT, V_TT, V_TT + 1))
            a('v_bfe_u32 v%d, v%d, 6, 2' % (V_TT + 1, V_DKJ + i))
            a('v_lshl_add_u32 v%d, v%d, 7, v%d' % (V_DO + i, V_TT + 1, V_TT))
        a.label(L)


def dma_one(a, st, i):
    a('s_mul_i32 s%d, s%d, %d' % (S_T1, S_PITCH, 192 * st))
    a('s_add_u32 s%d, s%d, s%d' % (S_T2, S_WBASE, S_DW))
    a('s_add_u32 m0, s%d, %d' % (S_T2, 1024 * i))
    a('s_add_u32 s%d, s%d, s%d' % (S_T1, S_T1, S_LOFF))
    a('buffer_load_dwordx4 v%d, s[%d:%d], s%d offen %slds' % (V_DO + i, S_LD, S_LD + 3, S_T1, 'nt ' if 'ldnt' in MODE else ''))


def dma_x(a, vm, piece, slot):
    a('s_lshl_b32 s%d, s%d, 11' % (S_T2, S_WAVE))
    for i in range(2):
        a('s_add_u32 m0, s%d, %d' % (S_T2, P1_XB + 16384 * slot + 1024 * i - 128 * piece))
        a('buffer_load_dwordx4 v%d, s[%d:%d], 0 offen offset:%d lds' % (V_XO + i, S_X, S_X + 3, 128 * piece))
        vm.add('x%d' % piece)


def xreads(a, lg, piece, slot):
    for j in range(2):
        for rt in range(2):
            a('ds_read_b128 %s, v%d offset:%d' % (
                vr(XF + 72 * rt + 4 * (2 * piece + j), 4), V_XR + 2 * rt + j + (4 if slot == 4 else 0),
                16384 * (slot % 4)))
            lg.add('xr%d' % piece)


def adv(a, s):
    a('s_add_u32 s%d, s%d, %d' % (s, s, P1_STG))
    a('s_cmp_ge_u32 s%d, %d' % (s, P1_RING))
    a('s_cselect_b32 s%d, 0, s%d' % (s, s))


def epi_loads(a, lg, stats):
    for nt in range(2):
        a('ds_read_b128 %s, v%d' % (vr(V_CS + 4 * nt, 4), V_CXA + nt))
        a('ds_read_b128 %s, v%d offset:256' % (vr(V_O + 4 * nt, 4), V_CXA + nt))
        a('ds_read_b128 %s, v%d' % (vr(V_BF + 4 * nt, 4), V_CSA + nt))
        lg.add('el', 3)
        a('v_add_u32 v%d, 256, v%d' % (V_CSA + nt, V_CSA + nt))
    if stats:
        a('v_and_b32 v%d, 15, v0' % V_TT)
        a('s_lshl_b32 s%d, s%d, 8' % (S_T1, S_WR))
        a('s_add_u32 s%d, s%d, %d' % (S_T1, S_T1, P1_STX))
        a('v_lshl_add_u32 v%d, v%d, 3, s%d' % (V_TT, V_TT, S_T1))
        for rt in range(2):
            a('s_lshr_b32 s%d, s%d, 4' % (S_T1, S_R0 + rt))
            a('v_add_u32 v%d, s%d, v%d' % (V_TT + 1, S_T1, V_TT))
            a('ds_read_b64 %s, v%d' % (vr(V_ST + 2 * rt, 2), V_TT + 1))
            lg.add('el')


def epi_ops(acc, isT, st_flags):
    o = []
    for i in range(8):
        o.append('v_add_f32 v%d, v%d, v%d' % (V_CS + i, V_CS + i, V_O + i))
    for rt in range(2):
        for nt in range(2):
            for r2 in range(2):
                t = acc + 8 * rt + 4 * nt + 2 * r2
                for e in range(2):
                    o.append('v_fma_f32 v%d, -v%d, v%d, v%d' % (
                        t + e, V_ST + 2 * rt + 1, V_CS + 4 * nt + 2 * r2 + e, t + e))
                if isT:
                    for e in range(2):
                        o.append('v_mul_f32 v%d, v%d, v%d' % (t + e, V_ST + 2 * rt, t + e))
                    o.append('v_cvt_pk_bf16_f32 v%d, v%d, v%d' % (V_O + 4 * nt + 2 * r2 + rt, t, t + 1))
                else:
                    for e in range(2):
                        o.append('v_fma_f32 v%d, v%d, v%d, v%d' % (
                            t + e, V_ST + 2 * rt, t + e, V_BF + 4 * nt + 2 * r2 + e))
                    for e in range(2):
                        o.append('v_max_f32 v%d, 0, v%d' % (t + e, t + e))
                    for e in range(2):
                        o.append('v_mul_f32 v%d, v%d, v%d' % (t + e, t + e, t + e))
                    o.append('v_cvt_pk_bf16_f32 v%d, v%d, v%d' % (V_O + 4 * rt + 2 * nt + r2, t, t + 1))
        if not isT:
            o.append('s_lshl_b32 s%d, s%d, 15\ns_add_u32 s%d, s%d, s%d\ns_lshr_b32 s%d, s%d, 1' % (S_T4, S_PREV, S_T4, S_T4, S_R0 + rt, S_T4, S_T4))
            for d in range(2):
                o.append('v_permlane16_swap_b32 v%d, v%d' % (V_O + 4 * rt + d, V_O + 4 * rt + 2 + d))
            o.append('buffer_store_dwordx4 %s, v%d, s[%d:%d], s%d offen %s' % (
                vr(V_O + 4 * rt, 4), V_HA, S_H, S_H + 3, S_T4, st_flags))
    if isT:
        o.append('SWAP_RT')
        for nt in range(2):
            for pp in range(2):
                o.append('s_sub_u32 s%d, s%d, 72\ns_lshl_b32 s%d, s%d, 18\ns_add_u32 s%d, s%d, s%d\ns_add_u32 s%d, s%d, %d\n' % (
                    S_T4, S_PREV, S_T4, S_T4, S_T4, S_T4, S_N0 + nt, S_T4, S_T4, pp * 8192) +
                    'buffer_store_dwordx2 %s, v%d, s[%d:%d], s%d offen %s' % (
                    vr(V_O + 4 * nt + 2 * pp, 2), V_RTA, S_RT, S_RT + 3, S_T4, st_flags))
    return o


def emit_epi(a, vm, t):
    if t == 'SWAP_RT':
        L = a.newlabel('p1_sw')
        a('s_cmp_eq_u32 s%d, 0' % S_G)
        a('s_cbranch_scc1 %s' % L)
        for k in range(4):
            a('v_swap_b32 v%d, v%d' % (V_O + 2 * k, V_O + 2 * k + 1))
        a.label(L)
        return
    a(t)
    if 'buffer_store' in t:
        vm.add('es')


def wread1(a, lg, js, k):
    jj = js % 6
    nt, e2 = k >> 1, k & 1
    a('ds_read_b64_tr_b16 %s, v%d offset:%d' % (
        vr(WBUF(js % 5, nt) + 2 * e2, 2), V_RC + 2 * (js & 1) + nt, (32 * jj + 4 * e2) * 128))
    lg.add('w%d_%d' % (js, nt))


def read_switch(a):
    a('s_add_u32 s%d, s%d, %d' % (S_RB, S_RB, P1_STG))
    a('s_cmp_ge_u32 s%d, %d' % (S_RB, P1_RING))
    a('s_cselect_b32 s%d, 0, s%d' % (S_RB, S_RB))
    a('s_mov_b32 s%d, %d' % (S_T1, P1_STG - P1_RING))
    a('s_cselect_b32 s%d, s%d, %d' % (S_T1, S_T1, P1_STG))
    for i in range(4):
        a('v_add_u32 v%d, s%d, v%d' % (V_RC + i, S_T1, V_RC + i))


def stats_finish(a, lg):
    RS, GR, T = V_CS, V_CS + 4, V_O
    a('v_and_b32 v%d, 3, v0' % T)
    a('v_cmp_eq_u32 vcc, 1, v%d' % T)
    a('v_cndmask_b32 v%d, v%d, v%d, vcc' % (GR, GR, GR + 1))
    a('v_cmp_eq_u32 vcc, 2, v%d' % T)
    a('v_cndmask_b32 v%d, v%d, v%d, vcc' % (GR, GR, GR + 2))
    a('v_cmp_eq_u32 vcc, 3, v%d' % T)
    a('v_cndmask_b32 v%d, v%d, v%d, vcc' % (GR, GR, GR + 3))
    a('v_mul_f32 v%d, %s, v%d' % (RS, f32h(1.0 / D), RS))
    a('v_mul_f32 v%d, %s, v%d' % (GR, f32h(1.0 / D), GR))
    a('v_fma_f32 v%d, -v%d, v%d, v%d' % (GR, RS, RS, GR))
    a('v_max_f32 v%d, 0, v%d' % (GR, GR))
    bf16_round(a, RS)
    bf16_round(a, GR)
    a('v_add_f32 v%d, %s, v%d' % (GR, f32h(1e-5), GR))
    bf16_round(a, GR)
    a('v_sqrt_f32 v%d, v%d' % (GR, GR))
    bf16_round(a, GR)
    a('v_rcp_f32 v%d, v%d' % (T + 2, GR))
    a('v_mov_b32 v%d, v%d' % (T + 3, RS))
    a('v_and_b32 v%d, 15, v0' % T)
    a('v_lshrrev_b32 v%d, 2, v%d' % (T + 1, T))
    a('v_lshrrev_b32 v%d, 4, v0' % (T + 4))
    a('v_cmp_eq_u32 vcc, v%d, v%d' % (T + 1, T + 4))
    a('s_lshl_b32 s%d, s%d, 8' % (S_T1, S_WR))
    a('s_lshl_b32 s%d, s%d, 7' % (S_T2, S_G))
    a('s_add_u32 s%d, s%d, s%d' % (S_T1, S_T1, S_T2))
    a('s_add_u32 s%d, s%d, %d' % (S_T1, S_T1, P1_STX))
    a('v_lshl_add_u32 v%d, v%d, 3, s%d' % (T, T, S_T1))
    a('v_mov_b32 v%d, %d' % (T + 1, P1_STX + 1024))
    a('v_cndmask_b32 v%d, v%d, v%d, vcc' % (T, T + 1, T))
    a('ds_write_b64 v%d, %s' % (T, vr(T + 2, 2)))
    lg.add('cw')


def publish(a, delta):
    L = a.newlabel('p1_pub')
    a('s_cmp_lg_u32 s%d, 0' % S_WAVE)
    a('s_cbranch_scc1 %s' % L)
    a('s_add_u32 s%d, s%d, s%d' % (S_T1, S_NONCE, S_P))
    a('s_add_i32 s%d, s%d, %d' % (S_T1, S_T1, delta))
    a('v_mov_b32 v%d, s%d' % (V_T0, S_T1))
    a('v_mov_b32 v%d, 0' % V_TT)
    a('buffer_store_dword v%d, v%d, s[%d:%d], s%d offen sc1' % (V_T0, V_TT, S_PG, S_PG + 3, S_PGO))
    a.label(L)


def prefetch2(a, Lp):
    La = a.newlabel('pf_aux')
    Lg = a.newlabel('pf_go')
    a('s_cmp_gt_u32 s%d, 2' % S_P)
    a('s_cbranch_scc1 %s' % Lp)
    a('s_cmp_eq_u32 s%d, 0' % S_U)
    a('s_cbranch_scc1 %s' % Lp)
    a('s_bfe_u32 s%d, s2, 0x10005' % S_T1)
    a('s_add_u32 s%d, s%d, 1' % (S_T1, S_T1))
    a('s_cmp_lg_u32 s%d, s%d' % (S_T1, S_P))
    a('s_cbranch_scc1 %s' % Lp)
    a('s_lshr_b32 s%d, s2, 5' % S_T1)
    a('s_lshl_b32 s%d, s%d, 3' % (S_T1, S_T1))
    a('s_sub_u32 s%d, s2, s%d' % (S_T1, S_T1))
    a('s_sub_u32 s%d, s%d, 8' % (S_T1, S_T1))
    a('s_lshl_b32 s%d, s%d, 1' % (S_T1, S_T1))
    a('s_add_u32 s%d, s%d, s%d' % (S_T1, S_T1, S_WAVE))
    a('s_sub_u32 s%d, s%d, 4' % (S_T1, S_T1))
    a.label(Lg)
    a('s_getpc_b64 s[94:95]')
    a('s_add_u32 s94, s94, tab_Tinv@rel32@lo+4')
    a('s_addc_u32 s95, s95, tab_Tinv@rel32@hi+12')
    a('s_lshl_b32 s%d, s%d, 14' % (S_T2, S_T1))
    a('s_sub_u32 s%d, s%d, %d' % (S_T3, S_T2, 324 * 16384))
    a('v_lshlrev_b32 v%d, 8, v0' % V_T0)
    a('s_cmp_lt_u32 s%d, 324' % S_T1)
    a('s_cselect_b32 s%d, s92, s94' % S_B1)
    a('s_cselect_b32 s%d, s93, s95' % (S_B1 + 1))
    a('s_cselect_b32 s%d, s%d, s%d' % (S_T2, S_T2, S_T3))
    a('s_mov_b32 s%d, %d' % (S_T3, D * D * 2 + 61440))
    a('s_cselect_b32 s%d, %d, s%d' % (S_B1 + 2, F * D * 2, S_T3))
    a('s_and_b32 s%d, s%d, 0xffff' % (S_B1 + 1, S_B1 + 1))
    a('buffer_load_dwordx2 v[%d:%d], v%d, s[%d:%d], s%d offen offset:124' % (V_DUM, V_DUM + 1, V_T0, S_B1, S_B1 + 3, S_T2))


def prefetch(a):
    a('s_getpc_b64 s[94:95]')
    a('s_add_u32 s94, s94, tab_F@rel32@lo+4')
    a('s_addc_u32 s95, s95, tab_F@rel32@hi+12')
    a('s_lshl_b32 s%d, s%d, 2' % (S_T2, S_MT))
    a('s_add_u32 s%d, s%d, s%d' % (S_T2, S_T2, S_KS))
    a('s_mul_i32 s%d, s%d, 3' % (S_T1, S_T2))
    a('s_add_u32 s%d, s%d, s%d' % (S_T1, S_T1, S_P))
    a('s_sub_u32 s%d, s%d, 1' % (S_T1, S_T1))
    a('s_mul_i32 s%d, s%d, 1457' % (S_T2, S_T1))
    a('s_lshr_b32 s%d, s%d, 16' % (S_T2, S_T2))
    a('s_mul_i32 s%d, s%d, %d' % (S_T2, S_T2, 1152 * 1152 - 45 * 16384))
    a('s_lshl_b32 s%d, s%d, 14' % (S_T3, S_T1))
    a('s_add_u32 s%d, s%d, s%d' % (S_T2, S_T2, S_T3))
    a('s_sub_u32 s%d, s%d, %d' % (S_T3, S_T3, 180 * 16384))
    a('v_lshlrev_b32 v%d, 8, v0' % V_T0)
    a('s_cmp_lt_u32 s%d, 180' % S_T1)
    a('s_cselect_b32 s%d, s92, s94' % S_B1)
    a('s_cselect_b32 s%d, s93, s95' % (S_B1 + 1))
    a('s_cselect_b32 s%d, s%d, s%d' % (S_T2, S_T2, S_T3))
    a('s_mov_b32 s%d, %d' % (S_T3, 61440))
    a('s_cselect_b32 s%d, %d, s%d' % (S_B1 + 2, F * D * 2, S_T3))
    a('s_and_b32 s%d, s%d, 0xffff' % (S_B1 + 1, S_B1 + 1))
    a('buffer_load_dwordx2 v[%d:%d], v%d, s[%d:%d], s%d offen offset:124' % (V_DUM, V_DUM + 1, V_T0, S_B1, S_B1 + 3, S_T2))


def touch_w(a, ahead):
    L = a.newlabel('p1_tw')
    a('s_cmp_lt_u32 s%d, 6' % S_WAVE)
    a('s_cbranch_scc1 %s' % L)
    a('s_add_u32 s%d, s%d, %d' % (S_T4, S_P, ahead))
    a('s_cmp_ge_u32 s%d, s%d' % (S_T4, S_CNT))
    a('s_cbranch_scc1 %s' % L)
    panel_id(a, S_T4, S_T4)
    a('s_lshl_b32 s%d, s%d, 7' % (S_T4, S_T4))
    a('s_and_b32 s%d, s%d, 7' % (S_T1, S_MT))
    a('s_lshl_b32 s%d, s%d, 1' % (S_T1, S_T1))
    a('s_add_u32 s%d, s%d, s%d' % (S_T1, S_T1, S_WAVE))
    a('s_sub_u32 s%d, s%d, 6' % (S_T1, S_T1))
    a('s_mul_i32 s%d, s%d, %d' % (S_T1, S_T1, 36 * F * 2))
    a('s_add_u32 s%d, s%d, s%d' % (S_T4, S_T4, S_T1))
    a('v_min_u32 v%d, 35, v0' % V_T0)
    a('v_mul_u32_u24 v%d, %d, v%d' % (V_T0, F * 2, V_T0))
    a('buffer_load_dword v%d, v%d, s[%d:%d], s%d offen' % (V_DUM, V_T0, S_W1, S_W1 + 3, S_T4))
    a.label(L)


def body(a, vm, lg, kind, par, st_flags, sp=None):
    first = kind == 'first'
    ACC = ACCS[par]
    PACC = ACCS[1 - par]
    fill = [] if first else epi_ops(PACC, kind == 'T1', st_flags)
    if 'novalu' in MODE:
        fill = [t for t in fill if not t.startswith('v_')]
    if 'plainst' in MODE:
        fill = [t.replace(' sc1', '') for t in fill]
    if 'oobst' in MODE:
        fill = [t.replace('s_lshl_b32 s%d, s%d, 15' % (S_T4, S_PREV), 's_mov_b32 s%d, 0x7f000000' % S_T4) for t in fill]
    E0, E1 = 6, 14
    slots = (E1 - E0 + 1) * 4
    emitted = 0

    for js in range(18):
        if sp and (js % 6 == 0 or ('fine' in MODE and (first or kind.endswith('1'))) or ('finw' in MODE and kind == 'W' and par == 1)):
            sp.stamp()
        nx1 = (js + 1) % 18
        nx2 = (js + 2) % 18

        def mf(rt, nt):
            acc = vr(ACC + 8 * rt + 4 * nt, 4)
            a('v_mfma_f32_16x16x32_bf16 %s, %s, %s, %s' % (
                acc, vr(WB3(js, nt), 4), vr(XF + 72 * rt + 4 * js, 4), '0' if js == 0 else acc))

        def filler(k):
            nonlocal emitted
            if fill and E0 <= js <= E1:
                if js == E0 and k == 0:
                    lg.wait('el')
                want = ((js - E0) * 4 + k + 1) * len(fill) // slots
                while emitted < want:
                    emit_epi(a, vm, fill[emitted])
                    emitted += 1

        lg.wait('w%d_0' % js)
        if first and js == 10:
            lg.wait('xr8')
        mf(0, 0)
        if first and js == 8:
            vm.wait('x5', 'x6', 'x7', 'x8')
            a('s_barrier')
        if first and js in (8, 9):
            xreads(a, lg, 5 + 2 * (js - 8), 2 * (js - 8))
        if (js + 2) % 6 == 0:
            st = ((js + 2) // 6) % 3
            pub = kind == 'W' and js == 4
            if pub:
                vm.wait('d%d' % st, 'es')
            else:
                vm.wait('d%d' % st)
            if js == 4:
                lg.wait('cw')
            if first and js == 16:
                vm.wait('nn')
                get_nonce(a)
            a('s_barrier')
            if pub:
                publish(a, -1)
            if first and js == 16:
                a('v_mov_b32 v%d, %d' % (V_T0, P1_LDS - 4))
                a('ds_read_b32 v%d, v%d' % (V_NN, V_T0))
                lg.add('nn')
        rd3(a, lg, nx1, 1)
        filler(0)
        mf(1, 0)
        if js % 2 == 0 and not ('nocsm' in MODE and js > 0):
            acc = vr(V_CSP, 4)
            a('v_mfma_f32_16x16x32_bf16 %s, %s, %s, %s' % (acc, vr(WB3(js, 0), 4), vr(V_ONE, 4), '0' if js == 0 else acc))
        rd3(a, lg, nx2, 0)
        if js == 16:
            a('s_add_u32 s%d, s%d, 2' % (S_T4, S_P))
            a('s_add_u32 s%d, s%d, 512' % (S_LOFF, S_LOFF))
            if kind == 'W':
                Ls = a.newlabel('p1_slp')
                Lb = a.newlabel('p1_slb')
                a('s_cmp_ge_u32 s%d, s%d' % (S_T4, S_CNT))
                a('s_cbranch_scc1 %s' % Ls)
                a.label(Lb)
                COLD.append((Ls, Lb, lambda: set_load_panel(a, S_T4, True)))
        if js == 5 and not first:
            epi_loads(a, lg, kind.endswith('1'))
        if js == 5 and not first:
            Lsk = a.newlabel('p1_tsk')
            Lbk = a.newlabel('p1_tbk')
            a('s_cmp_ge_u32 s%d, 4' % S_WAVE)
            a('s_cbranch_scc1 %s' % Lsk)
            a.label(Lbk)

            def tp():
                Lp = a.newlabel('p1_pf')
                a('s_cmp_gt_u32 s%d, 5' % S_WAVE)
                a('s_cbranch_scc1 %s' % Lp)
                prefetch2(a, Lp)
                a.label(Lp)
                if 'tall' in MODE:
                    if kind.endswith('1'):
                        for ah in (2, 3, 4):
                            touch_w(a, ah)
                elif 'tz0' in MODE:
                    pass
                else:
                    touch_w(a, 2)
            COLD.append((Lsk, Lbk, tp))
        if False:
            Lp = a.newlabel('p1_pf')
            a('s_sub_u32 s%d, s%d, 4' % (S_T1, S_WAVE))
            a('s_cmp_gt_u32 s%d, 1' % S_T1)
            a('s_cbranch_scc1 %s' % Lp)
            prefetch2(a, Lp)
            a.label(Lp)
        if js == 5 and first:
            touch_w(a, 2)
        if js == 11 and first and 'tz0' in MODE:
            for ah in (3, 4, 5):
                touch_w(a, ah)
        if first and js == 7 and 'tlb' in MODE:
            Lt = a.newlabel('p1_tlb')
            a('s_cmp_lg_u32 s%d, 3' % S_WAVE)
            a('s_cbranch_scc1 %s' % Lt)
            a('s_load_dwordx2 s[6:7], s[0:1], %d' % KA_OUT)
            srd(a, S_B1, 66, 67, 48 << 20)
            a('v_lshlrev_b32 v%d, %d, v0' % (V_T0, 20 if 'tlb1' in MODE else 21))
            a('buffer_load_dword v%d, v%d, s[%d:%d], 0 offen sc1' % (V_DUM, V_T0, S_B1, S_B1 + 3))
            a('s_waitcnt lgkmcnt(0)')
            srd(a, S_B1, 6, 7, S * D * 2)
            a('buffer_load_dword v%d, v%d, s[%d:%d], 0 offen sc1' % (V_DUM, V_T0, S_B1, S_B1 + 3))
            a.label(Lt)
        if first and js == 9:
            vm.wait('b1')
            a('v_lshlrev_b32 v93, 16, v93')
            a('s_lshl_b32 s%d, s%d, 8' % (S_T1, S_WAVE))
            a('s_add_u32 s%d, s%d, %d' % (S_T1, S_T1, P1_CBL))
            a('v_lshl_add_u32 v92, v0, 2, s%d' % S_T1)
            a('ds_write_b32 v92, v93')
            lg.add('bw')
        if first and js in (2, 3, 5, 6) and 'nowt' not in MODE:
            k = {2: 0, 3: 1, 5: 2, 6: 3}[js]
            wt_issue(a, vm, k >> 1, S_H, S_RT, (2 * (k & 1), 2 * (k & 1) + 1))
        if first and js == WTJ:
            if 'nowt' not in MODE:
                wt_stores(a, vm, S_H)
            srd(a, S_H, 66, 67, S * F * 2, WS_H)
            srd(a, S_RT, 66, 67, 288 * 8192, WS_RT)
            a('s_load_dwordx2 s[92:93], s[0:1], %d' % KA_W2)
            a('s_waitcnt lgkmcnt(0)')
        filler(1)
        lg.wait('w%d_1' % js)
        mf(0, 1)
        if first and not ('nostat' in MODE and js > 0):
            x0 = vr(XF + 4 * js, 4)
            a('v_mfma_f32_16x16x32_bf16 %s, %s, %s, %s' % (vr(V_CS, 4), vr(V_ONE, 4), x0, '0' if js == 0 else vr(V_CS, 4)))
        if first and js < 16:
            if js < 2:
                dma_x(a, vm, 5 + 2 * js, 2 * js)
                dma_x(a, vm, 6 + 2 * js, 2 * js + 1)
            if js >= 10:
                todo = {10: [0, 1], 11: [2, 3], 12: [4, 5], 13: [6], 14: [7], 15: [8]}[js]
                for n in todo:
                    dma_one(a, n // 3, n % 3)
                    vm.add('d%d' % (n // 3))
                    if n % 3 == 2:
                        adv(a, S_WBASE)
        elif js % 2 == 0:
            n = ((js + 2) % 18) // 2
            if js == 16 and kind == 'W':
                a('s_add_u32 s%d, s%d, 1' % (S_T1, S_P))
                a('s_cmp_ge_u32 s%d, s%d' % (S_T1, S_CNT))
                a('s_cselect_b32 s%d, 0x30000, s%d' % (S_WBASE, S_WBASE))
            dma_one(a, n // 3, n % 3)
            vm.add('d%d' % (n // 3))
            if n % 3 == 2:
                adv(a, S_WBASE)
        filler(2)
        if first and js in (8, 9):
            xreads(a, lg, 6 + 2 * (js - 8), 1 + 2 * (js - 8))
        mf(1, 1)
        if first and not ('nostat' in MODE and js > 0):
            x0 = vr(XF + 4 * js, 4)
            a('v_mfma_f32_16x16x32_bf16 %s, %s, %s, %s' % (vr(V_CS + 4, 4), x0, x0, '0' if js == 0 else vr(V_CS + 4, 4)))
        if kind == 'W' and js in (15, 17) and 'fft' in HOOK:
            Ls = a.newlabel('p1_hk')
            Lb = a.newlabel('p1_hkb')
            a('s_add_u32 s%d, s%d, 1' % (S_T1, S_P))
            a('s_cmp_eq_u32 s%d, s%d' % (S_T1, S_CNT))
            a('s_cbranch_scc1 %s' % Ls)
            a.label(Lb)

            def hk(js=js):
                L = a.newlabel('p1_gx')
                L2 = a.newlabel('p1_gy')
                a('s_cmp_lg_u32 s%d, 0' % S_U)
                a('s_cbranch_scc1 %s' % L)
                HOOK['fft'](a, js)
                a('s_branch %s' % L2)
                a.label(L)
                HOOK['g2'](a, js)
                a.label(L2)
            COLD.append((Ls, Lb, hk))
        if js == 17:
            a('ds_write_b128 v%d, %s' % (V_CXW, vr(V_CSP, 4)))
            lg.add('cw')
        filler(3)
    assert emitted == len(fill)
    if first:
        stats_finish(a, lg)
        lg.wait('nn')
        a('v_readfirstlane_b32 s%d, v%d' % (S_NONCE, V_NN))
    a('s_mov_b32 s%d, s%d' % (S_PREV, S_CUR))
    a('s_add_u32 s%d, s%d, 1' % (S_P, S_P))
    if first:
        panel_id(a, S_CUR, S_P)
    else:
        a('s_add_u32 s%d, s%d, 4' % (S_CUR, S_CUR))


def WB3(js, nt):
    return WB + 4 * (js % 3) if nt == 0 else WB + 12 + 4 * (js % 2)


def rd3(a, lg, js, nt):
    jj = js % 6
    if jj in (0, 1):
        a('v_add_u32 v%d, s%d, v%d' % (V_RC + 2 * (js & 1) + nt, S_RBD + nt, V_RC + 2 * (js & 1) + nt))
    for e2 in range(2):
        a('ds_read_b64_tr_b16 %s, v%d offset:%d' % (
            vr(WB3(js, nt) + 2 * e2, 2), V_RC + 2 * (js & 1) + nt, (32 * jj + 4 * e2) * 128))
        lg.add('w%d_%d' % (js, nt))
    if jj == 1:
        a('s_add_u32 s%d, s%d, %d' % (S_RB + 0 if nt == 0 else S_RB1, S_RB if nt == 0 else S_RB1, P1_STG))
        r = S_RB if nt == 0 else S_RB1
        a('s_cmp_ge_u32 s%d, %d' % (r, P1_RING))
        a('s_cselect_b32 s%d, 0, s%d' % (r, r))
        a('s_mov_b32 s%d, %d' % (S_RBD + nt, P1_STG - P1_RING))
        a('s_cselect_b32 s%d, s%d, %d' % (S_RBD + nt, S_RBD + nt, P1_STG))


def get_nonce(a):
    Lw = a.newlabel('p1_nw')
    Lg = a.newlabel('p1_ng')
    Lb = a.newlabel('p1_nb')
    a('s_cmp_lg_u32 s%d, 0' % S_WAVE)
    a('s_cbranch_scc1 %s' % Lb)
    a('s_mov_b32 s%d, 0' % S_SPIN)
    a('v_mov_b32 v%d, 0' % V_TT)
    a.label(Lw)
    a('v_readfirstlane_b32 s%d, v%d' % (S_NONCE, V_NN))
    a('s_add_u32 s%d, s%d, 1' % (S_SPIN, S_SPIN))
    a('s_cmp_lg_u32 s%d, 0' % S_NONCE)
    a('s_cbranch_scc1 %s' % Lg)
    a('s_sleep 4')
    a('buffer_load_dword v%d, v%d, s[%d:%d], 0 offen sc1' % (V_NN, V_TT, S_DBG, S_DBG + 3))
    a('s_waitcnt vmcnt(0)')
    a('s_cmp_lt_u32 s%d, %d' % (S_SPIN, SPIN_MAX))
    a('s_cbranch_scc1 %s' % Lw)
    a.label(Lg)
    a('v_mov_b32 v%d, %d' % (V_TT, P1_LDS - 4))
    a('ds_write_b32 v%d, v%d' % (V_TT, V_NN))
    a('s_waitcnt lgkmcnt(0)')
    a.label(Lb)


def wave_allreduce(a, v, t):
    for r in (1, 2, 4, 8):
        a('v_add_f32_dpp v%d, v%d, v%d row_ror:%d row_mask:0xf bank_mask:0xf' % (v, v, v, r))
    a('v_mov_b32 v%d, v%d' % (t, v))
    a('v_permlane16_swap_b32 v%d, v%d' % (v, t))
    a('v_add_f32 v%d, v%d, v%d' % (v, v, t))
    a('v_mov_b32 v%d, v%d' % (t, v))
    a('v_permlane32_swap_b32 v%d, v%d' % (v, t))
    a('v_add_f32 v%d, v%d, v%d' % (v, v, t))


def bf16_round(a, v):
    a('v_cvt_pk_bf16_f32 v%d, v%d, v%d' % (v, v, v))
    a('v_lshlrev_b32 v%d, 16, v%d' % (v, v))


WT_RE = 44
WT_IM = 28
WT_AS = (90, 91)
WT_LA = (94, 95)
V_NN = 27
S_RB1, S_RBD = 88, 89


def wt_loads(a, vm, rnd, SR, SI):
    L, Q = V_TT, V_TT + 1
    a('s_lshr_b32 s%d, s2, 2' % S_T1)
    a('s_and_b32 s%d, s2, 3' % S_T3)
    if rnd == 0:
        a('s_lshl_b32 s%d, s%d, 3' % (S_T3, S_T3))
        a('s_add_u32 s%d, s%d, s%d' % (S_T3, S_T3, S_WAVE))
    else:
        a('s_lshl_b32 s%d, s%d, 2' % (S_T2, S_WAVE))
        a('s_add_u32 s%d, s%d, s%d' % (S_T3, S_T3, S_T2))
        a('s_add_u32 s%d, s%d, 32' % (S_T3, S_T3))
    a('s_lshl_b32 s%d, s%d, 3' % (S_T3, S_T3))
    a('v_lshrrev_b32 v%d, 3, v0' % L)
    a('v_add_u32 v%d, s%d, v%d' % (L, S_T3, L))
    if rnd == 0:
        a('v_cmp_eq_u32 vcc, 0, v%d' % L)
        a('v_mov_b32 v%d, 288' % Q)
        a('v_cndmask_b32 v%d, v%d, v%d, vcc' % (Q, L, Q))
    else:
        a('v_mov_b32 v%d, 288' % Q)
        a('v_cmp_eq_u32 vcc, v%d, v%d' % (Q, L))
        a('v_cndmask_b32 v%d, v%d, 0, vcc' % (Q, L))
    a('v_lshlrev_b32 v%d, 13, v%d' % (Q, Q))
    a('v_and_b32 v%d, 7, v0' % V_T0)
    a('v_lshl_add_u32 v%d, v%d, 4, v%d' % (Q, V_T0, Q))
    a('s_lshl_b32 s%d, s%d, 7' % (S_T2, S_T1))
    a('v_add_u32 v%d, s%d, v%d' % (WT_AS[rnd], S_T2, Q))
    a('s_and_b32 s%d, s%d, 3' % (S_T2, S_T1))
    a('s_lshl_b32 s%d, s%d, 3' % (S_T2, S_T2))
    a('s_lshr_b32 s%d, s%d, 2' % (S_T1, S_T1))
    a('s_lshl_b32 s%d, s%d, 7' % (S_T1, S_T1))
    a('s_add_u32 s%d, s%d, s%d' % (S_T2, S_T2, S_T1))
    a('s_mul_i32 s%d, s%d, %d' % (S_T2, S_T2, DF * 2))
    if rnd == 1:
        a('v_cmp_gt_u32 vcc, 0x121, v%d' % L)
        a('v_mov_b32 v%d, 0x7fffffff' % Q)
        a('v_cndmask_b32 v%d, v%d, v%d, vcc' % (WT_AS[1], Q, WT_AS[1]))
    a('v_add_u32 v%d, s%d, v%d' % (L, S_T3, V_T0))
    a('v_lshrrev_b32 v%d, 3, v0' % V_T0)
    if rnd == 1:
        a('v_cmp_gt_u32 vcc, 0x121, v%d' % L)
    a('v_mul_u32_u24 v%d, %d, v%d' % (V_T0, DF * 2, V_T0))
    a('v_lshl_add_u32 v%d, v%d, 1, v%d' % (L, L, V_T0))
    if rnd == 1:
        a('v_cndmask_b32 v%d, v%d, v%d, vcc' % (L, Q, L))
    a('v_add_u32 v%d, s%d, v%d' % (WT_LA[rnd], S_T2, L))


def wt_issue(a, vm, rnd, SR, SI, es):
    for e in es:
        a('s_mov_b32 s%d, %d' % (S_T3, 32 * e * DF * 2))
        a('buffer_load_ushort v%d, v%d, s[%d:%d], s%d offen' % (WT_RE + 4 * rnd + e, WT_LA[rnd], SR, SR + 3, S_T3))
        a('buffer_load_ushort v%d, v%d, s[%d:%d], s%d offen' % (WT_IM + 4 * rnd + e, WT_LA[rnd], SI, SI + 3, S_T3))
        vm.add('wt', 2)


def wt_stores(a, vm, SW):
    vm.wait('wt')
    srd(a, SW, 66, 67, 289 * 8192, WS_WT)
    for i in range(8):
        a('v_lshl_or_b32 v%d, v%d, 16, v%d' % (WT_IM + i, WT_IM + i, WT_RE + i))
    a('v_and_b32 v%d, 7, v0' % V_TT)
    a('v_lshrrev_b32 v%d, 3, v0' % (V_TT + 1))
    a('v_lshl_add_u32 v%d, v%d, 3, v%d' % (V_TT, V_TT, V_TT + 1))
    a('v_lshlrev_b32 v%d, 2, v%d' % (V_TT, V_TT))
    for i in range(8):
        a('ds_bpermute_b32 v%d, v%d, v%d' % (WT_RE + i, V_TT, WT_IM + i))
    a('s_waitcnt lgkmcnt(0)')
    for rnd in range(2):
        a('buffer_store_dwordx4 %s, v%d, s[%d:%d], 0 offen sc1' % (vr(WT_RE + 4 * rnd, 4), WT_AS[rnd], SW, SW + 3))
        vm.add('wts')


def p1_body(a, st_flags='', instr=False, mega=True):
    vm = Cnt(a, 'vmcnt', 63)
    lg = Cnt(a, 'lgkmcnt', 15)
    sp = Stamps(a, 21, 70, 72, instr)
    if instr:
        a('s_memtime s[74:75]')
    a('s_memrealtime s[76:77]')
    a('s_load_dwordx2 s[4:5], s[0:1], %d' % KA_X)
    a('s_load_dwordx4 s[92:95], s[0:1], %d' % KA_WR)
    a('s_load_dwordx4 s[60:63], s[0:1], %d' % KA_W1)
    a('s_load_dwordx4 s[64:67], s[0:1], %d' % KA_DBG)
    a('s_getpc_b64 s[68:69]')
    a('s_add_u32 s68, s68, tab_T@rel32@lo+4')
    a('s_addc_u32 s69, s69, tab_T@rel32@hi+12')
    a('v_lshrrev_b32 v1, 6, v0')
    a('v_and_b32 v0, 63, v0')
    decode_ids(a, S_MT, S_KS, S_U, S_T1, S_T2)
    a('v_readfirstlane_b32 s%d, v1' % S_WAVE)
    if 'nocode' not in MODE:
        Lc = a.newlabel('p1_ct')
        a('s_cmp_lg_u32 s%d, 7' % S_WAVE)
        a('s_cbranch_scc1 %s' % Lc)
        a('s_getpc_b64 s[%d:%d]' % (S_H, S_H + 1))
        a.label('code_here')
        a('s_and_b32 s%d, s%d, 0xffff' % (S_H + 1, S_H + 1))
        a('s_mov_b32 s%d, code_end-code_here' % (S_H + 2))
        a('s_mov_b32 s%d, 0x20000' % (S_H + 3))
        a('s_lshr_b32 s%d, s2, 3' % S_T1)
        a('s_lshl_b32 s%d, s%d, 13' % (S_T1, S_T1))
        a('v_lshlrev_b32 v%d, 7, v0' % V_T0)
        a('buffer_load_dword v%d, v%d, s[%d:%d], s%d offen' % (V_DUM, V_T0, S_H, S_H + 3, S_T1))
        a.label(Lc)
    a('s_lshr_b32 s%d, s%d, 2' % (S_G, S_WAVE))
    a('s_and_b32 s%d, s%d, 3' % (S_WR, S_WAVE))
    a('s_cmp_eq_u32 s%d, 0' % S_KS)
    a('s_cselect_b32 s%d, 3, 2' % S_NT_)
    a('s_cselect_b32 s%d, 0, 1' % S_TB)
    a('s_lshl_b32 s%d, s%d, 1' % (S_T1, S_KS))
    a('s_add_u32 s%d, s%d, s%d' % (S_TB, S_TB, S_T1))
    a('s_add_u32 s%d, s%d, 72' % (S_TB, S_TB))
    a('s_or_b32 s%d, s%d, s%d' % (S_T1, S_KS, S_U))
    a('s_cmp_eq_u32 s%d, 0' % S_T1)
    a('s_cselect_b32 s%d, 6, 5' % S_CNT)
    a('s_mul_i32 s%d, s%d, 3072' % (S_DW, S_WAVE))
    a('s_cmp_eq_u32 s%d, 0' % S_U)
    a('s_cselect_b32 s%d, s%d, 99' % (S_FTR, S_CNT))
    a('s_cselect_b32 s%d, 99, s%d' % (S_GPR, S_CNT))
    a('v_lshrrev_b32 v108, 3, v0')
    a('v_and_b32 v109, 7, v0')
    a('v_bfe_u32 v104, v0, 4, 1')
    a('s_mul_i32 s%d, s%d, 3' % (S_T1, S_WAVE))
    for i in range(3):
        a('s_add_u32 s%d, s%d, %d' % (S_T2, S_T1, i))
        a('s_lshl_b32 s%d, s%d, 3' % (S_T3, S_T2))
        a('v_add_u32 v106, s%d, v108' % S_T3)
        a('s_and_b32 s%d, s%d, 1' % (S_T2, S_T2))
        a('s_lshl_b32 s%d, s%d, 1' % (S_T2, S_T2))
        a('v_add_u32 v105, s%d, v104' % S_T2)
        a('v_lshlrev_b32 v105, 1, v105')
        a('v_xor_b32 v105, v105, v109')
        a('v_lshl_or_b32 v%d, v105, 20, v106' % (V_DKJ + i))
    a('s_lshl_b32 s%d, s%d, 2' % (S_N2, S_MT))
    a('s_lshr_b32 s%d, s%d, 1' % (S_T1, S_WAVE))
    a('s_add_u32 s%d, s%d, s%d' % (S_T1, S_T1, S_N2))
    a('s_and_b32 s%d, s%d, 1' % (S_T2, S_WAVE))
    a('s_lshl_b32 s%d, s%d, 6' % (S_T2, S_T2))
    a('s_add_u32 s%d, s%d, s%d' % (S_T1, S_T1, S_T2))
    a('s_add_u32 s%d, s%d, s%d' % (S_N2, S_N2, S_WR))
    for i in range(2):
        a('v_add_u32 v104, %d, v108' % (8 * i))
        a('v_lshrrev_b32 v105, 1, v104')
        a('v_xor_b32 v105, v105, v109')
        a('v_lshlrev_b32 v104, 7, v104')
        a('v_add_u32 v104, s%d, v104' % S_T1)
        a('v_mul_u32_u24 v104, %d, v104' % (D * 2))
        a('v_lshl_add_u32 v%d, v105, 4, v104' % (V_XO + i))
    a('s_mov_b32 s%d, 0' % S_P)
    a('s_mov_b32 s%d, 0' % S_WBASE)
    a('s_mov_b32 s%d, 0x20000' % (S_LD + 3))
    a('s_waitcnt lgkmcnt(0)')
    srd(a, S_X, 4, 5, S * D * 2)
    srd(a, S_W1, 60, 61, D * F * 2)
    srd(a, S_T, 68, 69, D * D * 2)
    set_load_panel(a, S_P)
    if 'not0' not in MODE:
        a('v_mul_u32_u24 v100, 57, v0')
        a('v_lshrrev_b32 v100, 9, v100')
        a('v_mul_u32_u24 v101, 9, v100')
        a('v_sub_u32 v101, v0, v101')
        a('s_lshl_b32 s%d, s%d, 2' % (S_T1, S_WAVE))
        a('v_add_u32 v102, s%d, v100' % S_T1)
        a('v_and_b32 v103, 15, v102')
        a('v_lshrrev_b32 v102, 4, v102')
        a('v_lshl_add_u32 v102, v103, 1, v102')
        a('s_lshl_b32 s%d, s%d, 2' % (S_T1, S_MT))
        a('s_add_u32 s%d, s%d, s%d' % (S_T1, S_T1, S_U))
        a('v_lshl_add_u32 v102, v102, 6, s%d' % S_T1)
        a('v_mul_u32_u24 v102, %d, v102' % (D * 2))
        a('v_lshl_add_u32 v102, v101, 7, v102')
        a('v_cmp_gt_u32 vcc, 36, v0')
        a('v_mov_b32 v103, 0x7fffffff')
        a('v_cndmask_b32 v102, v103, v102, vcc')
        a('buffer_load_dword v%d, v102, s[%d:%d], 0 offen' % (V_DUM, S_X, S_X + 3))
        a('s_and_b32 s%d, s%d, 7' % (S_T1, S_MT))
        a('s_lshl_b32 s%d, s%d, 3' % (S_T1, S_T1))
        a('s_add_u32 s%d, s%d, s%d' % (S_T1, S_T1, S_WAVE))
        a('s_mul_i32 s%d, s%d, 9' % (S_T1, S_T1))
        a('v_min_u32 v101, 8, v0')
        a('v_add_u32 v101, s%d, v101' % S_T1)
        a('v_mul_lo_u32 v101, v101, s%d' % S_PITCH)
        a('buffer_load_dword v%d, v101, s[%d:%d], s%d offen' % (V_DUM, S_LD, S_LD + 3, S_LOFF))
        vm.add('tch', 2)
    dma_x(a, vm, 0, 0)
    dma_x(a, vm, 1, 1)

    def wst(st):
        for i in range(3):
            dma_one(a, st, i)
            vm.add('d%d' % st)
        adv(a, S_WBASE)
    wst(0)
    for pc in range(2, 5):
        dma_x(a, vm, pc, pc)
    srd(a, S_DBG, 64, 65, 256)
    Ln = a.newlabel('p1_nn')
    a('s_or_b32 s%d, s2, s%d' % (S_T1, S_WAVE))
    a('s_cmp_lg_u32 s%d, 0' % S_T1)
    a('s_cbranch_scc1 %s' % Ln)
    a('s_or_b32 s%d, s76, 1' % S_T1)
    a('v_mov_b32 v104, s%d' % S_T1)
    a('v_mov_b32 v105, 0')
    a('buffer_store_dword v104, v105, s[%d:%d], 0 offen sc1' % (S_DBG, S_DBG + 3))
    a.label(Ln)
    if instr:
        sp.init()
        a('v_writelane_b32 v21, s74, 0')
        a('v_writelane_b32 v21, s76, 62')
        a('s_mov_b32 s70, 48')
        sp.stamp()
    srd(a, S_PG, 66, 67, 64 * 64, WS_PROG)
    a('s_lshl_b32 s%d, s%d, 2' % (S_PGO, S_MT))
    a('s_add_u32 s%d, s%d, s%d' % (S_PGO, S_PGO, S_KS))
    a('s_lshl_b32 s%d, s%d, 4' % (S_PGO, S_PGO))
    a('s_add_u32 s%d, s%d, s%d' % (S_PGO, S_PGO, S_U))
    a('s_lshl_b32 s%d, s%d, 2' % (S_PGO, S_PGO))
    MK, MN = S_SPIN, S_PREV
    a('s_and_b32 s%d, s%d, 1' % (MK, S_WR))
    a('s_lshr_b32 s%d, s%d, 1' % (MN, S_WR))
    a('s_lshl_b32 s%d, s%d, 11' % (S_R0, S_G))
    a('s_xor_b32 s%d, s%d, 2048' % (S_R1, S_R0))
    a('s_lshl_b32 s%d, s%d, 16' % (S_N0, MN))
    a('s_xor_b32 s%d, s%d, 0x10000' % (S_N1, S_N0))
    a('v_and_b32 v110, 15, v0')
    a('v_lshrrev_b32 v111, 4, v0')
    a('v_and_b32 v105, 1, v111')
    a('v_xor_b32 v105, s%d, v105' % MN)
    a('v_lshrrev_b32 v106, 1, v111')
    a('v_lshl_add_u32 v105, v105, 1, v106')
    a('v_lshrrev_b32 v106, 2, v110')
    a('v_and_b32 v106, 2, v106')
    a('v_xor_b32 v105, v105, v106')
    a('v_lshlrev_b32 v104, 6, v110')
    a('v_lshl_add_u32 v104, v105, 4, v104')
    a('s_mul_i32 s%d, s%d, %d' % (S_T3, S_MT, 72 * 16384))
    a('s_lshl_b32 s%d, s%d, 11' % (S_T2, S_WR))
    a('s_add_u32 s%d, s%d, s%d' % (S_T3, S_T3, S_T2))
    a('s_lshl_b32 s%d, s%d, 13' % (S_T2, S_G))
    a('s_add_u32 s%d, s%d, s%d' % (S_T3, S_T3, S_T2))
    a('v_add_u32 v%d, s%d, v104' % (V_HA, S_T3))
    a('v_lshlrev_b32 v104, 14, v111')
    a('v_lshl_add_u32 v104, v110, 3, v104')
    a('s_lshl_b32 s%d, s%d, 17' % (S_T3, S_G))
    a('s_lshl_b32 s%d, s%d, 7' % (S_T2, S_N2))
    a('s_add_u32 s%d, s%d, s%d' % (S_T3, S_T3, S_T2))
    a('v_add_u32 v%d, s%d, v104' % (V_RTA, S_T3))
    a('s_lshl_b32 s%d, s%d, 7' % (S_T3, S_G))
    a('s_lshl_b32 s%d, s%d, 6' % (S_T2, MN))
    a('s_add_u32 s%d, s%d, s%d' % (S_T3, S_T3, S_T2))
    a('v_lshl_add_u32 v104, v111, 4, s%d' % S_T3)
    a('v_xor_b32 v105, 64, v104')
    a('v_add_u32 v%d, %d, v104' % (V_CSA, P1_CBL))
    a('v_add_u32 v%d, %d, v105' % (V_CSA + 1, P1_CBL))
    a('v_add_u32 v%d, %d, v104' % (V_CXA, P1_CSX))
    a('v_add_u32 v%d, %d, v105' % (V_CXA + 1, P1_CSX))
    a('s_lshl_b32 s%d, s%d, 8' % (S_T2, MK))
    a('v_add_u32 v%d, s%d, v%d' % (V_CXW, S_T2, V_CXA))
    a('s_lshl_b32 s%d, s%d, 12' % (S_T3, S_WR))
    a('s_add_u32 s%d, s%d, %d' % (S_T3, S_T3, P1_XB))
    a('v_lshrrev_b32 v104, 1, v110')
    a('v_xor_b32 v104, v104, v111')
    a('s_lshl_b32 s%d, s%d, 2' % (S_T2, MK))
    a('v_xor_b32 v104, s%d, v104' % S_T2)
    a('v_lshlrev_b32 v105, 7, v110')
    a('v_add_u32 v105, s%d, v105' % S_T3)
    a('v_lshl_add_u32 v106, v104, 4, v105')
    a('v_xor_b32 v104, 4, v104')
    a('v_lshl_add_u32 v107, v104, 4, v105')
    for rt in range(2):
        for j in range(2):
            a('v_add_u32 v%d, s%d, v%d' % (V_XR + 2 * rt + j, S_R0 + rt, 106 + j))
            a('v_add_u32 v%d, 0x10000, v%d' % (V_XR + 4 + 2 * rt + j, V_XR + 2 * rt + j))
    a('v_bfe_u32 v104, v0, 2, 2')
    a('v_and_b32 v105, 3, v0')
    a('v_lshl_add_u32 v106, v111, 3, v104')
    a('v_lshlrev_b32 v106, 7, v106')
    a('v_and_b32 v107, 1, v105')
    a('v_lshl_add_u32 v106, v107, 3, v106')
    a('v_lshrrev_b32 v107, 1, v104')
    a('v_and_b32 v108, 1, v111')
    a('v_lshl_add_u32 v107, v108, 1, v107')
    a('v_lshlrev_b32 v107, 1, v107')
    a('v_lshrrev_b32 v108, 1, v105')
    a('s_lshl_b32 s%d, s%d, 2' % (S_T3, S_G))
    a('s_lshl_b32 s%d, s%d, 1' % (S_T2, MN))
    a('s_add_u32 s%d, s%d, s%d' % (S_T3, S_T3, S_T2))
    a('s_lshl_b32 s%d, s%d, 12' % (S_T2, MK))
    a('v_add_u32 v109, s%d, v108' % S_T3)
    a('v_xor_b32 v109, v109, v107')
    for nt in range(2):
        if nt:
            a('v_xor_b32 v109, 2, v109')
        a('v_lshl_add_u32 v104, v109, 4, v106')
        a('v_add_u32 v%d, s%d, v104' % (V_RC + nt, S_T2))
        a('v_subrev_u32 v%d, s%d, v104' % (V_RC + 2 + nt, S_T2))
    for i in range(4):
        a('v_mov_b32 v%d, 0x3f803f80' % (V_ONE + i))
    a('s_mov_b32 s%d, 0' % S_RB)
    a('s_mov_b32 s%d, 0' % S_RB1)
    a('s_mov_b32 s%d, 0' % S_RBD)
    a('s_mov_b32 s%d, 0' % (S_RBD + 1))
    panel_id(a, S_CUR, S_P)
    wt_loads(a, vm, 0, S_H, S_RT)
    wt_loads(a, vm, 1, S_H, S_RT)
    if instr:
        a('s_mov_b32 s70, 1')
    vm.wait('x4')
    sp.stamp()
    a('s_barrier')
    rd3(a, lg, 0, 0)
    rd3(a, lg, 0, 1)
    rd3(a, lg, 1, 0)
    for pc in range(2):
        xreads(a, lg, pc, pc)
    wst(1)
    srd(a, S_H, 92, 93, S * DF * 2)
    srd(a, S_RT, 94, 95, S * DF * 2)
    wst(2)
    if 'notouch' not in MODE:
        touch_w(a, 1)
    if 'tx' in MODE:
        Lx = a.newlabel('p1_tx')
        a('s_sub_u32 s%d, s%d, 4' % (S_T1, S_WAVE))
        a('s_cmp_gt_u32 s%d, 1' % S_T1)
        a('s_cbranch_scc1 %s' % Lx)
        a('s_lshl_b32 s%d, s%d, 6' % (S_T1, S_T1))
        a('s_lshl_b32 s%d, s%d, 2' % (S_T2, S_MT))
        a('s_add_u32 s%d, s%d, s%d' % (S_T1, S_T1, S_T2))
        a('s_add_u32 s%d, s%d, s%d' % (S_T1, S_T1, S_U))
        a('s_mul_i32 s%d, s%d, %d' % (S_T1, S_T1, D * 2))
        a('v_lshrrev_b32 v104, 2, v0')
        a('v_mul_u32_u24 v104, %d, v104' % (128 * D * 2))
        a('v_and_b32 v105, 3, v0')
        a('v_lshl_add_u32 v104, v105, 7, v104')
        a('buffer_load_dword v%d, v104, s[%d:%d], s%d offen offset:640' % (V_DUM, S_X, S_X + 3, S_T1))
        a.label(Lx)
    for pc in range(2, 5):
        xreads(a, lg, pc, pc)
    srd(a, S_B1, 62, 63, F * 2)
    panel_id(a, S_T4, S_WAVE)
    a('s_lshl_b32 s%d, s%d, 7' % (S_T4, S_T4))
    a('v_lshlrev_b32 v92, 1, v0')
    a('buffer_load_ushort v93, v92, s[%d:%d], s%d offen' % (S_B1, S_B1 + 3, S_T4))
    vm.add('b1')
    a('s_mov_b32 s%d, 1' % S_T4)
    set_load_panel(a, S_T4)
    a('s_cmp_eq_u32 s%d, 0' % S_WAVE)
    a('s_cselect_b32 s%d, 0, 0x7fffffff' % S_T1)
    a('v_mov_b32 v%d, 0' % V_TT)
    a('buffer_load_dword v%d, v%d, s[%d:%d], s%d offen' % (V_NN, V_TT, S_DBG, S_DBG + 3, S_T1))
    vm.add('nn')
    lg.wait_all()
    a('s_barrier')
    S_ = sp if instr else None
    sp.rstamp(54)
    if 'prio' in MODE:
        Lq = a.newlabel('p1_prio')
        a('s_cmp_eq_u32 s%d, 0' % S_G)
        a('s_cbranch_scc1 %s' % Lq)
        a('s_setprio 1')
        a.label(Lq)
    body(a, vm, lg, 'first', 0, st_flags, S_)
    q_lg = ['w0_0'] * 2 + ['w0_1'] * 2 + ['w1_0'] * 2 + ['cw']
    q_first = list(vm.q)

    def run(kind, par, q_in):
        lg.q = list(q_lg)
        vm.q = list(q_in)
        body(a, vm, lg, kind, par, st_flags, S_)
        assert lg.q == q_lg, (lg.q, q_lg)
        return list(vm.q)

    LT = a.newlabel('p1_bT')
    L0 = a.newlabel('p1_b0')
    LE0 = a.newlabel('p1_e0')
    LE1 = a.newlabel('p1_e1')
    LX = a.newlabel('p1_x')
    sp.rstamp(55)
    a('s_cmp_ge_u32 s%d, 72' % S_PREV)
    a('s_cbranch_scc1 %s' % LT)
    run('W1', 1, q_first)
    a('s_branch %s' % L0)
    a.label(LT)
    run('T1', 1, q_first)
    qM = ['d1', 'd2', 'es', 'd0']
    a.label(L0)
    q2 = run('W', 0, qM)
    assert q2[-1] == 'd0' and 'es' in q2, q2
    a('s_cmp_ge_u32 s%d, s%d' % (S_P, S_CNT))
    a('s_cbranch_scc1 %s' % LE0)
    run('W', 1, qM)
    a('s_cmp_lt_u32 s%d, s%d' % (S_P, S_CNT))
    a('s_cbranch_scc1 %s' % L0)
    for par, L in ((1, LE1), (0, LE0)):
        a.label(L)
        sp.stamp()
        a('s_waitcnt lgkmcnt(0)')
        a('s_barrier')
        lg.q = []
        epi_loads(a, lg, False)
        lg.wait('el')
        for t in epi_ops(ACCS[par], False, st_flags):
            emit_epi(a, vm, t)
        a('s_branch %s' % LX)
    for Ls, Lb, fn in COLD:
        a.label(Ls)
        fn()
        a('s_branch %s' % Lb)
    del COLD[:]
    a.label(LX)
    return sp
```

```python
import struct
from asmlib import *
from layout import *
from k_g2 import decode_ids
MODE = ''
MEGA = True
HOOK = {}
COLD = []
WTJ = 14
S_GPR = 101
S_FTR = 78

P1_STG = 24576
P1_RING = 6 * P1_STG
P1_XB = 3 * P1_STG
P1_CBL = P1_XB + 5 * 16384
P1_CSX = P1_CBL + 2048
P1_STX = P1_CSX + 512
P1_LDS = 163840

XF = 112
ACCS = (96, 80)
WB = 56
V_RC = 2
V_DKJ = 6
V_DO = 9
V_CSA = 12
V_CXA = 14
V_ST = 16
V_CXW = 20
V_ONE = 22
V_DUM = 26
V_BF = 28
V_CS = 36
V_O = 44
V_HA = 52
V_RTA = 53
V_TT = 54
V_T0 = 1
V_CSP = 76
V_XO = 80
V_XR = 82


def WBUF(buf, nt):
    return WB + 4 * ((2 * buf + nt) % 5)


S_X, S_W1, S_T, S_LD, S_H, S_RT, S_B1 = 8, 12, 16, 20, 24, 28, 32
S_R0, S_R1, S_N0, S_N1 = 80, 81, 82, 83
S_WAVE, S_G, S_WR, S_MT, S_U, S_KS = 36, 37, 38, 39, 40, 41
S_CNT, S_P, S_RB, S_WBASE, S_PITCH, S_LOFF = 42, 43, 44, 45, 46, 47
S_CUR, S_PREV, S_NT_, S_TB, S_T1, S_T2, S_T3 = 48, 49, 50, 51, 52, 53, 54
S_DW, S_T4, S_NONCE, S_N2, S_SPIN = 55, 56, 57, 58, 59
S_DBG = 84
S_PG = 96
S_PGO = 79
SPIN_MAX = 20000


def f32h(x):
    return '0x%08x' % struct.unpack('<I', struct.pack('<f', x))[0]


def panel_id(a, dst, ridx):
    a('s_lshl_b32 s%d, s%d, 2' % (S_T1, ridx))
    a('s_add_u32 s%d, s%d, s%d' % (S_T1, S_T1, S_U))
    a('s_add_u32 s%d, s%d, s%d' % (S_T2, S_T1, S_TB))
    a('s_mul_i32 s%d, s%d, 18' % (S_T3, S_KS))
    a('s_add_u32 s%d, s%d, s%d' % (S_T3, S_T3, S_T1))
    a('s_sub_u32 s%d, s%d, s%d' % (S_T3, S_T3, S_NT_))
    a('s_cmp_lt_u32 s%d, s%d' % (S_T1, S_NT_))
    a('s_cselect_b32 s%d, s%d, s%d' % (dst, S_T2, S_T3))


def set_load_panel(a, ridx, g2pre=False):
    panel_id(a, S_T1, ridx)
    a('s_cmp_lt_u32 s%d, 72' % S_T1)
    a('s_cselect_b32 s%d, s%d, s%d' % (S_LD, S_W1, S_T))
    a('s_cselect_b32 s%d, s%d, s%d' % (S_LD + 1, S_W1 + 1, S_T + 1))
    a('s_cselect_b32 s%d, s%d, s%d' % (S_LD + 2, S_W1 + 2, S_T + 2))
    a('s_cselect_b32 s%d, 8, 1' % S_PITCH)
    a('s_cselect_b32 s%d, 0, 72' % S_T2)
    a('s_mul_i32 s%d, s%d, %d' % (S_PITCH, S_PITCH, D * 2))
    a('s_sub_u32 s%d, s%d, s%d' % (S_T1, S_T1, S_T2))
    a('s_lshl_b32 s%d, s%d, 7' % (S_LOFF, S_T1))
    a('s_cmp_lt_u32 s%d, s%d' % (ridx, S_CNT))
    a('s_cselect_b32 s%d, s%d, 0' % (S_LD + 2, S_LD + 2))
    a('s_cmp_eq_u32 s%d, s%d' % (ridx, S_FTR))
    a('s_cselect_b32 s%d, s%d, s%d' % (S_LD, S_T, S_LD))
    a('s_cselect_b32 s%d, s%d, s%d' % (S_LD + 1, S_T + 1, S_LD + 1))
    a('s_cselect_b32 s%d, %d, s%d' % (S_LD + 2, 2 * D * D * 2 + 61440, S_LD + 2))
    a('s_cselect_b32 s%d, 128, s%d' % (S_PITCH, S_PITCH))
    a('s_cselect_b32 s%d, %d, s%d' % (S_LOFF, 2 * D * D * 2, S_LOFF))
    for i in range(3):
        a('v_and_b32 v%d, 0xffff, v%d' % (V_TT, V_DKJ + i))
        a('v_lshrrev_b32 v%d, 16, v%d' % (V_TT + 1, V_DKJ + i))
        a('v_mad_u32_u24 v%d, v%d, s%d, v%d' % (V_DO + i, V_TT, S_PITCH, V_TT + 1))
    if g2pre:
        L = a.newlabel('p1_g2p')
        a('s_cmp_lg_u32 s%d, s%d' % (ridx, S_GPR))
        a('s_cbranch_scc1 %s' % L)
        srd(a, S_LD, 92, 93, F * D * 2)
        a('s_mov_b32 s%d, 384' % S_PITCH)
        a('s_mul_i32 s%d, s%d, %d' % (S_LOFF, S_KS, 1152 * D * 2))
        a('s_mul_i32 s%d, s%d, 384' % (S_T1, S_U))
        a('s_add_u32 s%d, s%d, s%d' % (S_LOFF, S_LOFF, S_T1))
        a('s_sub_u32 s%d, s%d, 384' % (S_LOFF, S_LOFF))
        for i in range(3):
            a('v_and_b32 v%d, 63, v%d' % (V_TT, V_DKJ + i))
            a('v_lshrrev_b32 v%d, 16, v%d' % (V_TT + 1, V_DKJ + i))
            a('v_mul_u32_u24 v%d, %d, v%d' % (V_TT, D * 2, V_TT))
            a('v_add_u32 v%d, v%d, v%d' % (V_TT, V_TT, V_TT + 1))
            a('v_bfe_u32 v%d, v%d, 6, 2' % (V_TT + 1, V_DKJ + i))
            a('v_lshl_add_u32 v%d, v%d, 7, v%d' % (V_DO + i, V_TT + 1, V_TT))
        a.label(L)


def dma_one(a, st, i):
    a('s_mul_i32 s%d, s%d, %d' % (S_T1, S_PITCH, 192 * st))
    a('s_add_u32 s%d, s%d, s%d' % (S_T2, S_WBASE, S_DW))
    a('s_add_u32 m0, s%d, %d' % (S_T2, 1024 * i))
    a('s_add_u32 s%d, s%d, s%d' % (S_T1, S_T1, S_LOFF))
    a('buffer_load_dwordx4 v%d, s[%d:%d], s%d offen %slds' % (V_DO + i, S_LD, S_LD + 3, S_T1, 'nt ' if 'ldnt' in MODE else ''))


def dma_x(a, vm, piece, slot):
    a('s_lshl_b32 s%d, s%d, 11' % (S_T2, S_WAVE))
    for i in range(2):
        a('s_add_u32 m0, s%d, %d' % (S_T2, P1_XB + 16384 * slot + 1024 * i - 128 * piece))
        a('buffer_load_dwordx4 v%d, s[%d:%d], 0 offen offset:%d lds' % (V_XO + i, S_X, S_X + 3, 128 * piece))
        vm.add('x%d' % piece)


def xreads(a, lg, piece, slot):
    for j in range(2):
        for rt in range(2):
            a('ds_read_b128 %s, v%d offset:%d' % (
                vr(XF + 72 * rt + 4 * (2 * piece + j), 4), V_XR + 2 * rt + j + (4 if slot == 4 else 0),
                16384 * (slot % 4)))
            lg.add('xr%d' % piece)


def adv(a, s):
    a('s_add_u32 s%d, s%d, %d' % (s, s, P1_STG))
    a('s_cmp_ge_u32 s%d, %d' % (s, P1_RING))
    a('s_cselect_b32 s%d, 0, s%d' % (s, s))


def epi_loads(a, lg, stats):
    for nt in range(2):
        a('ds_read_b128 %s, v%d' % (vr(V_CS + 4 * nt, 4), V_CXA + nt))
        a('ds_read_b128 %s, v%d offset:256' % (vr(V_O + 4 * nt, 4), V_CXA + nt))
        a('ds_read_b128 %s, v%d' % (vr(V_BF + 4 * nt, 4), V_CSA + nt))
        lg.add('el', 3)
        a('v_add_u32 v%d, 256, v%d' % (V_CSA + nt, V_CSA + nt))
    if stats:
        stats_loads(a, lg)


def stats_loads(a, lg):
    a('v_and_b32 v%d, 15, v0' % V_TT)
    a('s_lshl_b32 s%d, s%d, 8' % (S_T1, S_WR))
    a('s_add_u32 s%d, s%d, %d' % (S_T1, S_T1, P1_STX))
    a('v_lshl_add_u32 v%d, v%d, 3, s%d' % (V_TT, V_TT, S_T1))
    for rt in range(2):
        a('s_lshr_b32 s%d, s%d, 4' % (S_T1, S_R0 + rt))
        a('v_add_u32 v%d, s%d, v%d' % (V_TT + 1, S_T1, V_TT))
        a('ds_read_b64 %s, v%d' % (vr(V_ST + 2 * rt, 2), V_TT + 1))
        if lg:
            lg.add('el')


def epi_ops(acc, isT, st_flags):
    o = []
    for i in range(8):
        o.append('v_add_f32 v%d, v%d, v%d' % (V_CS + i, V_CS + i, V_O + i))
    for rt in range(2):
        for nt in range(2):
            for r2 in range(2):
                t = acc + 8 * rt + 4 * nt + 2 * r2
                for e in range(2):
                    o.append('v_fma_f32 v%d, -v%d, v%d, v%d' % (
                        t + e, V_ST + 2 * rt + 1, V_CS + 4 * nt + 2 * r2 + e, t + e))
                if isT:
                    for e in range(2):
                        o.append('v_mul_f32 v%d, v%d, v%d' % (t + e, V_ST + 2 * rt, t + e))
                    o.append('v_cvt_pk_bf16_f32 v%d, v%d, v%d' % (V_O + 4 * nt + 2 * r2 + rt, t, t + 1))
                else:
                    for e in range(2):
                        o.append('v_fma_f32 v%d, v%d, v%d, v%d' % (
                            t + e, V_ST + 2 * rt, t + e, V_BF + 4 * nt + 2 * r2 + e))
                    for e in range(2):
                        o.append('v_max_f32 v%d, 0, v%d' % (t + e, t + e))
                    for e in range(2):
                        o.append('v_mul_f32 v%d, v%d, v%d' % (t + e, t + e, t + e))
                    o.append('v_cvt_pk_bf16_f32 v%d, v%d, v%d' % (V_O + 4 * rt + 2 * nt + r2, t, t + 1))
        if not isT:
            o.append('s_lshl_b32 s%d, s%d, 15\ns_add_u32 s%d, s%d, s%d\ns_lshr_b32 s%d, s%d, 1' % (S_T4, S_PREV, S_T4, S_T4, S_R0 + rt, S_T4, S_T4))
            for d in range(2):
                o.append('v_permlane16_swap_b32 v%d, v%d' % (V_O + 4 * rt + d, V_O + 4 * rt + 2 + d))
            o.append('buffer_store_dwordx4 %s, v%d, s[%d:%d], s%d offen %s' % (
                vr(V_O + 4 * rt, 4), V_HA, S_H, S_H + 3, S_T4, st_flags))
    if isT:
        o.append('SWAP_RT')
        for nt in range(2):
            for pp in range(2):
                o.append('s_sub_u32 s%d, s%d, 72\ns_lshl_b32 s%d, s%d, 18\ns_add_u32 s%d, s%d, s%d\ns_add_u32 s%d, s%d, %d\n' % (
                    S_T4, S_PREV, S_T4, S_T4, S_T4, S_T4, S_N0 + nt, S_T4, S_T4, pp * 8192) +
                    'buffer_store_dwordx2 %s, v%d, s[%d:%d], s%d offen %s' % (
                    vr(V_O + 4 * nt + 2 * pp, 2), V_RTA, S_RT, S_RT + 3, S_T4, st_flags))
    return o


def emit_epi(a, vm, t):
    if t == 'SWAP_RT':
        L = a.newlabel('p1_sw')
        a('s_cmp_eq_u32 s%d, 0' % S_G)
        a('s_cbranch_scc1 %s' % L)
        for k in range(4):
            a('v_swap_b32 v%d, v%d' % (V_O + 2 * k, V_O + 2 * k + 1))
        a.label(L)
        return
    a(t)
    if 'buffer_store' in t:
        vm.add('es')


def wread1(a, lg, js, k):
    jj = js % 6
    nt, e2 = k >> 1, k & 1
    a('ds_read_b64_tr_b16 %s, v%d offset:%d' % (
        vr(WBUF(js % 5, nt) + 2 * e2, 2), V_RC + 2 * (js & 1) + nt, (32 * jj + 4 * e2) * 128))
    lg.add('w%d_%d' % (js, nt))


def read_switch(a):
    a('s_add_u32 s%d, s%d, %d' % (S_RB, S_RB, P1_STG))
    a('s_cmp_ge_u32 s%d, %d' % (S_RB, P1_RING))
    a('s_cselect_b32 s%d, 0, s%d' % (S_RB, S_RB))
    a('s_mov_b32 s%d, %d' % (S_T1, P1_STG - P1_RING))
    a('s_cselect_b32 s%d, s%d, %d' % (S_T1, S_T1, P1_STG))
    for i in range(4):
        a('v_add_u32 v%d, s%d, v%d' % (V_RC + i, S_T1, V_RC + i))


def stats_finish(a, lg):
    RS, GR, T = V_CS, V_CS + 4, V_O
    a('v_and_b32 v%d, 3, v0' % T)
    a('v_cmp_eq_u32 vcc, 1, v%d' % T)
    a('v_cndmask_b32 v%d, v%d, v%d, vcc' % (GR, GR, GR + 1))
    a('v_cmp_eq_u32 vcc, 2, v%d' % T)
    a('v_cndmask_b32 v%d, v%d, v%d, vcc' % (GR, GR, GR + 2))
    a('v_cmp_eq_u32 vcc, 3, v%d' % T)
    a('v_cndmask_b32 v%d, v%d, v%d, vcc' % (GR, GR, GR + 3))
    a('v_mul_f32 v%d, %s, v%d' % (RS, f32h(1.0 / D), RS))
    a('v_mul_f32 v%d, %s, v%d' % (GR, f32h(1.0 / D), GR))
    a('v_fma_f32 v%d, -v%d, v%d, v%d' % (GR, RS, RS, GR))
    a('v_max_f32 v%d, 0, v%d' % (GR, GR))
    bf16_round(a, RS)
    bf16_round(a, GR)
    a('v_add_f32 v%d, %s, v%d' % (GR, f32h(1e-5), GR))
    bf16_round(a, GR)
    a('v_sqrt_f32 v%d, v%d' % (GR, GR))
    bf16_round(a, GR)
    a('v_rcp_f32 v%d, v%d' % (T + 2, GR))
    a('v_mov_b32 v%d, v%d' % (T + 3, RS))
    a('v_and_b32 v%d, 15, v0' % T)
    a('v_lshrrev_b32 v%d, 2, v%d' % (T + 1, T))
    a('v_lshrrev_b32 v%d, 4, v0' % (T + 4))
    a('v_cmp_eq_u32 vcc, v%d, v%d' % (T + 1, T + 4))
    a('s_lshl_b32 s%d, s%d, 8' % (S_T1, S_WR))
    a('s_lshl_b32 s%d, s%d, 7' % (S_T2, S_G))
    a('s_add_u32 s%d, s%d, s%d' % (S_T1, S_T1, S_T2))
    a('s_add_u32 s%d, s%d, %d' % (S_T1, S_T1, P1_STX))
    a('v_lshl_add_u32 v%d, v%d, 3, s%d' % (T, T, S_T1))
    a('v_mov_b32 v%d, %d' % (T + 1, P1_STX + 1024))
    a('v_cndmask_b32 v%d, v%d, v%d, vcc' % (T, T + 1, T))
    a('ds_write_b64 v%d, %s' % (T, vr(T + 2, 2)))
    lg.add('cw')


def publish(a, delta):
    L = a.newlabel('p1_pub')
    a('s_cmp_lg_u32 s%d, 0' % S_WAVE)
    a('s_cbranch_scc1 %s' % L)
    a('s_add_u32 s%d, s%d, s%d' % (S_T1, S_NONCE, S_P))
    a('s_add_i32 s%d, s%d, %d' % (S_T1, S_T1, delta))
    a('v_mov_b32 v%d, s%d' % (V_T0, S_T1))
    a('v_mov_b32 v%d, 0' % V_TT)
    a('buffer_store_dword v%d, v%d, s[%d:%d], s%d offen sc1' % (V_T0, V_TT, S_PG, S_PG + 3, S_PGO))
    a.label(L)


def prefetch2(a, Lp):
    La = a.newlabel('pf_aux')
    Lg = a.newlabel('pf_go')
    a('s_cmp_gt_u32 s%d, 2' % S_P)
    a('s_cbranch_scc1 %s' % Lp)
    a('s_cmp_eq_u32 s%d, 0' % S_U)
    a('s_cbranch_scc1 %s' % Lp)
    a('s_bfe_u32 s%d, s2, 0x10005' % S_T1)
    a('s_add_u32 s%d, s%d, 1' % (S_T1, S_T1))
    a('s_cmp_lg_u32 s%d, s%d' % (S_T1, S_P))
    a('s_cbranch_scc1 %s' % Lp)
    a('s_lshr_b32 s%d, s2, 5' % S_T1)
    a('s_lshl_b32 s%d, s%d, 3' % (S_T1, S_T1))
    a('s_sub_u32 s%d, s2, s%d' % (S_T1, S_T1))
    a('s_sub_u32 s%d, s%d, 8' % (S_T1, S_T1))
    a('s_lshl_b32 s%d, s%d, 1' % (S_T1, S_T1))
    a('s_add_u32 s%d, s%d, s%d' % (S_T1, S_T1, S_WAVE))
    a('s_sub_u32 s%d, s%d, 4' % (S_T1, S_T1))
    a.label(Lg)
    a('s_getpc_b64 s[94:95]')
    a('s_add_u32 s94, s94, tab_Tinv@rel32@lo+4')
    a('s_addc_u32 s95, s95, tab_Tinv@rel32@hi+12')
    a('s_lshl_b32 s%d, s%d, 14' % (S_T2, S_T1))
    a('s_sub_u32 s%d, s%d, %d' % (S_T3, S_T2, 324 * 16384))
    a('v_lshlrev_b32 v%d, 8, v0' % V_T0)
    a('s_cmp_lt_u32 s%d, 324' % S_T1)
    a('s_cselect_b32 s%d, s92, s94' % S_B1)
    a('s_cselect_b32 s%d, s93, s95' % (S_B1 + 1))
    a('s_cselect_b32 s%d, s%d, s%d' % (S_T2, S_T2, S_T3))
    a('s_mov_b32 s%d, %d' % (S_T3, D * D * 2 + 61440))
    a('s_cselect_b32 s%d, %d, s%d' % (S_B1 + 2, F * D * 2, S_T3))
    a('s_and_b32 s%d, s%d, 0xffff' % (S_B1 + 1, S_B1 + 1))
    a('buffer_load_dwordx2 v[%d:%d], v%d, s[%d:%d], s%d offen offset:124' % (V_DUM, V_DUM + 1, V_T0, S_B1, S_B1 + 3, S_T2))


def prefetch(a):
    a('s_getpc_b64 s[94:95]')
    a('s_add_u32 s94, s94, tab_F@rel32@lo+4')
    a('s_addc_u32 s95, s95, tab_F@rel32@hi+12')
    a('s_lshl_b32 s%d, s%d, 2' % (S_T2, S_MT))
    a('s_add_u32 s%d, s%d, s%d' % (S_T2, S_T2, S_KS))
    a('s_mul_i32 s%d, s%d, 3' % (S_T1, S_T2))
    a('s_add_u32 s%d, s%d, s%d' % (S_T1, S_T1, S_P))
    a('s_sub_u32 s%d, s%d, 1' % (S_T1, S_T1))
    a('s_mul_i32 s%d, s%d, 1457' % (S_T2, S_T1))
    a('s_lshr_b32 s%d, s%d, 16' % (S_T2, S_T2))
    a('s_mul_i32 s%d, s%d, %d' % (S_T2, S_T2, 1152 * 1152 - 45 * 16384))
    a('s_lshl_b32 s%d, s%d, 14' % (S_T3, S_T1))
    a('s_add_u32 s%d, s%d, s%d' % (S_T2, S_T2, S_T3))
    a('s_sub_u32 s%d, s%d, %d' % (S_T3, S_T3, 180 * 16384))
    a('v_lshlrev_b32 v%d, 8, v0' % V_T0)
    a('s_cmp_lt_u32 s%d, 180' % S_T1)
    a('s_cselect_b32 s%d, s92, s94' % S_B1)
    a('s_cselect_b32 s%d, s93, s95' % (S_B1 + 1))
    a('s_cselect_b32 s%d, s%d, s%d' % (S_T2, S_T2, S_T3))
    a('s_mov_b32 s%d, %d' % (S_T3, 61440))
    a('s_cselect_b32 s%d, %d, s%d' % (S_B1 + 2, F * D * 2, S_T3))
    a('s_and_b32 s%d, s%d, 0xffff' % (S_B1 + 1, S_B1 + 1))
    a('buffer_load_dwordx2 v[%d:%d], v%d, s[%d:%d], s%d offen offset:124' % (V_DUM, V_DUM + 1, V_T0, S_B1, S_B1 + 3, S_T2))


def touch_w(a, ahead):
    L = a.newlabel('p1_tw')
    a('s_cmp_lt_u32 s%d, 6' % S_WAVE)
    a('s_cbranch_scc1 %s' % L)
    a('s_add_u32 s%d, s%d, %d' % (S_T4, S_P, ahead))
    a('s_cmp_ge_u32 s%d, s%d' % (S_T4, S_CNT))
    a('s_cbranch_scc1 %s' % L)
    panel_id(a, S_T4, S_T4)
    a('s_lshl_b32 s%d, s%d, 7' % (S_T4, S_T4))
    a('s_and_b32 s%d, s%d, 7' % (S_T1, S_MT))
    a('s_lshl_b32 s%d, s%d, 1' % (S_T1, S_T1))
    a('s_add_u32 s%d, s%d, s%d' % (S_T1, S_T1, S_WAVE))
    a('s_sub_u32 s%d, s%d, 6' % (S_T1, S_T1))
    a('s_mul_i32 s%d, s%d, %d' % (S_T1, S_T1, 36 * F * 2))
    a('s_add_u32 s%d, s%d, s%d' % (S_T4, S_T4, S_T1))
    a('v_min_u32 v%d, 35, v0' % V_T0)
    a('v_mul_u32_u24 v%d, %d, v%d' % (V_T0, F * 2, V_T0))
    a('buffer_load_dword v%d, v%d, s[%d:%d], s%d offen' % (V_DUM, V_T0, S_W1, S_W1 + 3, S_T4))
    a.label(L)


def body(a, vm, lg, kind, par, st_flags, sp=None):
    first = kind == 'first'
    ACC = ACCS[par]
    PACC = ACCS[1 - par]
    fill = [] if first else epi_ops(PACC, kind == 'T1', st_flags)
    if 'novalu' in MODE:
        fill = [t for t in fill if not t.startswith('v_')]
    if 'plainst' in MODE:
        fill = [t.replace(' sc1', '') for t in fill]
    if 'oobst' in MODE:
        fill = [t.replace('s_lshl_b32 s%d, s%d, 15' % (S_T4, S_PREV), 's_mov_b32 s%d, 0x7f000000' % S_T4) for t in fill]
    E0, E1 = 6, 14
    slots = (E1 - E0 + 1) * 4
    emitted = 0

    for js in range(18):
        if sp and (js % 6 == 0 or ('fine' in MODE and (first or kind.endswith('1'))) or ('finw' in MODE and kind == 'W' and par == 1)):
            sp.stamp()
        nx1 = (js + 1) % 18
        nx2 = (js + 2) % 18

        def mf(rt, nt):
            acc = vr(ACC + 8 * rt + 4 * nt, 4)
            a('v_mfma_f32_16x16x32_bf16 %s, %s, %s, %s' % (
                acc, vr(WB3(js, nt), 4), vr(XF + 72 * rt + 4 * js, 4), '0' if js == 0 else acc))

        def filler(k):
            nonlocal emitted
            if fill and E0 <= js <= E1:
                if js == E0 and k == 0:
                    lg.wait('el')
                want = ((js - E0) * 4 + k + 1) * len(fill) // slots
                while emitted < want:
                    emit_epi(a, vm, fill[emitted])
                    emitted += 1

        lg.wait('w%d_0' % js)
        if first and js == 10:
            lg.wait('xr8')
        mf(0, 0)
        if first and js == 8:
            vm.wait('x5', 'x6', 'x7', 'x8')
            a('s_barrier')
        if first and js in (8, 9):
            xreads(a, lg, 5 + 2 * (js - 8), 2 * (js - 8))
        if (js + 2) % 6 == 0:
            st = ((js + 2) // 6) % 3
            pub = kind == 'W' and js == 4
            if pub:
                vm.wait('d%d' % st, 'es')
            else:
                vm.wait('d%d' % st)
            if js == 4:
                lg.wait('cw')
            if first and js == 16:
                vm.wait('nn')
                get_nonce(a)
            a('s_barrier')
            if pub:
                publish(a, -1)
            if first and js == 16:
                a('v_mov_b32 v%d, %d' % (V_T0, P1_LDS - 4))
                a('ds_read_b32 v%d, v%d' % (V_NN, V_T0))
                lg.add('nn')
        rd3(a, lg, nx1, 1)
        filler(0)
        mf(1, 0)
        if js % 2 == 0 and not ('nocsm' in MODE and js > 0):
            acc = vr(V_CSP, 4)
            a('v_mfma_f32_16x16x32_bf16 %s, %s, %s, %s' % (acc, vr(WB3(js, 0), 4), vr(V_ONE, 4), '0' if js == 0 else acc))
        rd3(a, lg, nx2, 0)
        if js == 16:
            a('s_add_u32 s%d, s%d, 2' % (S_T4, S_P))
            a('s_add_u32 s%d, s%d, 512' % (S_LOFF, S_LOFF))
            if kind == 'W':
                Ls = a.newlabel('p1_slp')
                Lb = a.newlabel('p1_slb')
                a('s_cmp_ge_u32 s%d, s%d' % (S_T4, S_CNT))
                a('s_cbranch_scc1 %s' % Ls)
                a.label(Lb)
                COLD.append((Ls, Lb, lambda: set_load_panel(a, S_T4, True)))
        if js == 5 and not first:
            epi_loads(a, lg, kind == 'T1')
            if kind == 'W' and par == 1:
                Ls = a.newlabel('p1_sl')
                Lb = a.newlabel('p1_slb2')
                a('s_cmp_eq_u32 s%d, 1' % S_P)
                a('s_cbranch_scc1 %s' % Ls)
                a.label(Lb)

                def sl():
                    stats_loads(a, None)
                    a('s_waitcnt lgkmcnt(0)')
                COLD.append((Ls, Lb, sl))
        if js == 5 and not first:
            Lsk = a.newlabel('p1_tsk')
            Lbk = a.newlabel('p1_tbk')
            a('s_cmp_ge_u32 s%d, 4' % S_WAVE)
            a('s_cbranch_scc1 %s' % Lsk)
            a.label(Lbk)

            def tp():
                Lp = a.newlabel('p1_pf')
                a('s_cmp_gt_u32 s%d, 5' % S_WAVE)
                a('s_cbranch_scc1 %s' % Lp)
                prefetch2(a, Lp)
                a.label(Lp)
                Lq = a.newlabel('p1_tq')
                a('s_cmp_lg_u32 s%d, 1' % S_P)
                a('s_cbranch_scc1 %s' % Lq)
                for ah in (2, 3, 4):
                    touch_w(a, ah)
                a.label(Lq)
            COLD.append((Lsk, Lbk, tp))
        if False:
            Lp = a.newlabel('p1_pf')
            a('s_sub_u32 s%d, s%d, 4' % (S_T1, S_WAVE))
            a('s_cmp_gt_u32 s%d, 1' % S_T1)
            a('s_cbranch_scc1 %s' % Lp)
            prefetch2(a, Lp)
            a.label(Lp)
        if js == 5 and first:
            touch_w(a, 2)
        if js == 11 and first and 'tz0' in MODE:
            for ah in (3, 4, 5):
                touch_w(a, ah)
        if first and js == 7 and 'tlb' in MODE:
            Lt = a.newlabel('p1_tlb')
            a('s_cmp_lg_u32 s%d, 3' % S_WAVE)
            a('s_cbranch_scc1 %s' % Lt)
            a('s_load_dwordx2 s[6:7], s[0:1], %d' % KA_OUT)
            srd(a, S_B1, 66, 67, 48 << 20)
            a('v_lshlrev_b32 v%d, %d, v0' % (V_T0, 20 if 'tlb1' in MODE else 21))
            a('buffer_load_dword v%d, v%d, s[%d:%d], 0 offen sc1' % (V_DUM, V_T0, S_B1, S_B1 + 3))
            a('s_waitcnt lgkmcnt(0)')
            srd(a, S_B1, 6, 7, S * D * 2)
            a('buffer_load_dword v%d, v%d, s[%d:%d], 0 offen sc1' % (V_DUM, V_T0, S_B1, S_B1 + 3))
            a.label(Lt)
        if first and js == 9:
            vm.wait('b1')
            a('v_lshlrev_b32 v93, 16, v93')
            a('s_lshl_b32 s%d, s%d, 8' % (S_T1, S_WAVE))
            a('s_add_u32 s%d, s%d, %d' % (S_T1, S_T1, P1_CBL))
            a('v_lshl_add_u32 v92, v0, 2, s%d' % S_T1)
            a('ds_write_b32 v92, v93')
            lg.add('bw')
        if first and js in (2, 3, 5, 6) and 'nowt' not in MODE:
            k = {2: 0, 3: 1, 5: 2, 6: 3}[js]
            wt_issue(a, vm, k >> 1, S_H, S_RT, (2 * (k & 1), 2 * (k & 1) + 1))
        if first and js == WTJ:
            if 'nowt' not in MODE:
                wt_stores(a, vm, S_H)
            srd(a, S_H, 66, 67, S * F * 2, WS_H)
            srd(a, S_RT, 66, 67, 288 * 8192, WS_RT)
            a('s_load_dwordx2 s[92:93], s[0:1], %d' % KA_W2)
            a('s_waitcnt lgkmcnt(0)')
        filler(1)
        lg.wait('w%d_1' % js)
        mf(0, 1)
        if first and not ('nostat' in MODE and js > 0):
            x0 = vr(XF + 4 * js, 4)
            a('v_mfma_f32_16x16x32_bf16 %s, %s, %s, %s' % (vr(V_CS, 4), vr(V_ONE, 4), x0, '0' if js == 0 else vr(V_CS, 4)))
        if first and js < 16:
            if js < 2:
                dma_x(a, vm, 5 + 2 * js, 2 * js)
                dma_x(a, vm, 6 + 2 * js, 2 * js + 1)
            if js >= 10:
                todo = {10: [0, 1], 11: [2, 3], 12: [4, 5], 13: [6], 14: [7], 15: [8]}[js]
                for n in todo:
                    dma_one(a, n // 3, n % 3)
                    vm.add('d%d' % (n // 3))
                    if n % 3 == 2:
                        adv(a, S_WBASE)
        elif js % 2 == 0:
            n = ((js + 2) % 18) // 2
            if js == 16 and kind == 'W':
                a('s_add_u32 s%d, s%d, 1' % (S_T1, S_P))
                a('s_cmp_ge_u32 s%d, s%d' % (S_T1, S_CNT))
                a('s_cselect_b32 s%d, 0x30000, s%d' % (S_WBASE, S_WBASE))
            dma_one(a, n // 3, n % 3)
            vm.add('d%d' % (n // 3))
            if n % 3 == 2:
                adv(a, S_WBASE)
        filler(2)
        if first and js in (8, 9):
            xreads(a, lg, 6 + 2 * (js - 8), 1 + 2 * (js - 8))
        mf(1, 1)
        if first and not ('nostat' in MODE and js > 0):
            x0 = vr(XF + 4 * js, 4)
            a('v_mfma_f32_16x16x32_bf16 %s, %s, %s, %s' % (vr(V_CS + 4, 4), x0, x0, '0' if js == 0 else vr(V_CS + 4, 4)))
        if kind == 'W' and js in (15, 17) and 'fft' in HOOK:
            Ls = a.newlabel('p1_hk')
            Lb = a.newlabel('p1_hkb')
            a('s_add_u32 s%d, s%d, 1' % (S_T1, S_P))
            a('s_cmp_eq_u32 s%d, s%d' % (S_T1, S_CNT))
            a('s_cbranch_scc1 %s' % Ls)
            a.label(Lb)

            def hk(js=js):
                L = a.newlabel('p1_gx')
                L2 = a.newlabel('p1_gy')
                a('s_cmp_lg_u32 s%d, 0' % S_U)
                a('s_cbranch_scc1 %s' % L)
                HOOK['fft'](a, js)
                a('s_branch %s' % L2)
                a.label(L)
                HOOK['g2'](a, js)
                a.label(L2)
            COLD.append((Ls, Lb, hk))
        if js == 17:
            a('ds_write_b128 v%d, %s' % (V_CXW, vr(V_CSP, 4)))
            lg.add('cw')
        filler(3)
    assert emitted == len(fill)
    if first:
        stats_finish(a, lg)
        lg.wait('nn')
        a('v_readfirstlane_b32 s%d, v%d' % (S_NONCE, V_NN))
    a('s_mov_b32 s%d, s%d' % (S_PREV, S_CUR))
    a('s_add_u32 s%d, s%d, 1' % (S_P, S_P))
    if first:
        panel_id(a, S_CUR, S_P)
    else:
        a('s_add_u32 s%d, s%d, 4' % (S_CUR, S_CUR))


def WB3(js, nt):
    return WB + 4 * (js % 3) if nt == 0 else WB + 12 + 4 * (js % 2)


def rd3(a, lg, js, nt):
    jj = js % 6
    if jj in (0, 1):
        a('v_add_u32 v%d, s%d, v%d' % (V_RC + 2 * (js & 1) + nt, S_RBD + nt, V_RC + 2 * (js & 1) + nt))
    for e2 in range(2):
        a('ds_read_b64_tr_b16 %s, v%d offset:%d' % (
            vr(WB3(js, nt) + 2 * e2, 2), V_RC + 2 * (js & 1) + nt, (32 * jj + 4 * e2) * 128))
        lg.add('w%d_%d' % (js, nt))
    if jj == 1:
        a('s_add_u32 s%d, s%d, %d' % (S_RB + 0 if nt == 0 else S_RB1, S_RB if nt == 0 else S_RB1, P1_STG))
        r = S_RB if nt == 0 else S_RB1
        a('s_cmp_ge_u32 s%d, %d' % (r, P1_RING))
        a('s_cselect_b32 s%d, 0, s%d' % (r, r))
        a('s_mov_b32 s%d, %d' % (S_RBD + nt, P1_STG - P1_RING))
        a('s_cselect_b32 s%d, s%d, %d' % (S_RBD + nt, S_RBD + nt, P1_STG))


def get_nonce(a):
    Lw = a.newlabel('p1_nw')
    Lg = a.newlabel('p1_ng')
    Lb = a.newlabel('p1_nb')
    a('s_cmp_lg_u32 s%d, 0' % S_WAVE)
    a('s_cbranch_scc1 %s' % Lb)
    a('s_mov_b32 s%d, 0' % S_SPIN)
    a('v_mov_b32 v%d, 0' % V_TT)
    a.label(Lw)
    a('v_readfirstlane_b32 s%d, v%d' % (S_NONCE, V_NN))
    a('s_add_u32 s%d, s%d, 1' % (S_SPIN, S_SPIN))
    a('s_cmp_lg_u32 s%d, 0' % S_NONCE)
    a('s_cbranch_scc1 %s' % Lg)
    a('s_sleep 4')
    a('buffer_load_dword v%d, v%d, s[%d:%d], 0 offen sc1' % (V_NN, V_TT, S_DBG, S_DBG + 3))
    a('s_waitcnt vmcnt(0)')
    a('s_cmp_lt_u32 s%d, %d' % (S_SPIN, SPIN_MAX))
    a('s_cbranch_scc1 %s' % Lw)
    a.label(Lg)
    a('v_mov_b32 v%d, %d' % (V_TT, P1_LDS - 4))
    a('ds_write_b32 v%d, v%d' % (V_TT, V_NN))
    a('s_waitcnt lgkmcnt(0)')
    a.label(Lb)


def wave_allreduce(a, v, t):
    for r in (1, 2, 4, 8):
        a('v_add_f32_dpp v%d, v%d, v%d row_ror:%d row_mask:0xf bank_mask:0xf' % (v, v, v, r))
    a('v_mov_b32 v%d, v%d' % (t, v))
    a('v_permlane16_swap_b32 v%d, v%d' % (v, t))
    a('v_add_f32 v%d, v%d, v%d' % (v, v, t))
    a('v_mov_b32 v%d, v%d' % (t, v))
    a('v_permlane32_swap_b32 v%d, v%d' % (v, t))
    a('v_add_f32 v%d, v%d, v%d' % (v, v, t))


def bf16_round(a, v):
    a('v_cvt_pk_bf16_f32 v%d, v%d, v%d' % (v, v, v))
    a('v_lshlrev_b32 v%d, 16, v%d' % (v, v))


WT_RE = 44
WT_IM = 28
WT_AS = (90, 91)
WT_LA = (94, 95)
V_NN = 27
S_RB1, S_RBD = 88, 89


def wt_loads(a, vm, rnd, SR, SI):
    L, Q = V_TT, V_TT + 1
    a('s_lshr_b32 s%d, s2, 2' % S_T1)
    a('s_and_b32 s%d, s2, 3' % S_T3)
    if rnd == 0:
        a('s_lshl_b32 s%d, s%d, 3' % (S_T3, S_T3))
        a('s_add_u32 s%d, s%d, s%d' % (S_T3, S_T3, S_WAVE))
    else:
        a('s_lshl_b32 s%d, s%d, 2' % (S_T2, S_WAVE))
        a('s_add_u32 s%d, s%d, s%d' % (S_T3, S_T3, S_T2))
        a('s_add_u32 s%d, s%d, 32' % (S_T3, S_T3))
    a('s_lshl_b32 s%d, s%d, 3' % (S_T3, S_T3))
    a('v_lshrrev_b32 v%d, 3, v0' % L)
    a('v_add_u32 v%d, s%d, v%d' % (L, S_T3, L))
    if rnd == 0:
        a('v_cmp_eq_u32 vcc, 0, v%d' % L)
        a('v_mov_b32 v%d, 288' % Q)
        a('v_cndmask_b32 v%d, v%d, v%d, vcc' % (Q, L, Q))
    else:
        a('v_mov_b32 v%d, 288' % Q)
        a('v_cmp_eq_u32 vcc, v%d, v%d' % (Q, L))
        a('v_cndmask_b32 v%d, v%d, 0, vcc' % (Q, L))
    a('v_lshlrev_b32 v%d, 13, v%d' % (Q, Q))
    a('v_and_b32 v%d, 7, v0' % V_T0)
    a('v_lshl_add_u32 v%d, v%d, 4, v%d' % (Q, V_T0, Q))
    a('s_lshl_b32 s%d, s%d, 7' % (S_T2, S_T1))
    a('v_add_u32 v%d, s%d, v%d' % (WT_AS[rnd], S_T2, Q))
    a('s_and_b32 s%d, s%d, 3' % (S_T2, S_T1))
    a('s_lshl_b32 s%d, s%d, 3' % (S_T2, S_T2))
    a('s_lshr_b32 s%d, s%d, 2' % (S_T1, S_T1))
    a('s_lshl_b32 s%d, s%d, 7' % (S_T1, S_T1))
    a('s_add_u32 s%d, s%d, s%d' % (S_T2, S_T2, S_T1))
    a('s_mul_i32 s%d, s%d, %d' % (S_T2, S_T2, DF * 2))
    if rnd == 1:
        a('v_cmp_gt_u32 vcc, 0x121, v%d' % L)
        a('v_mov_b32 v%d, 0x7fffffff' % Q)
        a('v_cndmask_b32 v%d, v%d, v%d, vcc' % (WT_AS[1], Q, WT_AS[1]))
    a('v_add_u32 v%d, s%d, v%d' % (L, S_T3, V_T0))
    a('v_lshrrev_b32 v%d, 3, v0' % V_T0)
    if rnd == 1:
        a('v_cmp_gt_u32 vcc, 0x121, v%d' % L)
    a('v_mul_u32_u24 v%d, %d, v%d' % (V_T0, DF * 2, V_T0))
    a('v_lshl_add_u32 v%d, v%d, 1, v%d' % (L, L, V_T0))
    if rnd == 1:
        a('v_cndmask_b32 v%d, v%d, v%d, vcc' % (L, Q, L))
    a('v_add_u32 v%d, s%d, v%d' % (WT_LA[rnd], S_T2, L))


def wt_issue(a, vm, rnd, SR, SI, es):
    for e in es:
        a('s_mov_b32 s%d, %d' % (S_T3, 32 * e * DF * 2))
        a('buffer_load_ushort v%d, v%d, s[%d:%d], s%d offen' % (WT_RE + 4 * rnd + e, WT_LA[rnd], SR, SR + 3, S_T3))
        a('buffer_load_ushort v%d, v%d, s[%d:%d], s%d offen' % (WT_IM + 4 * rnd + e, WT_LA[rnd], SI, SI + 3, S_T3))
        vm.add('wt', 2)


def wt_stores(a, vm, SW):
    vm.wait('wt')
    srd(a, SW, 66, 67, 289 * 8192, WS_WT)
    for i in range(8):
        a('v_lshl_or_b32 v%d, v%d, 16, v%d' % (WT_IM + i, WT_IM + i, WT_RE + i))
    a('v_and_b32 v%d, 7, v0' % V_TT)
    a('v_lshrrev_b32 v%d, 3, v0' % (V_TT + 1))
    a('v_lshl_add_u32 v%d, v%d, 3, v%d' % (V_TT, V_TT, V_TT + 1))
    a('v_lshlrev_b32 v%d, 2, v%d' % (V_TT, V_TT))
    for i in range(8):
        a('ds_bpermute_b32 v%d, v%d, v%d' % (WT_RE + i, V_TT, WT_IM + i))
    a('s_waitcnt lgkmcnt(0)')
    for rnd in range(2):
        a('buffer_store_dwordx4 %s, v%d, s[%d:%d], 0 offen sc1' % (vr(WT_RE + 4 * rnd, 4), WT_AS[rnd], SW, SW + 3))
        vm.add('wts')


def p1_body(a, st_flags='', instr=False, mega=True):
    vm = Cnt(a, 'vmcnt', 63)
    lg = Cnt(a, 'lgkmcnt', 15)
    sp = Stamps(a, 21, 70, 72, instr)
    if instr:
        a('s_memtime s[74:75]')
    a('s_memrealtime s[76:77]')
    a('s_load_dwordx2 s[4:5], s[0:1], %d' % KA_X)
    a('s_load_dwordx4 s[92:95], s[0:1], %d' % KA_WR)
    a('s_load_dwordx4 s[60:63], s[0:1], %d' % KA_W1)
    a('s_load_dwordx4 s[64:67], s[0:1], %d' % KA_DBG)
    a('s_getpc_b64 s[68:69]')
    a('s_add_u32 s68, s68, tab_T@rel32@lo+4')
    a('s_addc_u32 s69, s69, tab_T@rel32@hi+12')
    a('v_lshrrev_b32 v1, 6, v0')
    a('v_and_b32 v0, 63, v0')
    decode_ids(a, S_MT, S_KS, S_U, S_T1, S_T2)
    a('v_readfirstlane_b32 s%d, v1' % S_WAVE)
    if 'nocode' not in MODE:
        Lc = a.newlabel('p1_ct')
        a('s_cmp_lg_u32 s%d, 7' % S_WAVE)
        a('s_cbranch_scc1 %s' % Lc)
        a('s_getpc_b64 s[%d:%d]' % (S_H, S_H + 1))
        a.label('code_here')
        a('s_and_b32 s%d, s%d, 0xffff' % (S_H + 1, S_H + 1))
        a('s_mov_b32 s%d, code_end-code_here' % (S_H + 2))
        a('s_mov_b32 s%d, 0x20000' % (S_H + 3))
        a('s_lshr_b32 s%d, s2, 3' % S_T1)
        a('s_lshl_b32 s%d, s%d, 13' % (S_T1, S_T1))
        a('v_lshlrev_b32 v%d, 7, v0' % V_T0)
        a('buffer_load_dword v%d, v%d, s[%d:%d], s%d offen' % (V_DUM, V_T0, S_H, S_H + 3, S_T1))
        a.label(Lc)
    a('s_lshr_b32 s%d, s%d, 2' % (S_G, S_WAVE))
    a('s_and_b32 s%d, s%d, 3' % (S_WR, S_WAVE))
    a('s_cmp_eq_u32 s%d, 0' % S_KS)
    a('s_cselect_b32 s%d, 3, 2' % S_NT_)
    a('s_cselect_b32 s%d, 0, 1' % S_TB)
    a('s_lshl_b32 s%d, s%d, 1' % (S_T1, S_KS))
    a('s_add_u32 s%d, s%d, s%d' % (S_TB, S_TB, S_T1))
    a('s_add_u32 s%d, s%d, 72' % (S_TB, S_TB))
    a('s_or_b32 s%d, s%d, s%d' % (S_T1, S_KS, S_U))
    a('s_cmp_eq_u32 s%d, 0' % S_T1)
    a('s_cselect_b32 s%d, 6, 5' % S_CNT)
    a('s_mul_i32 s%d, s%d, 3072' % (S_DW, S_WAVE))
    a('s_cmp_eq_u32 s%d, 0' % S_U)
    a('s_cselect_b32 s%d, s%d, 99' % (S_FTR, S_CNT))
    a('s_cselect_b32 s%d, 99, s%d' % (S_GPR, S_CNT))
    a('v_lshrrev_b32 v108, 3, v0')
    a('v_and_b32 v109, 7, v0')
    a('v_bfe_u32 v104, v0, 4, 1')
    a('s_mul_i32 s%d, s%d, 3' % (S_T1, S_WAVE))
    for i in range(3):
        a('s_add_u32 s%d, s%d, %d' % (S_T2, S_T1, i))
        a('s_lshl_b32 s%d, s%d, 3' % (S_T3, S_T2))
        a('v_add_u32 v106, s%d, v108' % S_T3)
        a('s_and_b32 s%d, s%d, 1' % (S_T2, S_T2))
        a('s_lshl_b32 s%d, s%d, 1' % (S_T2, S_T2))
        a('v_add_u32 v105, s%d, v104' % S_T2)
        a('v_lshlrev_b32 v105, 1, v105')
        a('v_xor_b32 v105, v105, v109')
        a('v_lshl_or_b32 v%d, v105, 20, v106' % (V_DKJ + i))
    a('s_lshl_b32 s%d, s%d, 2' % (S_N2, S_MT))
    a('s_lshr_b32 s%d, s%d, 1' % (S_T1, S_WAVE))
    a('s_add_u32 s%d, s%d, s%d' % (S_T1, S_T1, S_N2))
    a('s_and_b32 s%d, s%d, 1' % (S_T2, S_WAVE))
    a('s_lshl_b32 s%d, s%d, 6' % (S_T2, S_T2))
    a('s_add_u32 s%d, s%d, s%d' % (S_T1, S_T1, S_T2))
    a('s_add_u32 s%d, s%d, s%d' % (S_N2, S_N2, S_WR))
    for i in range(2):
        a('v_add_u32 v104, %d, v108' % (8 * i))
        a('v_lshrrev_b32 v105, 1, v104')
        a('v_xor_b32 v105, v105, v109')
        a('v_lshlrev_b32 v104, 7, v104')
        a('v_add_u32 v104, s%d, v104' % S_T1)
        a('v_mul_u32_u24 v104, %d, v104' % (D * 2))
        a('v_lshl_add_u32 v%d, v105, 4, v104' % (V_XO + i))
    a('s_mov_b32 s%d, 0' % S_P)
    a('s_mov_b32 s%d, 0' % S_WBASE)
    a('s_mov_b32 s%d, 0x20000' % (S_LD + 3))
    a('s_waitcnt lgkmcnt(0)')
    srd(a, S_X, 4, 5, S * D * 2)
    srd(a, S_W1, 60, 61, D * F * 2)
    srd(a, S_T, 68, 69, D * D * 2)
    set_load_panel(a, S_P)
    if 'not0' not in MODE:
        a('v_mul_u32_u24 v100, 57, v0')
        a('v_lshrrev_b32 v100, 9, v100')
        a('v_mul_u32_u24 v101, 9, v100')
        a('v_sub_u32 v101, v0, v101')
        a('s_lshl_b32 s%d, s%d, 2' % (S_T1, S_WAVE))
        a('v_add_u32 v102, s%d, v100' % S_T1)
        a('v_and_b32 v103, 15, v102')
        a('v_lshrrev_b32 v102, 4, v102')
        a('v_lshl_add_u32 v102, v103, 1, v102')
        a('s_lshl_b32 s%d, s%d, 2' % (S_T1, S_MT))
        a('s_add_u32 s%d, s%d, s%d' % (S_T1, S_T1, S_U))
        a('v_lshl_add_u32 v102, v102, 6, s%d' % S_T1)
        a('v_mul_u32_u24 v102, %d, v102' % (D * 2))
        a('v_lshl_add_u32 v102, v101, 7, v102')
        a('v_cmp_gt_u32 vcc, 36, v0')
        a('v_mov_b32 v103, 0x7fffffff')
        a('v_cndmask_b32 v102, v103, v102, vcc')
        a('buffer_load_dword v%d, v102, s[%d:%d], 0 offen' % (V_DUM, S_X, S_X + 3))
        a('s_and_b32 s%d, s%d, 7' % (S_T1, S_MT))
        a('s_lshl_b32 s%d, s%d, 3' % (S_T1, S_T1))
        a('s_add_u32 s%d, s%d, s%d' % (S_T1, S_T1, S_WAVE))
        a('s_mul_i32 s%d, s%d, 9' % (S_T1, S_T1))
        a('v_min_u32 v101, 8, v0')
        a('v_add_u32 v101, s%d, v101' % S_T1)
        a('v_mul_lo_u32 v101, v101, s%d' % S_PITCH)
        a('buffer_load_dword v%d, v101, s[%d:%d], s%d offen' % (V_DUM, S_LD, S_LD + 3, S_LOFF))
        vm.add('tch', 2)
    dma_x(a, vm, 0, 0)
    dma_x(a, vm, 1, 1)

    def wst(st):
        for i in range(3):
            dma_one(a, st, i)
            vm.add('d%d' % st)
        adv(a, S_WBASE)
    wst(0)
    for pc in range(2, 5):
        dma_x(a, vm, pc, pc)
    srd(a, S_DBG, 64, 65, 256)
    Ln = a.newlabel('p1_nn')
    a('s_or_b32 s%d, s2, s%d' % (S_T1, S_WAVE))
    a('s_cmp_lg_u32 s%d, 0' % S_T1)
    a('s_cbranch_scc1 %s' % Ln)
    a('s_or_b32 s%d, s76, 1' % S_T1)
    a('v_mov_b32 v104, s%d' % S_T1)
    a('v_mov_b32 v105, 0')
    a('buffer_store_dword v104, v105, s[%d:%d], 0 offen sc1' % (S_DBG, S_DBG + 3))
    a.label(Ln)
    if instr:
        sp.init()
        a('v_writelane_b32 v21, s74, 0')
        a('v_writelane_b32 v21, s76, 62')
        a('s_mov_b32 s70, 48')
        sp.stamp()
    srd(a, S_PG, 66, 67, 64 * 64, WS_PROG)
    a('s_lshl_b32 s%d, s%d, 2' % (S_PGO, S_MT))
    a('s_add_u32 s%d, s%d, s%d' % (S_PGO, S_PGO, S_KS))
    a('s_lshl_b32 s%d, s%d, 4' % (S_PGO, S_PGO))
    a('s_add_u32 s%d, s%d, s%d' % (S_PGO, S_PGO, S_U))
    a('s_lshl_b32 s%d, s%d, 2' % (S_PGO, S_PGO))
    MK, MN = S_SPIN, S_PREV
    a('s_and_b32 s%d, s%d, 1' % (MK, S_WR))
    a('s_lshr_b32 s%d, s%d, 1' % (MN, S_WR))
    a('s_lshl_b32 s%d, s%d, 11' % (S_R0, S_G))
    a('s_xor_b32 s%d, s%d, 2048' % (S_R1, S_R0))
    a('s_lshl_b32 s%d, s%d, 16' % (S_N0, MN))
    a('s_xor_b32 s%d, s%d, 0x10000' % (S_N1, S_N0))
    a('v_and_b32 v110, 15, v0')
    a('v_lshrrev_b32 v111, 4, v0')
    a('v_and_b32 v105, 1, v111')
    a('v_xor_b32 v105, s%d, v105' % MN)
    a('v_lshrrev_b32 v106, 1, v111')
    a('v_lshl_add_u32 v105, v105, 1, v106')
    a('v_lshrrev_b32 v106, 2, v110')
    a('v_and_b32 v106, 2, v106')
    a('v_xor_b32 v105, v105, v106')
    a('v_lshlrev_b32 v104, 6, v110')
    a('v_lshl_add_u32 v104, v105, 4, v104')
    a('s_mul_i32 s%d, s%d, %d' % (S_T3, S_MT, 72 * 16384))
    a('s_lshl_b32 s%d, s%d, 11' % (S_T2, S_WR))
    a('s_add_u32 s%d, s%d, s%d' % (S_T3, S_T3, S_T2))
    a('s_lshl_b32 s%d, s%d, 13' % (S_T2, S_G))
    a('s_add_u32 s%d, s%d, s%d' % (S_T3, S_T3, S_T2))
    a('v_add_u32 v%d, s%d, v104' % (V_HA, S_T3))
    a('v_lshlrev_b32 v104, 14, v111')
    a('v_lshl_add_u32 v104, v110, 3, v104')
    a('s_lshl_b32 s%d, s%d, 17' % (S_T3, S_G))
    a('s_lshl_b32 s%d, s%d, 7' % (S_T2, S_N2))
    a('s_add_u32 s%d, s%d, s%d' % (S_T3, S_T3, S_T2))
    a('v_add_u32 v%d, s%d, v104' % (V_RTA, S_T3))
    a('s_lshl_b32 s%d, s%d, 7' % (S_T3, S_G))
    a('s_lshl_b32 s%d, s%d, 6' % (S_T2, MN))
    a('s_add_u32 s%d, s%d, s%d' % (S_T3, S_T3, S_T2))
    a('v_lshl_add_u32 v104, v111, 4, s%d' % S_T3)
    a('v_xor_b32 v105, 64, v104')
    a('v_add_u32 v%d, %d, v104' % (V_CSA, P1_CBL))
    a('v_add_u32 v%d, %d, v105' % (V_CSA + 1, P1_CBL))
    a('v_add_u32 v%d, %d, v104' % (V_CXA, P1_CSX))
    a('v_add_u32 v%d, %d, v105' % (V_CXA + 1, P1_CSX))
    a('s_lshl_b32 s%d, s%d, 8' % (S_T2, MK))
    a('v_add_u32 v%d, s%d, v%d' % (V_CXW, S_T2, V_CXA))
    a('s_lshl_b32 s%d, s%d, 12' % (S_T3, S_WR))
    a('s_add_u32 s%d, s%d, %d' % (S_T3, S_T3, P1_XB))
    a('v_lshrrev_b32 v104, 1, v110')
    a('v_xor_b32 v104, v104, v111')
    a('s_lshl_b32 s%d, s%d, 2' % (S_T2, MK))
    a('v_xor_b32 v104, s%d, v104' % S_T2)
    a('v_lshlrev_b32 v105, 7, v110')
    a('v_add_u32 v105, s%d, v105' % S_T3)
    a('v_lshl_add_u32 v106, v104, 4, v105')
    a('v_xor_b32 v104, 4, v104')
    a('v_lshl_add_u32 v107, v104, 4, v105')
    for rt in range(2):
        for j in range(2):
            a('v_add_u32 v%d, s%d, v%d' % (V_XR + 2 * rt + j, S_R0 + rt, 106 + j))
            a('v_add_u32 v%d, 0x10000, v%d' % (V_XR + 4 + 2 * rt + j, V_XR + 2 * rt + j))
    a('v_bfe_u32 v104, v0, 2, 2')
    a('v_and_b32 v105, 3, v0')
    a('v_lshl_add_u32 v106, v111, 3, v104')
    a('v_lshlrev_b32 v106, 7, v106')
    a('v_and_b32 v107, 1, v105')
    a('v_lshl_add_u32 v106, v107, 3, v106')
    a('v_lshrrev_b32 v107, 1, v104')
    a('v_and_b32 v108, 1, v111')
    a('v_lshl_add_u32 v107, v108, 1, v107')
    a('v_lshlrev_b32 v107, 1, v107')
    a('v_lshrrev_b32 v108, 1, v105')
    a('s_lshl_b32 s%d, s%d, 2' % (S_T3, S_G))
    a('s_lshl_b32 s%d, s%d, 1' % (S_T2, MN))
    a('s_add_u32 s%d, s%d, s%d' % (S_T3, S_T3, S_T2))
    a('s_lshl_b32 s%d, s%d, 12' % (S_T2, MK))
    a('v_add_u32 v109, s%d, v108' % S_T3)
    a('v_xor_b32 v109, v109, v107')
    for nt in range(2):
        if nt:
            a('v_xor_b32 v109, 2, v109')
        a('v_lshl_add_u32 v104, v109, 4, v106')
        a('v_add_u32 v%d, s%d, v104' % (V_RC + nt, S_T2))
        a('v_subrev_u32 v%d, s%d, v104' % (V_RC + 2 + nt, S_T2))
    for i in range(4):
        a('v_mov_b32 v%d, 0x3f803f80' % (V_ONE + i))
    a('s_mov_b32 s%d, 0' % S_RB)
    a('s_mov_b32 s%d, 0' % S_RB1)
    a('s_mov_b32 s%d, 0' % S_RBD)
    a('s_mov_b32 s%d, 0' % (S_RBD + 1))
    panel_id(a, S_CUR, S_P)
    wt_loads(a, vm, 0, S_H, S_RT)
    wt_loads(a, vm, 1, S_H, S_RT)
    if instr:
        a('s_mov_b32 s70, 1')
    vm.wait('x4')
    sp.stamp()
    a('s_barrier')
    rd3(a, lg, 0, 0)
    rd3(a, lg, 0, 1)
    rd3(a, lg, 1, 0)
    for pc in range(2):
        xreads(a, lg, pc, pc)
    wst(1)
    srd(a, S_H, 92, 93, S * DF * 2)
    srd(a, S_RT, 94, 95, S * DF * 2)
    wst(2)
    if 'notouch' not in MODE:
        touch_w(a, 1)
    if 'tx' in MODE:
        Lx = a.newlabel('p1_tx')
        a('s_sub_u32 s%d, s%d, 4' % (S_T1, S_WAVE))
        a('s_cmp_gt_u32 s%d, 1' % S_T1)
        a('s_cbranch_scc1 %s' % Lx)
        a('s_lshl_b32 s%d, s%d, 6' % (S_T1, S_T1))
        a('s_lshl_b32 s%d, s%d, 2' % (S_T2, S_MT))
        a('s_add_u32 s%d, s%d, s%d' % (S_T1, S_T1, S_T2))
        a('s_add_u32 s%d, s%d, s%d' % (S_T1, S_T1, S_U))
        a('s_mul_i32 s%d, s%d, %d' % (S_T1, S_T1, D * 2))
        a('v_lshrrev_b32 v104, 2, v0')
        a('v_mul_u32_u24 v104, %d, v104' % (128 * D * 2))
        a('v_and_b32 v105, 3, v0')
        a('v_lshl_add_u32 v104, v105, 7, v104')
        a('buffer_load_dword v%d, v104, s[%d:%d], s%d offen offset:640' % (V_DUM, S_X, S_X + 3, S_T1))
        a.label(Lx)
    for pc in range(2, 5):
        xreads(a, lg, pc, pc)
    srd(a, S_B1, 62, 63, F * 2)
    panel_id(a, S_T4, S_WAVE)
    a('s_lshl_b32 s%d, s%d, 7' % (S_T4, S_T4))
    a('v_lshlrev_b32 v92, 1, v0')
    a('buffer_load_ushort v93, v92, s[%d:%d], s%d offen' % (S_B1, S_B1 + 3, S_T4))
    vm.add('b1')
    a('s_mov_b32 s%d, 1' % S_T4)
    set_load_panel(a, S_T4)
    a('s_cmp_eq_u32 s%d, 0' % S_WAVE)
    a('s_cselect_b32 s%d, 0, 0x7fffffff' % S_T1)
    a('v_mov_b32 v%d, 0' % V_TT)
    a('buffer_load_dword v%d, v%d, s[%d:%d], s%d offen' % (V_NN, V_TT, S_DBG, S_DBG + 3, S_T1))
    vm.add('nn')
    lg.wait_all()
    a('s_barrier')
    S_ = sp if instr else None
    sp.rstamp(54)
    if 'prio' in MODE:
        Lq = a.newlabel('p1_prio')
        a('s_cmp_eq_u32 s%d, 0' % S_G)
        a('s_cbranch_scc1 %s' % Lq)
        a('s_setprio 1')
        a.label(Lq)
    body(a, vm, lg, 'first', 0, st_flags, S_)
    q_lg = ['w0_0'] * 2 + ['w0_1'] * 2 + ['w1_0'] * 2 + ['cw']
    q_first = list(vm.q)

    def run(kind, par, q_in):
        lg.q = list(q_lg)
        vm.q = list(q_in)
        body(a, vm, lg, kind, par, st_flags, S_)
        assert lg.q == q_lg, (lg.q, q_lg)
        return list(vm.q)

    LT = a.newlabel('p1_bT')
    L0 = a.newlabel('p1_b0')
    LE0 = a.newlabel('p1_e0')
    LE1 = a.newlabel('p1_e1')
    LX = a.newlabel('p1_x')
    sp.rstamp(55)
    qM = ['d1', 'd2', 'es', 'd0']
    L1 = a.newlabel('p1_b1')
    a('s_cmp_ge_u32 s%d, 72' % S_PREV)
    a('s_cbranch_scc1 %s' % LT)
    a.label(L1)
    run('W', 1, qM)
    a('s_cmp_ge_u32 s%d, s%d' % (S_P, S_CNT))
    a('s_cbranch_scc1 %s' % LE1)
    a.label(L0)
    q2 = run('W', 0, qM)
    assert q2[-1] == 'd0' and 'es' in q2, q2
    a('s_cmp_lt_u32 s%d, s%d' % (S_P, S_CNT))
    a('s_cbranch_scc1 %s' % L1)

    def tbody():
        run('T1', 1, q_first)
    COLD.append((LT, L0, tbody))
    for par, L in ((0, LE0), (1, LE1)):
        a.label(L)
        sp.stamp()
        a('s_waitcnt lgkmcnt(0)')
        a('s_barrier')
        lg.q = []
        epi_loads(a, lg, False)
        lg.wait('el')
        for t in epi_ops(ACCS[par], False, st_flags):
            emit_epi(a, vm, t)
        a('s_branch %s' % LX)
    while COLD:
        Ls, Lb, fn = COLD.pop(0)
        a.label(Ls)
        fn()
        a('s_branch %s' % Lb)
    a.label(LX)
    return sp
```
